```python
import torch

def _softmax(x, axis=-1):
    return torch.softmax(x, dim=axis)
def _gelu(x):
    return torch.nn.functional.gelu(x, approximate="tanh")
def _silu(x):
    return torch.nn.functional.silu(x)
def _sigmoid(x):
    return torch.sigmoid(x)
def _layernorm(x, axis=-1, eps=1e-5):
    m = x.mean(dim=axis, keepdim=True)
    v = x.var(dim=axis, keepdim=True, unbiased=False)
    return (x - m) / torch.sqrt(v + eps)
def _scatter_add(tgt, idx, src, axis=0):
    return tgt.clone().index_add_(axis, idx, src)
def _segment_sum(src, seg, n):
    out = torch.zeros((n,) + src.shape[1:], dtype=src.dtype)
    return out.index_add_(0, seg, src)
def _pad(x, pw):
    flat = tuple(v for pair in reversed(pw) for v in pair)
    return torch.nn.functional.pad(x, flat)

kernel_name = 'interleave_layers__linear_attn_block__sliding_block__prompt'

def setup_inputs():

    _w = (lambda a: (lambda t: t.to(torch.bfloat16) if t.is_floating_point() else t)(torch.as_tensor(a)))
    def _A_setup():
        B, S, D = 1, 2048, 512
        return {
            "x": _w((lambda *s: torch.randn(*s, dtype=torch.bfloat16) * 0.05)(B, S, D)),
            "wqkv": _w((lambda *s: torch.randn(*s, dtype=torch.bfloat16) * 0.05)(D, 3 * D)),
            "wo": _w((lambda *s: torch.randn(*s, dtype=torch.bfloat16) * 0.05)(D, D)),
        }
    _A_in = _A_setup()

    def _B_setup():
        B, S, D = 1, 2048, 512
        return {
            "x": _w((lambda *s: torch.randn(*s, dtype=torch.bfloat16) * 0.05)(B, S, D)),
            "wqkv": _w((lambda *s: torch.randn(*s, dtype=torch.bfloat16) * 0.1)(D, 3 * D)),
            "wo": _w((lambda *s: torch.randn(*s, dtype=torch.bfloat16) * 0.05)(D, D)),
        }
    _B_in = _B_setup()

    return {
        "A_x": _A_in["x"],
        "A_wqkv": _A_in["wqkv"],
        "A_wo": _A_in["wo"],
        "B_x": _B_in["x"],
        "B_wqkv": _B_in["wqkv"],
        "B_wo": _B_in["wo"],
    }

def reference(A_x, A_wqkv, A_wo, B_x, B_wqkv, B_wo):
    def _A_ref(x, wqkv, wo):
        B, S, D = x.shape
        H = 32; Dh = D // H
        qkv = (lambda x, *d: x.permute(*d))((x @ wqkv).reshape(B, S, 3, H, Dh), 2, 0, 3, 1, 4)
        q, k, v = qkv[0], qkv[1], qkv[2]
        phi = lambda t: torch.where(t > 0, t + 1, torch.exp(t)) + 1e-6
        pq, pk = phi(q), phi(k)
        kv = torch.einsum("bhsd,bhse->bhde", pk, v)
        z = torch.einsum("bhsd->bhd", pk)
        num = torch.einsum("bhqd,bhde->bhqe", pq, kv)
        den = torch.einsum("bhqd,bhd->bhq", pq, z)[..., None] + 1e-6
        o = num / den
        return (lambda x, *d: x.permute(*d))(o, 0, 2, 1, 3).reshape(B, S, D) @ wo

    def _B_ref(x, wqkv, wo):
        B, S, D = x.shape
        H = 32; Dh = D // H; W = 256
        qkv = (lambda x, *d: x.permute(*d))((x @ wqkv).reshape(B, S, 3, H, Dh), 2, 0, 3, 1, 4)
        q, k, v = qkv[0], qkv[1], qkv[2]
        scores = torch.einsum("bhqd,bhkd->bhqk", q, k) * (Dh ** -0.5)
        idx = torch.arange(S)
        mask = (idx[:, None] - idx[None, :] >= 0) & (idx[:, None] - idx[None, :] < W)
        scores = torch.where(mask[None, None], scores, -1e9)
        p = _softmax(scores, axis=-1)
        o = torch.einsum("bhqk,bhkd->bhqd", p, v)
        return (lambda x, *d: x.permute(*d))(o, 0, 2, 1, 3).reshape(B, S, D) @ wo

    x = A_x
    x = x + _A_ref(_layernorm(x, axis=-1), A_wqkv, A_wo)
    x = x + _B_ref(_layernorm(x, axis=-1), B_wqkv, B_wo)
    x = x + _A_ref(_layernorm(x, axis=-1), A_wqkv, A_wo)
    x = x + _B_ref(_layernorm(x, axis=-1), B_wqkv, B_wo)
    return x
```

```python
import re

REG_RE = re.compile(r'^(-?)(\|?)(?:abs\()?([vas])(\d+|\[(\d+):(\d+)\])\)?\|?$')

def regs_of(op):
    op = op.strip()
    if op in ('vcc',): return ['vcc']
    if op in ('exec',): return ['exec']
    if op in ('m0',): return ['m0']
    if op in ('vcc_lo', 'vcc_hi'): return ['vcc']
    if op in ('exec_lo', 'exec_hi'): return ['exec']
    m = REG_RE.match(op)
    if not m: return []
    k = m.group(3)
    if m.group(5) is not None:
        return [f'{k}{i}' for i in range(int(m.group(5)), int(m.group(6)) + 1)]
    return [f'{k}{int(m.group(4))}']

TRANS = ('v_exp_', 'v_log_', 'v_rcp_', 'v_rsq_', 'v_sqrt_', 'v_sin_', 'v_cos_')

class Ins:
    __slots__ = ('text', 'mn', 'ops', 'w', 'r', 'kind', 'srcc', 'ab', 'passes', 'mods', 'tag')
    def __init__(self, text, tag=None):
        self.text = text; self.tag = tag
        t = text.split(';')[0].strip()
        self.w = []; self.r = []; self.srcc = []; self.ab = []; self.passes = 0; self.mods = ''
        if t.endswith(':') or t.startswith('.') or not t:
            self.kind = 'label' if t.endswith(':') else 'dir'; self.mn = t; self.ops = []
            return
        p = t.split(None, 1)
        self.mn = mn = p[0]
        rest = p[1] if len(p) > 1 else ''
        ops = []; cur = ''; d = 0
        for ch in rest:
            if ch in '[(': d += 1
            if ch in '])': d -= 1
            if ch == ',' and d == 0: ops.append(cur.strip()); cur = ''
            else: cur += ch
        if cur.strip(): ops.append(cur.strip())
        if ops:
            last = ops[-1].split(None, 1)
            if len(last) > 1 and not mn.startswith('s_waitcnt'):
                ops[-1] = last[0]; self.mods = last[1]
        self.ops = ops
        R = [regs_of(o) for o in ops]
        flat = lambda l: [x for y in l for x in y]
        if mn.startswith('v_mfma'):
            self.kind = 'mfma'; self.w = R[0]; self.ab = R[1] + R[2]; self.srcc = R[3]; self.r = self.ab + self.srcc
            self.passes = 8 if '32x32' in mn else 4
        elif mn.startswith('v_'):
            self.kind = 'valu'
            if mn.startswith('v_permlane') and 'swap' in mn:
                self.w = R[0] + R[1]; self.r = R[0] + R[1]
            elif mn.startswith(('v_fmac', 'v_dot2c', 'v_pk_fmac', 'v_writelane')):
                self.w = R[0]; self.r = flat(R)
            elif mn.startswith(('v_add_co', 'v_sub_co', 'v_addc_co', 'v_subb_co', 'v_subrev_co')):
                self.w = R[0] + R[1]; self.r = flat(R[2:])
            elif mn.startswith('v_cmpx'):
                self.w = R[0] + ['exec']; self.r = flat(R[1:])
            elif mn == 'v_nop':
                pass
            else:
                self.w = R[0]; self.r = flat(R[1:])
                if 'dpp' in mn or 'sdwa' in mn: self.r = self.r + R[0]
        elif mn.startswith('ds_'):
            self.kind = 'ds'
            if mn.startswith(('ds_read', 'ds_bpermute', 'ds_permute', 'ds_swizzle')):
                self.w = R[0]; self.r = flat(R[1:])
            else:
                self.r = flat(R)
        elif mn.startswith(('buffer_', 'global_')):
            self.kind = 'vmem'
            mods = self.mods.split()
            if 'lds' in mods or '_lds_' in mn:
                self.r = flat(R) + ['m0']
            elif mn.startswith(('buffer_load', 'global_load')):
                self.w = R[0]; self.r = flat(R[1:])
            elif 'atomic' in mn and 'sc0' in mods:
                self.w = R[0]; self.r = flat(R)
            else:
                self.r = flat(R)
        elif mn.startswith(('s_load', 's_memtime', 's_memrealtime', 's_buffer_load')):
            self.kind = 'smem'; self.w = R[0]; self.r = flat(R[1:])
        elif mn.startswith('s_'):
            self.kind = 'salu'
            if mn.startswith(('s_cmp', 's_bitcmp', 's_cbranch', 's_branch', 's_waitcnt', 's_nop', 's_barrier', 's_endpgm', 's_sleep', 's_setprio', 's_setpc')):
                self.r = flat(R)
                if mn.startswith('s_cbranch_vcc'): self.r = ['vcc']
                if mn.startswith('s_cbranch_exec'): self.r = ['exec']
            elif 'saveexec' in mn:
                self.w = R[0] + ['exec']; self.r = flat(R[1:]) + ['exec']
            else:
                self.w = R[0]; self.r = flat(R[1:])
                if mn.startswith(('s_addk', 's_mulk', 's_cmov', 's_bitset')): self.r = flat(R)
        else:
            raise ValueError('unknown instr ' + text)
    def states(self):
        if self.kind in ('label', 'dir'): return 0
        if self.mn == 's_nop': return int(self.ops[0], 0) + 1
        return 1
    def is_trans(self): return self.mn.startswith(TRANS)
    def is_dpp(self): return 'dpp' in self.mn or 'row_' in self.mods or 'quad_perm' in self.mods
    def is_wide_store(self): return self.kind == 'vmem' and 'store' in self.mn and ('x3' in self.mn or 'x4' in self.mn)

def need_states(p, c):
    n = 0
    if p.kind in ('label', 'dir') or c.kind in ('label', 'dir'): return 0
    pw = set(p.w); cr = set(c.r); cw = set(c.w)
    isv = lambda s: {x for x in s if x[0] in 'va' and x != 'vcc'}
    iss = lambda s: {x for x in s if x[0] == 's' or x == 'vcc'}
    if p.kind == 'valu':
        vw = isv(pw); sw = iss(pw)
        if c.kind == 'mfma' and vw & cr: n = max(n, 2)
        if c.kind == 'valu':
            if c.mn.startswith('v_permlane') and vw & cr: n = max(n, 2)
            if c.is_dpp() and vw & cr: n = max(n, 2)
            if c.mn.startswith(('v_readfirstlane', 'v_readlane')) and vw & cr: n = max(n, 1)
            if p.is_trans() and not c.is_trans() and vw & cr: n = max(n, 1)
            if p.is_trans() and c.is_trans() and vw & cr: n = max(n, 1)
            if sw & cr: n = max(n, 4 if c.mn.startswith(('v_readlane', 'v_writelane')) else 2)
            if c.mn.startswith('v_cndmask') and 'vcc' in sw and len(c.ops) == 4 and c.ops[3] == 'vcc': n = max(n, 2)
            if p.mn.startswith('v_dot') and vw & (cr | cw):
                if not (c.mn == p.mn and not (vw & set(regs_of(c.ops[1]) + regs_of(c.ops[2])))): n = max(n, 3)
            if ('sdwa' in p.mn or 'op_sel' in p.mods) and not p.mn.startswith('v_pk') and vw & (cr | cw): n = max(n, 1)
        if p.mn.startswith('v_dot') and c.kind in ('vmem', 'ds', 'mfma') and vw & (cr | cw): n = max(n, 3)
        if p.is_trans() and c.kind in ('vmem', 'ds') and vw & cr: n = max(n, 1)
        if c.kind == 'vmem' and sw & cr: n = max(n, 5)
        if c.kind == 'salu' and sw & cr: n = max(n, 2 if c.mn.startswith('s_cbranch') else 1)
        if 'exec' in pw: n = max(n, 5)
    if p.kind == 'mfma':
        big = p.passes == 8
        if c.kind == 'mfma':
            if pw & set(c.ab): n = max(n, 12 if big else 8)
            if pw & set(c.srcc):
                if not (p.w == c.srcc and p.passes == c.passes): n = max(n, 10 if big else 6)
            if pw & cw and not (p.w == c.w and p.passes == c.passes):
                n = max(n, 10 if big else 6)
        elif c.kind in ('valu', 'vmem', 'ds'):
            if pw & (cr | cw): n = max(n, 12 if big else 8)
            if c.kind == 'valu' and set(p.srcc) & cw: n = max(n, 7 if big else 3)
    if p.is_wide_store() and c.kind in ('valu', 'mfma'):
        if set(regs_of(p.ops[0])) & cw: n = max(n, 2)
    if p.kind == 'ds' and p.mn.startswith('ds_write_b128') and c.kind in ('valu', 'mfma'):
        if set(regs_of(p.ops[1])) & cw: n = max(n, 2)
    if p.kind == 'salu' and 'm0' in pw and c.kind == 'vmem' and 'm0' in cr: n = max(n, 1)
    return n

class Asm:
    def __init__(self):
        self.ins = []
    def __call__(self, text, tag=None):
        for line in text.split('\n'):
            line = line.strip()
            if line: self.ins.append(Ins(line, tag))
    def extend(self, lst):
        for x in lst:
            if isinstance(x, Ins): self.ins.append(x)
            else: self(x)

    def auto_wait(self):
        out = []; vm = []; lg = []; smem = False
        for I in self.ins:
            if I.kind in ('label', 'dir'):
                out.append(I); continue
            if I.mn == 's_waitcnt':
                t = I.text.split(';')[0]
                m = re.search(r'vmcnt\((\d+)\)', t)
                if m:
                    n = int(m.group(1)); vm = vm[len(vm) - n:] if n < len(vm) else vm
                    if n == 0: vm = []
                m = re.search(r'lgkmcnt\((\d+)\)', t)
                if m:
                    n = int(m.group(1))
                    if n == 0: lg = []; smem = False
                    elif not smem: lg = lg[len(lg) - n:] if n < len(lg) else lg
                out.append(I); continue
            touch = set(I.r) | set(I.w)
            nv = nl = None
            for k in range(len(vm) - 1, -1, -1):
                if vm[k] & touch:
                    if I.kind == 'vmem' and not (vm[k] & set(I.r)): continue
                    nv = len(vm) - 1 - k; break
            for k in range(len(lg) - 1, -1, -1):
                if lg[k] & touch:
                    if I.kind == 'ds' and not smem and not (lg[k] & set(I.r)): continue
                    nl = 0 if smem else len(lg) - 1 - k; break
            if nv is not None or nl is not None:
                parts = []
                if nv is not None:
                    nv = min(nv, 63); parts.append(f'vmcnt({nv})'); vm = vm[len(vm) - nv:] if nv else []
                if nl is not None:
                    nl = min(nl, 15); parts.append(f'lgkmcnt({nl})'); lg = lg[len(lg) - nl:] if nl else []
                    if nl == 0: smem = False
                out.append(Ins('s_waitcnt ' + ' '.join(parts), 'auto'))
            out.append(I)
            if I.kind == 'vmem': vm.append(set(I.w))
            elif I.kind == 'ds': lg.append(set(I.w))
            elif I.kind == 'smem': lg.append(set(I.w)); smem = True
        self.ins = out

    def fix_hazards(self):
        out = []; added = 0
        for I in self.ins:
            if I.kind not in ('label', 'dir'):
                need = 0; dist = 0
                for P in reversed(out):
                    if dist >= 20: break
                    if P.kind in ('label', 'dir'): continue
                    if P.mn in ('s_branch', 's_endpgm', 's_setpc_b64'): break
                    n = need_states(P, I) - dist
                    if n > need: need = n
                    dist += P.states()
                while need > 0:
                    k = min(need, 16); out.append(Ins(f's_nop {k-1}', 'haz')); need -= k; added += k
            out.append(I)
        self.ins = out
        return added

    def check_branch_hazards(self):
        lab = {I.mn[:-1]: k for k, I in enumerate(self.ins) if I.kind == 'label'}
        bad = []
        for k, I in enumerate(self.ins):
            if I.mn.startswith(('s_cbranch', 's_branch')):
                tgt = lab[I.ops[0]]
                before = []; d = 0
                for P in reversed(self.ins[:k + 1]):
                    if P.kind in ('label', 'dir'): continue
                    before.append((P, d)); d += P.states()
                    if d > 20: break
                d2 = 0
                for C in self.ins[tgt:]:
                    if C.kind in ('label', 'dir'): continue
                    for P, dp in before:
                        if need_states(P, C) > dp + d2: bad.append((P.text, C.text, I.text))
                    d2 += C.states()
                    if d2 > 20 or C.mn in ('s_branch', 's_endpgm'): break
        return bad

    def text(self):
        return '\n'.join(('' if I.kind == 'label' or I.kind == 'dir' else '    ') + I.text for I in self.ins) + '\n'

def interleave(main, fill, per=2, start=0):
    out = []; f = list(fill)
    for k, m in enumerate(main):
        out.append(m)
        if k >= start:
            for _ in range(per):
                if f: out.append(f.pop(0))
    return out + f

def vr(b, n=1, k='v'):
    return f'{k}{b}' if n == 1 else f'{k}[{b}:{b+n-1}]'
```

```python
import sys
from asmlib import Asm, Ins, vr, interleave

KNAME = 'interleave_layers__linear_attn_block__sliding_block__prompt_kernel'
WO = 0; T = 65536; S = 131072
TS = 2064
KVN = T
OWN = S + 512
STAT = S + 17024
CS = S + 17536
LDS_BYTES = 163840
KVA0 = 0x10000; KVA_I = 0xA0000
FA0 = 0x150000
G0 = 0x200000
oXO = 0; oXX = 0x40000; oST = 0x70000; oFL = 0x78000; oKVB = 0x80000
WS_BYTES = 0x2200000
STAMP0 = 0x2200000
X0, WA, WOA, WB, WOB, OUT, WS = 's[8:11]', 's[12:15]', 's[16:19]', 's[20:23]', 's[24:27]', 's[28:31]', 's[32:35]'
sG, sJ, sW, sTag, sL, sGb, sEp = 's36', 's37', 's38', 's39', 's40', 's41', 's42'
sCnt = 's43'
MASK0 = 64
vLane, vL16, vT, vRSa, vRSb, vCSa, vCSb, vXo, vPG, vE6, vL2E, vNE = ['v%d' % i for i in range(12)]
ONES = 12
vStamp = 'v16'
def Wreg(mat, part, s):
    base = {('a', 'k'): ('a', 0), ('a', 'v'): ('a', 64), ('a', 'q'): ('a', 128), ('b', 'q'): ('a', 192), ('b', 'k'): ('v', 128), ('b', 'v'): ('v', 192)}[(mat, part)]
    return base[0], base[1] + 4 * s
def Wfrag(mat, part, s):
    k, b = Wreg(mat, part, s); return vr(b, 4, k)
PARTOFF = {'q': 0, 'k': 1024, 'v': 2048}
PARTI = {'q': 0, 'k': 1, 'v': 2}

def f2u(x):
    import struct
    return '0x%08x' % struct.unpack('<I', struct.pack('<f', x))[0]

def gen(profile=False, force_fb=False):
    a = Asm()
    uid = [0]
    def lab(n):
        uid[0] += 1; return f'L_{n}_{uid[0]}'
    def stamp(i):
        if not profile: return
        a('s_memrealtime s[96:97]')
        a(f's_lshl_b32 s98, {sL}, 4\ns_add_u32 s98, s98, {i}')
        a('s_waitcnt lgkmcnt(0)')
        a('s_mov_b32 m0, s98')
        a(f'v_writelane_b32 {vStamp}, s96, m0')
    def poll(vaddr, sbase, vtmp):
        lp = lab('poll')
        a(f's_mov_b32 {sCnt}, 0')
        a(f'{lp}:')
        a(f'buffer_load_dword {vtmp}, {vaddr}, {WS}, {sbase} offen sc1')
        a(f's_add_u32 {sCnt}, {sCnt}, 1\ns_cmp_ge_u32 {sCnt}, 0x8000\ns_cbranch_scc1 L_end')
        a('s_waitcnt vmcnt(0)')
        a(f'v_cmp_ne_u32 vcc, {sTag}, {vtmp}')
        a(f's_cbranch_vccnz {lp}')
    def publish(sflag, vt1, vt2):
        sk = lab('nofl')
        a(f'v_mov_b32 {vt1}, {sTag}\nv_mov_b32 {vt2}, 0')
        a('s_waitcnt vmcnt(0) lgkmcnt(0)\ns_barrier')
        a(f's_cmp_lg_u32 {sW}, 0\ns_cbranch_scc1 {sk}')
        a('s_mov_b64 exec, 1')
        a(f'buffer_store_dword {vt1}, {vt2}, {WS}, {sflag} offen sc1')
        a('s_mov_b64 exec, -1')
        a(f'{sk}:')

    a(f'.amdgcn_target "amdgcn-amd-amdhsa--gfx950"\n.text\n.globl {KNAME}\n.p2align 8\n.type {KNAME},@function\n{KNAME}:')
    a('s_cmp_ge_u32 s2, 256\ns_cbranch_scc1 L_end')
    a('s_load_dwordx16 s[44:59], s[0:1], 0\ns_load_dwordx2 s[60:61], s[0:1], 64')
    a(f's_and_b32 s3, s2, 7\ns_lshr_b32 s4, s2, 3\ns_lshr_b32 s5, s4, 3\ns_lshl_b32 s3, s3, 2\ns_add_u32 {sG}, s3, s5\ns_and_b32 {sJ}, s4, 7')
    a(f'v_lshrrev_b32 v1, 6, v0\nv_readfirstlane_b32 {sW}, v1\nv_and_b32 v0, 63, v0')
    a(f's_mov_b32 {sL}, 0')
    if profile: a(f'v_mov_b32 {vStamp}, 0')
    a(f'v_lshlrev_b32 {vL16}, 4, v0')
    a(f'v_add_u32 {vT}, {T}, {vL16}')
    a('v_and_b32 v20, 15, v0\nv_lshrrev_b32 v21, 4, v0')
    a('v_lshlrev_b32 v22, 10, v20\nv_lshl_add_u32 v22, v21, 4, v22')
    a('v_lshrrev_b32 v23, 3, v0\nv_and_b32 v24, 7, v0\nv_and_b32 v25, 1, v21\nv_lshlrev_b32 v25, 1, v25\nv_xor_b32 v24, v24, v25')
    a('v_xor_b32 v25, 4, v24\nv_lshlrev_b32 v24, 4, v24\nv_lshlrev_b32 v25, 4, v25')
    a('v_mul_u32_u24 v26, 3072, v23\nv_add_u32 v27, v26, v25\nv_add_u32 v26, v26, v24\nv_add_u32 v27, 24576, v27')
    a('v_lshl_add_u32 v17, v23, 10, v24\nv_lshl_add_u32 v18, v23, 10, v25\nv_add_u32 v18, 8192, v18')
    a('s_waitcnt lgkmcnt(0)')
    a(f's_load_dword {sEp}, s[60:61], 0')
    for base, src, nb in ((8, 44, 0x200000), (12, 46, 0x180000), (16, 48, 0x80000), (20, 52, 0x180000), (24, 54, 0x80000), (28, 56, 0x200000), (32, 60, WS_BYTES + (0x40000 if profile else 0))):
        a(f's_mov_b32 s{base}, s{src}\ns_mov_b32 s{base+1}, s{src+1}\ns_mov_b32 s{base+2}, {hex(nb)}\ns_mov_b32 s{base+3}, 0x20000')
    stamp(0)
    a(f's_lshl_b32 s3, {sG}, 16\ns_lshl_b32 s4, {sW}, 14\ns_add_u32 s3, s3, s4\ns_add_u32 s4, s4, {T}')
    for s in range(16):
        a(f's_add_u32 m0, s4, {s*1024 - s*64}')
        a(f'buffer_load_dwordx4 v22, {X0}, s3 offen offset:{s*64} lds')
    a(f's_mul_i32 s5, {sW}, {32*3072}\ns_lshl_b32 s6, {sJ}, 7\ns_add_u32 s5, s5, s6')
    a(f's_lshl_b32 s6, {sW}, 12')
    chunks = [(m, p, kq) for m in 'ab' for p in 'kvq' for kq in range(4)]
    slot = lambda n: [0, 16384, 32768, 49152, S][n % 5]
    def wdma(n):
        m, p, kq = chunks[n]
        for i in range(4):
            if i % 2 == 0: a(f's_add_u32 s7, s5, {(128*kq + 8*i)*3072 + PARTOFF[p]}')
            a(f's_add_u32 m0, s6, {slot(n) + i*1024}')
            a(f'buffer_load_dwordx4 {"v26" if i % 2 == 0 else "v27"}, {WA if m == "a" else WB}, s7 offen lds')
    for n in range(5): wdma(n)
    a(f'v_lshlrev_b32 {vRSa}, 4, v21\nv_lshlrev_b32 {vRSb}, 2, v20')
    a(f's_mul_i32 s3, {sW}, 192\ns_add_u32 s3, s3, {CS}')
    a(f'v_add_u32 {vCSa}, s3, {vRSa}\nv_add_u32 {vCSb}, s3, {vRSb}')
    a(f'v_add_u32 {vRSa}, {STAT}, {vRSa}\nv_add_u32 {vRSb}, {STAT}, {vRSb}')
    a(f's_lshr_b32 s3, {sW}, 1\ns_lshl_b32 s4, {sJ}, 1\ns_add_u32 s3, s3, s4\ns_lshl_b32 s3, s3, 10\ns_and_b32 s4, {sW}, 1\ns_lshl_b32 s4, s4, 9\ns_add_u32 s3, s3, s4')
    a(f'v_and_b32 v28, 1, v21\nv_lshlrev_b32 v28, 14, v28\nv_lshrrev_b32 v29, 5, v0\nv_lshl_add_u32 v28, v29, 8, v28\nv_lshl_add_u32 v28, v20, 4, v28\nv_add_u32 {vXo}, s3, v28')
    a(f'v_and_b32 {vPG}, 7, v0\nv_lshlrev_b32 {vPG}, 7, {vPG}')
    L2E = 1.4426950408889634
    a(f'v_mov_b32 {vE6}, {f2u(1e-6)}\nv_mov_b32 {vL2E}, {f2u(L2E)}\nv_mov_b32 {vNE}, {f2u(-1e-6*L2E)}')
    for i in range(4): a(f'v_mov_b32 v{ONES+i}, 0x3f803f80')
    a(f's_lshl_b32 {sGb}, {sG}, 20\ns_add_u32 {sGb}, {sGb}, {G0}')
    a('v_and_b32 v28, 31, v0\nv_lshlrev_b32 v29, 2, v29\nv_sub_u32 v28, v28, v29')
    for i in range(16):
        a(f'v_cmp_le_i32 s[{MASK0+2*i}:{MASK0+2*i+1}], {8*(i>>2) + (i&3)}, v28')
    a('v_lshrrev_b32 v28, 2, v20\nv_and_b32 v29, 3, v20')
    a('v_lshl_add_u32 v30, v21, 3, v28\nv_lshlrev_b32 v30, 7, v30\nv_lshl_add_u32 v30, v29, 3, v30')
    a(f'v_lshrrev_b32 v31, 1, v28\nv_and_b32 v32, 1, v21\nv_lshl_or_b32 v31, v32, 1, v31\nv_xor_b32 v31, {sW}, v31\nv_lshl_add_u32 v30, v31, 5, v30')
    a(f'v_add_u32 v33, {S}, v30')
    a('v_lshrrev_b32 v31, 1, v21\nv_lshlrev_b32 v31, 4, v31\nv_lshl_add_u32 v31, v32, 2, v31\nv_add_u32 v31, v31, v28\nv_lshlrev_b32 v31, 7, v31')
    a(f'v_and_b32 v28, 2, v28\nv_xor_b32 v29, v29, v28\nv_lshl_add_u32 v31, v29, 4, v31\ns_lshl_b32 s3, {sW}, 14\nv_add_u32 v19, s3, v31')
    a(f's_waitcnt lgkmcnt(0)\ns_add_u32 {sEp}, {sEp}, 1\ns_mul_i32 {sTag}, {sEp}, 0x9E3779B1')

    def stats_finalize(vs, vq, vaddr, t1, t2):
        a(f'v_mul_f32 {vs}, {f2u(1/512)}, {vs}')
        a(f'v_mul_f32 {t1}, {vs}, {vs}')
        a(f'v_fmamk_f32 {vq}, {vq}, {f2u(1/512)}, {vE6}')
        a(f'v_sub_f32 {vq}, {vq}, {t1}')
        a(f'v_max_f32 {vq}, {vq}, {vE6}')
        a(f'v_add_f32 {vq}, {f2u(1e-5 - 1e-6)}, {vq}')
        a(f'v_rsq_f32 {t1}, {vq}')
        a(f'v_mul_f32 {t2}, {vs}, {t1}\nv_sub_f32 {t2}, 0, {t2}')
        a(f'ds_write_b32 {vaddr}, {t1}\nds_write_b32 {vaddr}, {t2} offset:256')
    def quad_reduce(vs, vq, t):
        a(f'v_permlane32_swap_b32 {vs}, {vq}\nv_add_f32 {vs}, {vs}, {vq}')
        a(f'v_mov_b32 {t}, {vs}\nv_permlane16_swap_b32 {vs}, {t}\nv_add_f32 {vs}, {vs}, {t}')
    a('s_waitcnt vmcnt(20)')
    a(f's_lshl_b32 s3, {sW}, 14\nv_add_u32 v28, s3, {vT}')
    for s in range(16): a(f'ds_read_b128 {vr(40+4*s, 4)}, v28 offset:{s*1024}')
    a('v_mov_b32 v34, 0\nv_mov_b32 v35, 0\nv_mov_b32 v36, 0\nv_mov_b32 v37, 0')
    for r in range(64):
        a(f'v_dot2c_f32_bf16 v{34 + (r&1)}, v{40+r}, v{ONES}')
        a(f'v_dot2c_f32_bf16 v{36 + (r&1)}, v{40+r}, v{40+r}')
    a('v_add_f32 v34, v34, v35\nv_add_f32 v36, v36, v37')
    quad_reduce('v34', 'v36', 'v35')
    a('v_mov_b32 v36, v34\nv_permlane32_swap_b32 v34, v36')
    a(f's_lshl_b32 s3, {sW}, 6\nv_add_u32 v28, s3, {vRSb}')
    stats_finalize('v34', 'v36', 'v28', 'v35', 'v37')
    NCH = len(chunks)
    issued = 5
    for n in range(NCH):
        a(f's_waitcnt vmcnt({4*(issued - n - 1)}) lgkmcnt(0)\ns_barrier')
        if n >= 1 and issued < NCH:
            wdma(issued); issued += 1
        m, p, kq = chunks[n]
        for s2 in range(4):
            k, b = Wreg(m, p, 4*kq + s2)
            for hi in range(2):
                if slot(n) < 65536: a(f'ds_read_b64_tr_b16 {vr(b+2*hi, 2, k)}, v30 offset:{slot(n) + s2*4096 + hi*512}')
                else: a(f'ds_read_b64_tr_b16 {vr(b+2*hi, 2, k)}, v33 offset:{s2*4096 + hi*512}')
        if kq == 3:
            for s in range(16):
                a(f'v_mfma_f32_16x16x32_bf16 v[40:43], {vr(ONES,4)}, {Wfrag(m,p,s)}, {"0" if s == 0 else "v[40:43]"}')
            a(f'ds_write_b32 {vCSb}, v40 offset:{(0 if m == "a" else 768) + PARTI[p]*64}')
    a('s_waitcnt vmcnt(0) lgkmcnt(0)\ns_barrier')
    stamp(1)

    a('L_loop:')
    def wo_dma(srd):
        a(f's_lshl_b32 s3, {sW}, 17\ns_lshl_b32 s4, {sJ}, 7\ns_add_u32 s3, s3, s4\ns_lshl_b32 s4, {sW}, 14')
        for i in range(16):
            if i % 2 == 0 and i: a(f's_add_u32 s3, s3, 16384')
            a(f's_add_u32 m0, s4, {WO + i*1024}')
            a(f'buffer_load_dwordx4 {"v17" if i % 2 == 0 else "v18"}, {srd}, s3 offen lds')
    def wo_convert(base):
        for s2 in range(4):
            for t in range(4):
                for hi in range(2):
                    a(f'ds_read_b64_tr_b16 {vr(base + 16*s2 + 4*t + 2*hi, 2)}, v19 offset:{s2*4096 + hi*1024 + ((t>>1)^hi)*64 + (t&1)*8}')
        a(f's_lshl_b32 s3, {sW}, 14\nv_add_u32 v{base+64}, s3, {vL16}')
        a('s_waitcnt lgkmcnt(0)')
        for i in range(16):
            a(f'ds_write_b128 v{base+64}, {vr(base + 4*i, 4)} offset:{WO + i*1024}')
    XR = 68
    def gemm_pass(mat, tiles, parts, acc, swap):
        reads = [(t, s) for s in range(16) for t in tiles]
        nring = 8; pre = 6
        rd = lambda n: f'ds_read_b128 {vr(XR + 4*(n % nring), 4)}, {vT} offset:{(reads[n][0]*16 + reads[n][1])*1024}'
        for n in range(pre): a(rd(n))
        for n, (t, s) in enumerate(reads):
            x = vr(XR + 4*(n % nring), 4)
            for p in parts:
                d = vr(acc[(p, t)], 4); w = Wfrag(mat, p, s)
                A, B = (w, x) if swap[p] else (x, w)
                a(f'v_mfma_f32_16x16x32_bf16 {d}, {A}, {B}, {"0" if s == 0 else d}')
            if n + pre < len(reads): a(rd(n + pre))
    def phi(r, rs, b, t):
        a(f'v_fma_f32 {r}, {r}, {rs}, {b}')
        a(f'v_fma_f32 {t}, {r}, {vL2E}, {vNE}')
        a(f'v_exp_f32_e64 {t}, {t} clamp')
        a(f'v_max_f32 {r}, {r}, {vE6}')
        a(f'v_add_f32 {r}, {r}, {t}')
    def epi_d(acc, t, cs, dst, do_phi, tmp):
        for r in range(4):
            if do_phi:
                a(f'v_fma_f32 v{tmp+8}, v{tmp+4+r}, {cs}, {vE6}')
                phi(f'v{acc+r}', f'v{tmp+r}', f'v{tmp+8}', f'v{tmp+9}')
            else:
                a(f'v_mul_f32 v{tmp+8}, v{tmp+4+r}, {cs}')
                a(f'v_fma_f32 v{acc+r}, v{acc+r}, v{tmp+r}, v{tmp+8}')
        a(f'v_cvt_pk_bf16_f32 v{dst}, v{acc}, v{acc+1}\nv_cvt_pk_bf16_f32 v{dst+1}, v{acc+2}, v{acc+3}')
    def epi_t(acc, rs, mr, cs4, dst, do_phi, tmp):
        for r in range(4):
            if do_phi:
                a(f'v_fma_f32 v{tmp}, {mr}, v{cs4+r}, {vE6}')
                phi(f'v{acc+r}', rs, f'v{tmp}', f'v{tmp+1}')
            else:
                a(f'v_mul_f32 v{tmp}, {mr}, v{cs4+r}')
                a(f'v_fma_f32 v{acc+r}, v{acc+r}, {rs}, v{tmp}')
        a(f'v_cvt_pk_bf16_f32 v{dst}, v{acc}, v{acc+1}\nv_cvt_pk_bf16_f32 v{dst+1}, v{acc+2}, v{acc+3}')
    acc = {('k', 0): 20, ('v', 0): 24, ('k', 1): 28, ('v', 1): 32, ('k', 2): 36, ('v', 2): 40, ('k', 3): 44, ('v', 3): 48,
           ('q', 0): 52, ('q', 1): 56, ('q', 2): 60, ('q', 3): 64}
    OA = [28, 44]
    QF = [20, 24]

    a(f's_bitcmp1_b32 {sL}, 0\ns_cbranch_scc1 L_B')
    wo_dma(WOA)
    sw = {'k': False, 'v': False, 'q': True}
    gemm_pass('a', [0, 1], 'kv', acc, sw)
    gemm_pass('a', [2, 3], 'kv', acc, sw)
    stamp(2)
    a(f'ds_read_b32 v100, {vCSb} offset:{64}\nds_read_b32 v101, {vCSb} offset:{128}')
    for t in range(4):
        a(f'ds_read_b128 v[104:107], {vRSa} offset:{t*64}\nds_read_b128 v[108:111], {vRSa} offset:{256 + t*64}')
        epi_d(acc[('k', t)], t, 'v100', 68 + 2*t, True, 104)
        epi_d(acc[('v', t)], t, 'v101', 76 + 2*t, False, 104)
    a(f'v_mfma_f32_16x16x32_bf16 v[84:87], v[68:71], v[76:79], 0')
    a(f'v_mfma_f32_16x16x32_bf16 v[88:91], v[68:71], {vr(ONES,4)}, 0')
    a(f'v_mfma_f32_16x16x32_bf16 v[84:87], v[72:75], v[80:83], v[84:87]')
    a(f'v_mfma_f32_16x16x32_bf16 v[88:91], v[72:75], {vr(ONES,4)}, v[88:91]')
    a(f's_lshr_b32 s3, {sL}, 1\ns_mul_i32 s4, s3, {KVA_I}\ns_lshl_b32 s5, {sJ}, 2\ns_add_u32 s5, s5, {sW}\ns_mul_i32 s5, s5, {32*640}\ns_add_u32 s4, s4, s5\ns_add_u32 s4, s4, {KVA0}')
    a(f's_lshl_b32 s3, s3, 15\ns_lshl_b32 s5, {sJ}, 12\ns_add_u32 s3, s3, s5\ns_add_u32 s6, s3, {FA0}')
    a(f's_lshl_b32 s3, {sG}, 7\ns_add_u32 s7, s6, s3')
    a(f's_mul_i32 s3, {sG}, 640\ns_add_u32 s5, s4, s3')
    a('v_lshrrev_b32 v97, 5, v0\nv_and_b32 v98, 15, v0\nv_lshlrev_b32 v98, 4, v98\nv_lshl_add_u32 v96, v97, 8, v98')
    a('v_lshlrev_b32 v97, 4, v97\nv_add_u32 v97, 512, v97\nv_and_b32 v99, 16, v0\nv_cmp_eq_u32 vcc, 0, v99\nv_cndmask_b32 v96, v97, v96, vcc')
    a('v_cvt_pk_bf16_f32 v92, v84, v85\nv_cvt_pk_bf16_f32 v93, v86, v87\nv_cvt_pk_bf16_f32 v94, v88, v89\nv_cvt_pk_bf16_f32 v95, v90, v91')
    a('v_permlane16_swap_b32 v92, v94\nv_permlane16_swap_b32 v93, v95')
    a('s_mov_b32 exec_lo, 0x1ffff\ns_mov_b32 exec_hi, 0x1ffff')
    a(f'buffer_store_dwordx4 v[92:95], v96, {WS}, s5 offen sc1')
    a('s_mov_b64 exec, -1')
    publish('s7', 'v100', 'v101')
    stamp(3)
    gemm_pass('a', [0, 1, 2, 3], 'q', acc, sw)
    a(f'ds_read_b128 v[100:103], {vCSa} offset:0')
    for t in range(4):
        a(f'ds_read_b32 v104, {vRSb} offset:{t*64}\nds_read_b32 v105, {vRSb} offset:{256 + t*64}')
        epi_t(acc[('q', t)], 'v104', 'v105', 100, 20 + 2*t, True, 106)
    for u in range(2):
        a(f'v_permlane16_swap_b32 v{QF[u]}, v{QF[u]+2}\nv_permlane16_swap_b32 v{QF[u]+1}, v{QF[u]+3}')
    wo_convert(28)
    a('v_and_b32 v104, 15, v0\nv_lshrrev_b32 v105, 1, v0\nv_and_b32 v105, 8, v105\nv_sub_u32 v104, v104, v105')
    a('v_mov_b32 v106, 0x3f80\nv_mov_b32 v107, 0x3f800000')
    for i in range(4):
        a(f'v_cmp_eq_u32 vcc, {2*i}, v104\nv_cndmask_b32 v{100+i}, 0, v106, vcc')
        a(f'v_cmp_eq_u32 vcc, {2*i+1}, v104\nv_cndmask_b32 v{100+i}, v{100+i}, v107, vcc')
    a('v_lshrrev_b32 v106, 5, v0\nv_mul_u32_u24 v106, 640, v106\nv_and_b32 v107, 31, v0\nv_lshl_add_u32 v104, v107, 4, v106')
    a('v_and_b32 v108, 15, v0\nv_mul_u32_u24 v108, 1280, v108\nv_add_u32 v105, v106, v108\nv_and_b32 v108, 16, v0\nv_add3_u32 v105, v105, v108, 64\nv_add_u32 v105, 448, v105')
    a('v_lshlrev_b32 v106, 7, v107')
    stamp(4)
    poll('v106', 's6', 'v107')
    stamp(5)
    a(f'buffer_load_dwordx4 v[108:111], v105, {WS}, s4 offen sc1')
    for i in range(16):
        if i % 3 == 0 and i: a(f's_add_u32 s4, s4, {3*1280}')
        a(f'buffer_load_dwordx4 {vr(28+4*i,4)}, v104, {WS}, s4 offen offset:{(i%3)*1280} sc1')
    a('v_mfma_f32_16x16x32_bf16 v[116:119], v[100:103], v[108:111], 0')
    for sh in (8, 4, 2, 1):
        for r in range(4):
            a(f'v_add_f32_dpp v{116+r}, v{116+r}, v{116+r} row_ror:{sh} row_mask:0xf bank_mask:0xf')
    for i in range(16):
        a(f'v_mfma_f32_16x16x32_bf16 v[112:115], v[100:103], {vr(28+4*i,4)}, {"0" if i == 0 else "v[112:115]"}')
    a('v_cvt_pk_bf16_f32 v122, v116, v117\nv_cvt_pk_bf16_f32 v123, v118, v119')
    a('v_cvt_pk_bf16_f32 v120, v112, v113\nv_cvt_pk_bf16_f32 v121, v114, v115')
    a('v_permlane16_swap_b32 v120, v122\nv_permlane16_swap_b32 v121, v123')
    for u in range(2):
        a(f'v_mfma_f32_32x32x16_bf16 {vr(OA[u],16)}, v[120:123], {vr(QF[u],4)}, 0')
    for u in range(2):
        a(f'v_add_f32 v{OA[u]+8}, v{OA[u]+8}, {vE6}')
    a('s_branch L_common')

    a('L_B:')
    wo_dma(WOB)
    sw = {'k': True, 'v': False, 'q': True}
    gemm_pass('b', [0, 1], 'kv', acc, sw)
    gemm_pass('b', [2, 3], 'kv', acc, sw)
    stamp(2)
    a(f'ds_read_b128 v[100:103], {vCSa} offset:{768+64}\nds_read_b32 v116, {vCSb} offset:{768+128}')
    for t in range(4):
        a(f'ds_read_b128 v[104:107], {vRSa} offset:{t*64}\nds_read_b128 v[108:111], {vRSa} offset:{256 + t*64}')
        a(f'ds_read_b32 v114, {vRSb} offset:{t*64}\nds_read_b32 v115, {vRSb} offset:{256 + t*64}')
        epi_d(acc[('v', t)], t, 'v116', 76 + 2*t, False, 104)
        epi_t(acc[('k', t)], 'v114', 'v115', 100, 68 + 2*t, False, 112)
    for u in range(2):
        a(f'v_permlane16_swap_b32 v{68+4*u}, v{70+4*u}\nv_permlane16_swap_b32 v{69+4*u}, v{71+4*u}')
        a(f'v_permlane32_swap_b32 v{76+4*u}, v{78+4*u}\nv_permlane32_swap_b32 v{77+4*u}, v{79+4*u}')
    a(f's_lshr_b32 s3, {sL}, 1\ns_lshl_b32 s4, s3, 17\ns_lshl_b32 s5, {sJ}, 2\ns_add_u32 s5, s5, {sW}\ns_lshl_b32 s5, s5, 12\ns_add_u32 s4, s4, s5\ns_add_u32 s4, s4, {oKVB}')
    a(f's_lshl_b32 s3, s3, 10\ns_lshl_b32 s5, {sJ}, 7\ns_add_u32 s3, s3, s5\ns_add_u32 s6, s3, {oFL + 7*0x400}')
    a(f's_add_u32 s5, s4, {sGb}\ns_add_u32 s7, s6, {sGb}')
    a(f's_mul_i32 s3, {sW}, {2*TS}\ns_add_u32 s3, s3, {OWN}\nv_add_u32 v100, s3, {vL16}')
    for u in range(2):
        a(f'buffer_store_dwordx4 {vr(68+4*u,4)}, {vL16}, {WS}, s5 offen offset:{u*2048} sc1')
        a(f'buffer_store_dwordx4 {vr(76+4*u,4)}, {vL16}, {WS}, s5 offen offset:{u*2048+1024} sc1')
        a(f'ds_write_b128 v100, {vr(68+4*u,4)} offset:{u*TS}\nds_write_b128 v100, {vr(76+4*u,4)} offset:{u*TS+1024}')
    publish('s7', 'v101', 'v102')
    stamp(3)
    gemm_pass('b', [0, 1, 2, 3], 'q', acc, sw)
    a(f'ds_read_b128 v[100:103], {vCSa} offset:768')
    QS = 0.25 * L2E
    for t in range(4):
        a(f'ds_read_b32 v104, {vRSb} offset:{t*64}\nds_read_b32 v105, {vRSb} offset:{256 + t*64}')
        a(f'v_mul_f32 v104, {f2u(QS)}, v104\nv_mul_f32 v105, {f2u(QS)}, v105')
        epi_t(acc[('q', t)], 'v104', 'v105', 100, 20 + 2*t, False, 106)
    for u in range(2):
        a(f'v_permlane16_swap_b32 v{QF[u]}, v{QF[u]+2}\nv_permlane16_swap_b32 v{QF[u]+1}, v{QF[u]+3}')
    wo_convert(28)
    a('s_waitcnt lgkmcnt(0)\ns_barrier')
    a(f's_mul_i32 s44, {sW}, {8*TS}\ns_add_u32 s44, s44, {KVN}')
    a(f's_mul_i32 s45, {sW}, {2*TS}\ns_add_u32 s45, s45, {OWN - 8*TS}')
    a(f'v_mov_b32 v100, s44\nv_mov_b32 v101, s45\nv_cmp_gt_u32 vcc, 8, v0\nv_cndmask_b32 v100, v101, v100, vcc')
    a(f'v_mul_u32_u24 v101, {TS}, v0\nv_add_u32 v100, v100, v101')
    a(f's_lshl_b32 s3, {sG}, 1\ns_sub_i32 s46, 8, s3')
    a(f'v_cmp_le_i32 vcc, s46, v0\nv_cndmask_b32 v104, 0, v{ONES}, vcc\nv_mov_b32 v105, v104\nv_mov_b32 v106, v104\nv_mov_b32 v107, v104')
    a('s_mov_b64 exec, 0x3ff\nds_write_b128 v100, v[104:107] offset:2048\ns_mov_b64 exec, -1')
    vK, vVa, vVb = 'v120', 'v121', 'v122'
    a('v_lshrrev_b32 v100, 5, v0\nv_and_b32 v101, 15, v0\nv_lshlrev_b32 v101, 4, v101\nv_lshl_add_u32 v100, v100, 8, v101\nv_add_u32 v100, 1024, v100\nv_add_u32 v101, 512, v100')
    a(f'v_mov_b32 v102, 2048\nv_and_b32 v103, 16, v0\nv_cmp_eq_u32 vcc, 0, v103\nv_cndmask_b32 v100, v102, v100, vcc\nv_cndmask_b32 v101, v102, v101, vcc')
    a(f'v_add_u32 {vK}, s45, {vL16}\nv_add_u32 {vVa}, s45, v100\nv_add_u32 {vVb}, s45, v101')
    CB, SB, KB, VB = 60, [76, 92], 108, 112
    NEG = f2u(-1e30)
    def rdK(kt): return f'ds_read_b128 {vr(KB,4)}, {vK} offset:{kt*TS}'
    def rdV(kt): return [f'ds_read_b128 {vr(VB,4)}, {vVa} offset:{kt*TS}', f'ds_read_b128 {vr(VB+4,4)}, {vVb} offset:{kt*TS}']
    def qk(u, sb, c): return f'v_mfma_f32_32x32x16_bf16 {vr(sb,16)}, {vr(KB,4)}, {vr(QF[u],4)}, {c}'
    def pv(u, sb, h, init=False): return f'v_mfma_f32_32x32x16_bf16 {vr(OA[u],16)}, {vr(VB+4*h,4)}, {vr(sb+8*h,4)}, {"0" if init else vr(OA[u],16)}'
    def expcvt(sb, h):
        o = [f'v_exp_f32 v{sb+8*h+i}, v{sb+8*h+i}' for i in range(8)]
        c = [f'v_cvt_pk_bf16_f32 v{sb+8*h+i}, v{sb+8*h+2*i}, v{sb+8*h+2*i+1}' for i in range(4)]
        return o, c
    vM = ['v123', 'v124']
    a(f'v_mov_b32 v125, {NEG}')
    for u in range(2):
        kt = 8 + u; sb = SB[u]
        a(rdK(kt)); a.extend(rdV(kt))
        a(qk(u, sb, '0'))
        for i in range(16): a(f'v_cndmask_b32 v{sb+i}, v125, v{sb+i}, s[{MASK0+2*i}:{MASK0+2*i+1}]')
        a(f'v_max_f32 {vM[u]}, v{sb}, v{sb+1}')
        for i in range(7): a(f'v_max3_f32 {vM[u]}, {vM[u]}, v{sb+2+2*i}, v{sb+3+2*i}')
        a(f'v_mov_b32 v126, {vM[u]}\nv_permlane32_swap_b32 {vM[u]}, v126\nv_max_f32 {vM[u]}, {vM[u]}, v126')
        if force_fb: a(f'v_subrev_f32 {vM[u]}, {f2u(200.0)}, {vM[u]}')
        for i in range(16): a(f'v_sub_f32 v{sb+i}, v{sb+i}, {vM[u]}')
        for h in range(2):
            e, c = expcvt(sb, h); a.extend(e); a.extend(c); a(pv(u, sb, h, init=(h == 0)))
    def fillC(u):
        for i in range(16): a(f'v_sub_f32 v{CB+i}, 0, {vM[u]}')
    def run_tiles(u, tiles, far):
        C = vr(CB, 16)
        a(rdK(tiles[0])); a.extend(rdV(tiles[0]))
        a(qk(u, SB[0], C))
        if len(tiles) > 1: a(rdK(tiles[1]))
        pend = []
        for n, kt in enumerate(tiles):
            sb = SB[n % 2]
            e0, c0 = expcvt(sb, 0); e1, c1 = expcvt(sb, 1)
            if n == 0 and len(tiles) > 1:
                a(qk(u, SB[1], C))
                if len(tiles) > 2: a(rdK(tiles[2]))
            if kt == far:
                for i in range(16): a(f'v_cndmask_b32 v{sb+i}, v{sb+i}, v125, s[{MASK0+2*i}:{MASK0+2*i+1}]')
            a.extend(e0[:2]); a.extend(pend); pend = []
            a.extend(e0[2:]); a.extend(e1[:1]); a.extend(c0); a.extend(e1[1:3])
            a(pv(u, sb, 0))
            a.extend(e1[3:]); a.extend(c1)
            pend = [pv(u, sb, 1)]
            if n + 1 < len(tiles): pend += rdV(tiles[n+1])
            if n + 2 < len(tiles):
                pend.append(qk(u, sb, C))
                if n + 3 < len(tiles): pend.append(rdK(tiles[n+3]))
        a.extend(pend)
    fillC(1)
    run_tiles(1, [8], None)
    a(f's_sub_u32 s3, s44, s45\nv_add_u32 {vK}, s3, {vK}\nv_add_u32 {vVa}, s3, {vVa}\nv_add_u32 {vVb}, s3, {vVb}')
    a(f'v_and_b32 v126, 3, v0\nv_sub_u32 v126, {sG}, v126\nv_subrev_u32 v126, 1, v126\nv_cmp_gt_i32 vcc, 0, v126\nv_mov_b32 v127, {sG}\nv_cndmask_b32 v126, v126, v127, vcc\nv_lshlrev_b32 v126, 20, v126')
    a(f's_add_u32 s6, s6, {G0}')
    stamp(4)
    poll('v126', 's6', 'v127')
    stamp(5)
    for i in range(1, 5):
        a(f's_cmp_ge_u32 {sG}, {i}\ns_cselect_b32 s3, 0, 0x40000000\ns_cselect_b32 s7, {i << 20}, 0\ns_sub_u32 s7, s5, s7\nv_add_u32 v126, s3, {vL16}')
        for u in range(2):
            kt = 8 - 2*i + u
            a(f's_add_u32 m0, s44, {kt*TS - u*2048}')
            a(f'buffer_load_dwordx4 v126, {WS}, s7 offen offset:{u*2048} sc1 lds')
            a(f'buffer_load_dwordx4 v126, {WS}, s7 offen offset:{u*2048+1024} sc1 lds')
    a('s_waitcnt vmcnt(0)')
    stamp(6)
    run_tiles(1, [7, 6, 5, 4, 3, 2, 1], 1)
    fillC(0)
    run_tiles(0, [7, 6, 5, 4, 3, 2, 1, 0], 0)
    for u in range(2):
        o = OA[u]
        a(f'v_add_f32 v126, abs(v{o}), v{o+8}')
        for i in range(1, 8): a(f'v_add_f32 v126, abs(v{o+i}), v126')
        a(f'v_cmp_nlt_f32 vcc, v126, abs(v125)' if u == 0 else f'v_cmp_nlt_f32 s[46:47], v126, abs(v125)')
        if u == 0: a('s_mov_b64 s[48:49], vcc')
    a('s_or_b64 s[46:47], s[46:47], s[48:49]\ns_cbranch_scc1 L_fallback')
    a('L_fbdone:')

    a('L_common:')
    stamp(7)
    a(f's_lshl_b32 s3, {sL}, 16\ns_add_u32 s4, s3, {sGb}')
    a(f's_lshl_b32 s3, {sL}, 10\ns_add_u32 s3, s3, {sGb}\ns_add_u32 s6, s3, {oFL}')
    a(f's_lshl_b32 s3, {sJ}, 7\ns_add_u32 s7, s6, s3\ns_add_u32 s5, s4, 32768')
    for u in range(2):
        o = OA[u]
        a(f'v_rcp_f32 v{o+8}, v{o+8}')
        for i in range(8): a(f'v_mul_f32 v{o+i}, v{o+i}, v{o+8}')
        for i in range(4): a(f'v_cvt_pk_bf16_f32 v{o+10+i}, v{o+2*i}, v{o+2*i+1}')
        a(f'buffer_store_dwordx4 {vr(o+10,4)}, {vXo}, {WS}, {"s4" if u == 0 else "s5"} offen sc1')
    publish('s7', 'v100', 'v101')
    stamp(8)
    a(f'v_and_b32 v108, 15, v0\nv_lshlrev_b32 v108, 10, v108\nv_lshrrev_b32 v109, 4, v0\nv_lshl_add_u32 v108, v109, 4, v108')
    a(f's_lshl_b32 s3, {sG}, 16\ns_lshl_b32 s5, {sW}, 14\ns_add_u32 s3, s3, s5\ns_lshl_b32 s7, {sJ}, 7\ns_add_u32 s50, s3, s7')
    a(f's_lshl_b32 s7, {sJ}, 11\ns_add_u32 s5, s5, s7\ns_add_u32 s51, s5, s4\ns_add_u32 s51, s51, {oXX}')
    a(f's_cmp_lg_u32 {sL}, 0\ns_cbranch_scc1 L_res1')
    a(f'buffer_load_dwordx4 v[100:103], v108, {X0}, s50 offen\nbuffer_load_dwordx4 v[104:107], v108, {X0}, s50 offen offset:64')
    a('s_branch L_res2\nL_res1:')
    a(f's_sub_u32 s3, s51, 0x10000')
    a(f'buffer_load_dwordx4 v[100:103], {vL16}, {WS}, s3 offen sc1\nbuffer_load_dwordx4 v[104:107], {vL16}, {WS}, s3 offen offset:1024 sc1')
    a('L_res2:\ns_waitcnt vmcnt(0)')
    for i in range(8):
        a(f'v_lshlrev_b32 v{20+2*i}, 16, v{100+i}\nv_and_b32 v{21+2*i}, 0xffff0000, v{100+i}')
    WR = 100; nring = 6
    rdw = lambda n: f'ds_read_b128 {vr(WR + 4*(n % nring), 4)}, {vL16} offset:{WO + n*1024}'
    a(f'v_mov_b32 v126, v108')
    for n in range(nring - 1): a(rdw(n))
    a(f's_lshl_b32 s3, {sW}, 14\ns_add_u32 s5, s4, s3')
    poll(vPG, 's6', 'v127')
    stamp(9)
    for s in range(16):
        if s % 4 == 0 and s: a('s_add_u32 s5, s5, 4096')
        a(f'buffer_load_dwordx4 {vr(36+4*s,4)}, {vL16}, {WS}, s5 offen offset:{(s%4)*1024} sc1')
    for n in range(64):
        s, t = n >> 2, n & 3
        d = vr(20+4*t, 4)
        a(f'v_mfma_f32_16x16x32_bf16 {d}, {vr(WR + 4*(n % nring), 4)}, {vr(36+4*s,4)}, {d}')
        if n + nring - 1 < 64: a(rdw(n + nring - 1))
    for i in range(8): a(f'v_cvt_pk_bf16_f32 v{36+i}, v{20+2*i}, v{21+2*i}')
    stamp(10)
    a(f's_cmp_eq_u32 {sL}, 3\ns_cbranch_scc1 L_final')
    a(f'buffer_store_dwordx4 v[36:39], {vL16}, {WS}, s51 offen sc1\nbuffer_store_dwordx4 v[40:43], {vL16}, {WS}, s51 offen offset:1024 sc1')
    a('v_mov_b32 v44, 0\nv_mov_b32 v45, 0\nv_mov_b32 v46, 0\nv_mov_b32 v47, 0')
    for r in range(8):
        a(f'v_dot2c_f32_bf16 v{44 + (r&1)}, v{36+r}, v{ONES}')
        a(f'v_dot2c_f32_bf16 v{46 + (r&1)}, v{36+r}, v{36+r}')
    a('v_add_f32 v44, v44, v45\nv_add_f32 v46, v46, v47')
    quad_reduce('v44', 'v46', 'v45')
    a(f's_lshl_b32 s3, {sL}, 12\ns_add_u32 s3, s3, {sGb}\ns_add_u32 s52, s3, {oST}')
    a(f's_lshl_b32 s3, {sJ}, 9\ns_lshl_b32 s5, {sW}, 7\ns_add_u32 s3, s3, s5\ns_add_u32 s3, s3, s52')
    a('v_and_b32 v48, 15, v0\nv_lshlrev_b32 v48, 3, v48\nv_lshrrev_b32 v49, 5, v0\nv_lshl_add_u32 v48, v49, 2, v48')
    a('s_mov_b32 exec_lo, 0xffff\ns_mov_b32 exec_hi, 0xffff')
    a(f'buffer_store_dword v44, v48, {WS}, s3 offen sc1')
    a('s_mov_b64 exec, -1')
    a(f's_add_u32 s6, s6, {4*0x400}\ns_lshl_b32 s3, {sJ}, 7\ns_add_u32 s7, s6, s3')
    publish('s7', 'v100', 'v101')
    stamp(11)
    a(f's_lshl_b32 s3, {sW}, 13\ns_add_u32 s4, s4, {oXX}\ns_add_u32 s4, s4, s3\ns_add_u32 s5, s3, {T}')
    a('v_lshlrev_b32 v48, 3, v0')
    poll(vPG, 's6', 'v127')
    stamp(12)
    for jj in range(8): a(f'buffer_load_dwordx2 {vr(100+2*jj,2)}, v48, {WS}, s52 offen offset:{jj*512} sc1')
    for hf in range(2):
        for q in range(2):
            off = hf*32768 + q*4096
            a(f's_add_u32 m0, s5, {off}\ns_add_u32 s3, s4, {off}')
            for i in range(4): a(f'buffer_load_dwordx4 {vL16}, {WS}, s3 offen offset:{i*1024} sc1 lds')
    for jj in range(1, 8): a(f'v_add_f32 v100, v100, v{100+2*jj}\nv_add_f32 v101, v101, v{101+2*jj}')
    a(f'v_lshlrev_b32 v48, 2, v0\nv_add_u32 v48, {STAT}, v48')
    stats_finalize('v100', 'v101', 'v48', 'v102', 'v103')
    a('s_waitcnt vmcnt(0) lgkmcnt(0)\ns_barrier')
    stamp(13)
    a(f's_add_u32 {sL}, {sL}, 1\ns_branch L_loop')

    a('L_final:')
    a(f'buffer_store_dwordx4 v[36:39], v126, {OUT}, s50 offen\nbuffer_store_dwordx4 v[40:43], v126, {OUT}, s50 offen offset:64')
    a(f's_or_b32 s3, s2, {sW}\ns_cmp_lg_u32 s3, 0\ns_cbranch_scc1 L_noep')
    a(f'v_mov_b32 v44, {sEp}\nv_mov_b32 v45, 0\ns_mov_b64 exec, 1\nbuffer_store_dword v44, v45, {WS}, 0 offen\ns_mov_b64 exec, -1')
    a('L_noep:')
    if profile:
        a('s_waitcnt vmcnt(0)')
        stamp(11)
        a(f's_lshl_b32 s3, s2, 2\ns_add_u32 s3, s3, {sW}\ns_lshl_b32 s3, s3, 8\ns_add_u32 s3, s3, {STAMP0}\nv_lshlrev_b32 v45, 2, v0')
        a(f'buffer_store_dword {vStamp}, v45, {WS}, s3 offen')
    a('L_end:\ns_endpgm')

    a('L_fallback:')
    a('s_nop 15')
    a(f's_lshl_b32 s3, {sG}, 1\ns_sub_i32 s46, 8, s3\ns_max_i32 s46, s46, 0')
    a('s_sub_u32 s47, s45, s44')
    for u in range(2):
        sb = SB[0]
        def tile_addr():
            a(f's_mul_i32 s3, s48, {TS}\ns_cmp_ge_u32 s48, 8\ns_cselect_b32 s7, s47, 0\ns_add_u32 s3, s3, s7')
            a(f'v_add_u32 v92, s3, {vK}\nv_add_u32 v93, s3, {vVa}\nv_add_u32 v94, s3, {vVb}')
        def scores():
            l1, l2 = lab('m'), lab('m')
            a(f'ds_read_b128 {vr(KB,4)}, v92\ns_waitcnt lgkmcnt(0)')
            a(qk(u, sb, '0'))
            a('s_nop 15')
            a(f's_cmp_lg_u32 s48, {8+u}\ns_cbranch_scc1 {l1}')
            for i in range(16): a(f'v_cndmask_b32 v{sb+i}, v125, v{sb+i}, s[{MASK0+2*i}:{MASK0+2*i+1}]')
            a(f'{l1}:\ns_cmp_lg_u32 s48, {u}\ns_cbranch_scc1 {l2}')
            for i in range(16): a(f'v_cndmask_b32 v{sb+i}, v{sb+i}, v125, s[{MASK0+2*i}:{MASK0+2*i+1}]')
            a(f'{l2}:')
        lp = lab('fb1')
        a(f's_max_i32 s48, s46, {u}\nv_mov_b32 {vM[u]}, v125')
        a(f'{lp}:')
        tile_addr(); scores()
        for i in range(8): a(f'v_max3_f32 {vM[u]}, {vM[u]}, v{sb+2*i}, v{sb+1+2*i}')
        a(f's_add_u32 s48, s48, 1\ns_cmp_le_u32 s48, {8+u}\ns_cbranch_scc1 {lp}')
        a(f'v_mov_b32 v126, {vM[u]}\nv_permlane32_swap_b32 {vM[u]}, v126\nv_max_f32 {vM[u]}, {vM[u]}, v126')
        for i in range(16): a(f'v_mov_b32 v{OA[u]+i}, 0')
        lp = lab('fb2')
        a(f's_max_i32 s48, s46, {u}')
        a(f'{lp}:')
        tile_addr(); scores()
        a(f'ds_read_b128 {vr(VB,4)}, v93\nds_read_b128 {vr(VB+4,4)}, v94')
        for i in range(16): a(f'v_sub_f32 v{sb+i}, v{sb+i}, {vM[u]}')
        a('s_waitcnt lgkmcnt(0)')
        for h in range(2):
            e, c = expcvt(sb, h); a.extend(e); a.extend(c); a(pv(u, sb, h))
        a('s_nop 15')
        a(f's_add_u32 s48, s48, 1\ns_cmp_le_u32 s48, {8+u}\ns_cbranch_scc1 {lp}')
    a('s_branch L_fbdone')

    a.auto_wait()
    nn = a.fix_hazards()
    bad = a.check_branch_hazards()
    for b in bad: print('BRANCH HAZARD', b, file=sys.stderr)
    hdr = f'; fused persistent kernel: 256 workgroups (one per CU), generated by work/gen*.py\n; @launch grid=(256,1,1) block=(256,1,1) lds={LDS_BYTES}\n'
    tail = f'''.section .rodata,"a"
.p2align 6
.amdhsa_kernel {KNAME}
  .amdhsa_next_free_vgpr 512
  .amdhsa_next_free_sgpr 102
  .amdhsa_accum_offset 256
  .amdhsa_group_segment_fixed_size 0
  .amdhsa_kernarg_size 72
  .amdhsa_user_sgpr_count 2
  .amdhsa_user_sgpr_kernarg_segment_ptr 1
  .amdhsa_system_sgpr_workgroup_id_x 1
.end_amdhsa_kernel
'''
    print('instructions', sum(1 for I in a.ins if I.kind not in ('label', 'dir')), 'nop states added', nn, file=sys.stderr)
    return hdr + a.text() + tail

if __name__ == '__main__':
    out = sys.argv[1]
    open(out, 'w').write(gen(profile='profile' in sys.argv, force_fb='fb' in sys.argv))
```

```python
import sys
from asmlib import Asm, Ins, vr, interleave

KNAME = 'interleave_layers__linear_attn_block__sliding_block__prompt_kernel'
WO = 0; T = 65536; S = 131072
TS = 2064
KVN = T
OWN = S + 512
STAT = S + 17024
CS = S + 17536
LDS_BYTES = 163840
KVA0 = 0x10000; KVA_I = 0xA0000
FA0 = 0x150000
G0 = 0x200000
oXO = 0; oXX = 0x40000; oST = 0x70000; oFL = 0x78000; oKVB = 0x80000
WS_BYTES = 0x2200000
STAMP0 = 0x2200000
X0, WA, WOA, WB, WOB, OUT, WS = 's[8:11]', 's[12:15]', 's[16:19]', 's[20:23]', 's[24:27]', 's[28:31]', 's[32:35]'
sG, sJ, sW, sTag, sL, sGb, sEp = 's36', 's37', 's38', 's39', 's40', 's41', 's42'
sCnt = 's43'
MASK0 = 64
vLane, vL16, vT, vRSa, vRSb, vCSa, vCSb, vXo, vPG, vE6, vL2E, vNE = ['v%d' % i for i in range(12)]
ONES = 12
vStamp = 'v16'
def Wreg(mat, part, s):
    base = {('a', 'k'): ('a', 0), ('a', 'v'): ('a', 64), ('a', 'q'): ('a', 128), ('b', 'q'): ('a', 192), ('b', 'k'): ('v', 128), ('b', 'v'): ('v', 192)}[(mat, part)]
    return base[0], base[1] + 4 * s
def Wfrag(mat, part, s):
    k, b = Wreg(mat, part, s); return vr(b, 4, k)
PARTOFF = {'q': 0, 'k': 1024, 'v': 2048}
PARTI = {'q': 0, 'k': 1, 'v': 2}

def f2u(x):
    import struct
    return '0x%08x' % struct.unpack('<I', struct.pack('<f', x))[0]

def gen(profile=False, force_fb=False):
    a = Asm()
    uid = [0]
    def lab(n):
        uid[0] += 1; return f'L_{n}_{uid[0]}'
    def stamp(i):
        if not profile: return
        a('s_memtime s[96:97]' if profile == 'cyc' else 's_memrealtime s[96:97]')
        a(f's_lshl_b32 s98, {sL}, 4\ns_add_u32 s98, s98, {i}')
        a('s_waitcnt lgkmcnt(0)')
        a('s_mov_b32 m0, s98')
        a(f'v_writelane_b32 {vStamp}, s96, m0')
    def poll(vaddr, sbase, vtmp):
        lp = lab('poll')
        a(f's_mov_b32 {sCnt}, 0')
        a(f'{lp}:')
        a(f'buffer_load_dword {vtmp}, {vaddr}, {WS}, {sbase} offen sc1')
        a(f's_add_u32 {sCnt}, {sCnt}, 1\ns_cmp_ge_u32 {sCnt}, 0x8000\ns_cbranch_scc1 L_end')
        a('s_waitcnt vmcnt(0)')
        a(f'v_cmp_ne_u32 vcc, {sTag}, {vtmp}')
        a(f's_cbranch_vccnz {lp}')
    def publish(sflag, vt1, vt2):
        sk = lab('nofl')
        a(f'v_mov_b32 {vt1}, {sTag}\nv_mov_b32 {vt2}, 0')
        a('s_waitcnt vmcnt(0) lgkmcnt(0)\ns_barrier')
        a(f's_cmp_lg_u32 {sW}, 0\ns_cbranch_scc1 {sk}')
        a('s_mov_b64 exec, 1')
        a(f'buffer_store_dword {vt1}, {vt2}, {WS}, {sflag} offen sc1')
        a('s_mov_b64 exec, -1')
        a(f'{sk}:')

    a(f'.amdgcn_target "amdgcn-amd-amdhsa--gfx950"\n.text\n.globl {KNAME}\n.p2align 8\n.type {KNAME},@function\n{KNAME}:')
    a('s_cmp_ge_u32 s2, 256\ns_cbranch_scc1 L_end')
    a('s_load_dwordx16 s[44:59], s[0:1], 0\ns_load_dwordx2 s[60:61], s[0:1], 64')
    a(f's_and_b32 s3, s2, 7\ns_lshr_b32 s4, s2, 3\ns_lshr_b32 s5, s4, 3\ns_lshl_b32 s3, s3, 2\ns_add_u32 {sG}, s3, s5\ns_and_b32 {sJ}, s4, 7')
    a(f'v_lshrrev_b32 v1, 6, v0\nv_readfirstlane_b32 {sW}, v1\nv_and_b32 v0, 63, v0')
    a(f's_mov_b32 {sL}, 0')
    if profile: a(f'v_mov_b32 {vStamp}, 0')
    a(f'v_lshlrev_b32 {vL16}, 4, v0')
    a(f'v_add_u32 {vT}, {T}, {vL16}')
    a('v_and_b32 v20, 15, v0\nv_lshrrev_b32 v21, 4, v0')
    a('v_lshlrev_b32 v22, 10, v20\nv_lshl_add_u32 v22, v21, 4, v22')
    a('v_lshrrev_b32 v23, 3, v0\nv_and_b32 v24, 7, v0\nv_and_b32 v25, 1, v21\nv_lshlrev_b32 v25, 1, v25\nv_xor_b32 v24, v24, v25')
    a('v_xor_b32 v25, 4, v24\nv_lshlrev_b32 v24, 4, v24\nv_lshlrev_b32 v25, 4, v25')
    a('v_mul_u32_u24 v26, 3072, v23\nv_add_u32 v27, v26, v25\nv_add_u32 v26, v26, v24\nv_add_u32 v27, 24576, v27')
    a('v_lshl_add_u32 v17, v23, 10, v24\nv_lshl_add_u32 v18, v23, 10, v25\nv_add_u32 v18, 8192, v18')
    a('s_waitcnt lgkmcnt(0)')
    a(f's_load_dword {sEp}, s[60:61], 0')
    for base, src, nb in ((8, 44, 0x200000), (12, 46, 0x180000), (16, 48, 0x80000), (20, 52, 0x180000), (24, 54, 0x80000), (28, 56, 0x200000), (32, 60, WS_BYTES + (0x40000 if profile else 0))):
        a(f's_mov_b32 s{base}, s{src}\ns_mov_b32 s{base+1}, s{src+1}\ns_mov_b32 s{base+2}, {hex(nb)}\ns_mov_b32 s{base+3}, 0x20000')
    stamp(0)
    a(f's_lshl_b32 s3, {sG}, 16\ns_lshl_b32 s4, {sW}, 14\ns_add_u32 s3, s3, s4\ns_add_u32 s4, s4, {T}')
    for s in range(16):
        a(f's_add_u32 m0, s4, {s*1024 - s*64}')
        a(f'buffer_load_dwordx4 v22, {X0}, s3 offen offset:{s*64} lds')
    a(f's_mul_i32 s5, {sW}, {32*3072}\ns_lshl_b32 s6, {sJ}, 7\ns_add_u32 s5, s5, s6')
    a(f's_lshl_b32 s6, {sW}, 12')
    chunks = [(m, p, kq) for m in 'ab' for p in 'kvq' for kq in range(4)]
    slot = lambda n: [0, 16384, 32768, 49152, S][n % 5]
    def wdma(n):
        m, p, kq = chunks[n]
        for i in range(4):
            if i % 2 == 0: a(f's_add_u32 s7, s5, {(128*kq + 8*i)*3072 + PARTOFF[p]}')
            a(f's_add_u32 m0, s6, {slot(n) + i*1024}')
            a(f'buffer_load_dwordx4 {"v26" if i % 2 == 0 else "v27"}, {WA if m == "a" else WB}, s7 offen lds')
    for n in range(5): wdma(n)
    a(f'v_lshlrev_b32 {vRSa}, 4, v21\nv_lshlrev_b32 {vRSb}, 2, v20')
    a(f's_mul_i32 s3, {sW}, 192\ns_add_u32 s3, s3, {CS}')
    a(f'v_add_u32 {vCSa}, s3, {vRSa}\nv_add_u32 {vCSb}, s3, {vRSb}')
    a(f'v_add_u32 {vRSa}, {STAT}, {vRSa}\nv_add_u32 {vRSb}, {STAT}, {vRSb}')
    a(f's_lshr_b32 s3, {sW}, 1\ns_lshl_b32 s4, {sJ}, 1\ns_add_u32 s3, s3, s4\ns_lshl_b32 s3, s3, 10\ns_and_b32 s4, {sW}, 1\ns_lshl_b32 s4, s4, 9\ns_add_u32 s3, s3, s4')
    a(f'v_and_b32 v28, 1, v21\nv_lshlrev_b32 v28, 14, v28\nv_lshrrev_b32 v29, 5, v0\nv_lshl_add_u32 v28, v29, 8, v28\nv_lshl_add_u32 v28, v20, 4, v28\nv_add_u32 {vXo}, s3, v28')
    a(f'v_and_b32 {vPG}, 7, v0\nv_lshlrev_b32 {vPG}, 7, {vPG}')
    L2E = 1.4426950408889634
    a(f'v_mov_b32 {vE6}, {f2u(1e-6)}\nv_mov_b32 {vL2E}, {f2u(L2E)}\nv_mov_b32 {vNE}, {f2u(-1e-6*L2E)}')
    for i in range(4): a(f'v_mov_b32 v{ONES+i}, 0x3f803f80')
    a(f's_lshl_b32 {sGb}, {sG}, 20\ns_add_u32 {sGb}, {sGb}, {G0}')
    a('v_and_b32 v28, 31, v0\nv_lshlrev_b32 v29, 2, v29\nv_sub_u32 v28, v28, v29')
    for i in range(16):
        a(f'v_cmp_le_i32 s[{MASK0+2*i}:{MASK0+2*i+1}], {8*(i>>2) + (i&3)}, v28')
    a('v_lshrrev_b32 v28, 2, v20\nv_and_b32 v29, 3, v20')
    a('v_lshl_add_u32 v30, v21, 3, v28\nv_lshlrev_b32 v30, 7, v30\nv_lshl_add_u32 v30, v29, 3, v30')
    a(f'v_lshrrev_b32 v31, 1, v28\nv_and_b32 v32, 1, v21\nv_lshl_or_b32 v31, v32, 1, v31\nv_xor_b32 v31, {sW}, v31\nv_lshl_add_u32 v30, v31, 5, v30')
    a(f'v_add_u32 v33, {S}, v30')
    a('v_lshrrev_b32 v31, 1, v21\nv_lshlrev_b32 v31, 4, v31\nv_lshl_add_u32 v31, v32, 2, v31\nv_add_u32 v31, v31, v28\nv_lshlrev_b32 v31, 7, v31')
    a(f'v_and_b32 v28, 2, v28\nv_xor_b32 v29, v29, v28\nv_lshl_add_u32 v31, v29, 4, v31\ns_lshl_b32 s3, {sW}, 14\nv_add_u32 v19, s3, v31')
    a(f's_waitcnt lgkmcnt(0)\ns_add_u32 {sEp}, {sEp}, 1\ns_mul_i32 {sTag}, {sEp}, 0x9E3779B1')

    def stats_finalize(vs, vq, vaddr, t1, t2):
        a(f'v_mul_f32 {vs}, {f2u(1/512)}, {vs}')
        a(f'v_mul_f32 {t1}, {vs}, {vs}')
        a(f'v_fmamk_f32 {vq}, {vq}, {f2u(1/512)}, {vE6}')
        a(f'v_sub_f32 {vq}, {vq}, {t1}')
        a(f'v_max_f32 {vq}, {vq}, {vE6}')
        a(f'v_add_f32 {vq}, {f2u(1e-5 - 1e-6)}, {vq}')
        a(f'v_rsq_f32 {t1}, {vq}')
        a(f'v_mul_f32 {t2}, {vs}, {t1}\nv_sub_f32 {t2}, 0, {t2}')
        a(f'ds_write_b32 {vaddr}, {t1}\nds_write_b32 {vaddr}, {t2} offset:256')
    def quad_reduce(vs, vq, t):
        a(f'v_permlane32_swap_b32 {vs}, {vq}\nv_add_f32 {vs}, {vs}, {vq}')
        a(f'v_mov_b32 {t}, {vs}\nv_permlane16_swap_b32 {vs}, {t}\nv_add_f32 {vs}, {vs}, {t}')
    a('s_waitcnt vmcnt(20)')
    a(f's_lshl_b32 s3, {sW}, 14\nv_add_u32 v28, s3, {vT}')
    for s in range(16): a(f'ds_read_b128 {vr(40+4*s, 4)}, v28 offset:{s*1024}')
    a('v_mov_b32 v34, 0\nv_mov_b32 v35, 0\nv_mov_b32 v36, 0\nv_mov_b32 v37, 0')
    for r in range(64):
        a(f'v_dot2c_f32_bf16 v{34 + (r&1)}, v{40+r}, v{ONES}')
        a(f'v_dot2c_f32_bf16 v{36 + (r&1)}, v{40+r}, v{40+r}')
    a('v_add_f32 v34, v34, v35\nv_add_f32 v36, v36, v37')
    quad_reduce('v34', 'v36', 'v35')
    a('v_mov_b32 v36, v34\nv_permlane32_swap_b32 v34, v36')
    a(f's_lshl_b32 s3, {sW}, 6\nv_add_u32 v28, s3, {vRSb}')
    stats_finalize('v34', 'v36', 'v28', 'v35', 'v37')
    NCH = len(chunks)
    issued = 5
    for n in range(NCH):
        a(f's_waitcnt vmcnt({4*(issued - n - 1)}) lgkmcnt(0)\ns_barrier')
        if n >= 1 and issued < NCH:
            wdma(issued); issued += 1
        m, p, kq = chunks[n]
        for s2 in range(4):
            k, b = Wreg(m, p, 4*kq + s2)
            for hi in range(2):
                if slot(n) < 65536: a(f'ds_read_b64_tr_b16 {vr(b+2*hi, 2, k)}, v30 offset:{slot(n) + s2*4096 + hi*512}')
                else: a(f'ds_read_b64_tr_b16 {vr(b+2*hi, 2, k)}, v33 offset:{s2*4096 + hi*512}')
        if kq == 3:
            for s in range(16):
                a(f'v_mfma_f32_16x16x32_bf16 v[40:43], {vr(ONES,4)}, {Wfrag(m,p,s)}, {"0" if s == 0 else "v[40:43]"}')
            a(f'ds_write_b32 {vCSb}, v40 offset:{(0 if m == "a" else 768) + PARTI[p]*64}')
    a('s_waitcnt vmcnt(0) lgkmcnt(0)\ns_barrier')
    stamp(1)

    a('L_loop:')
    def wo_dma(srd):
        a(f's_lshl_b32 s3, {sW}, 17\ns_lshl_b32 s4, {sJ}, 7\ns_add_u32 s3, s3, s4\ns_lshl_b32 s4, {sW}, 14')
        for i in range(16):
            if i % 2 == 0 and i: a(f's_add_u32 s3, s3, 16384')
            a(f's_add_u32 m0, s4, {WO + i*1024}')
            a(f'buffer_load_dwordx4 {"v17" if i % 2 == 0 else "v18"}, {srd}, s3 offen lds')
    def wo_convert(base):
        for s2 in range(4):
            for t in range(4):
                for hi in range(2):
                    a(f'ds_read_b64_tr_b16 {vr(base + 16*s2 + 4*t + 2*hi, 2)}, v19 offset:{s2*4096 + hi*1024 + ((t>>1)^hi)*64 + (t&1)*8}')
        a(f's_lshl_b32 s3, {sW}, 14\nv_add_u32 v{base+64}, s3, {vL16}')
        a('s_waitcnt lgkmcnt(0)')
        for i in range(16):
            a(f'ds_write_b128 v{base+64}, {vr(base + 4*i, 4)} offset:{WO + i*1024}')
    XR = 68
    def gemm_pass(mat, tiles, parts, acc, swap):
        reads = [(t, s) for s in range(16) for t in tiles]
        nring = 8; pre = 6
        rd = lambda n: f'ds_read_b128 {vr(XR + 4*(n % nring), 4)}, {vT} offset:{(reads[n][0]*16 + reads[n][1])*1024}'
        for n in range(pre): a(rd(n))
        for n, (t, s) in enumerate(reads):
            x = vr(XR + 4*(n % nring), 4)
            for p in parts:
                d = vr(acc[(p, t)], 4); w = Wfrag(mat, p, s)
                A, B = (w, x) if swap[p] else (x, w)
                a(f'v_mfma_f32_16x16x32_bf16 {d}, {A}, {B}, {"0" if s == 0 else d}')
            if n + pre < len(reads): a(rd(n + pre))
    def phi(r, rs, b, t):
        a(f'v_fma_f32 {r}, {r}, {rs}, {b}')
        a(f'v_fma_f32 {t}, {r}, {vL2E}, {vNE}')
        a(f'v_exp_f32_e64 {t}, {t} clamp')
        a(f'v_max_f32 {r}, {r}, {vE6}')
        a(f'v_add_f32 {r}, {r}, {t}')
    def epi_d(acc, t, cs, dst, do_phi, tmp):
        for r in range(4):
            if do_phi:
                a(f'v_fma_f32 v{tmp+8}, v{tmp+4+r}, {cs}, {vE6}')
                phi(f'v{acc+r}', f'v{tmp+r}', f'v{tmp+8}', f'v{tmp+9}')
            else:
                a(f'v_mul_f32 v{tmp+8}, v{tmp+4+r}, {cs}')
                a(f'v_fma_f32 v{acc+r}, v{acc+r}, v{tmp+r}, v{tmp+8}')
        a(f'v_cvt_pk_bf16_f32 v{dst}, v{acc}, v{acc+1}\nv_cvt_pk_bf16_f32 v{dst+1}, v{acc+2}, v{acc+3}')
    def epi_t(acc, rs, mr, cs4, dst, do_phi, tmp):
        for r in range(4):
            if do_phi:
                a(f'v_fma_f32 v{tmp}, {mr}, v{cs4+r}, {vE6}')
                phi(f'v{acc+r}', rs, f'v{tmp}', f'v{tmp+1}')
            else:
                a(f'v_mul_f32 v{tmp}, {mr}, v{cs4+r}')
                a(f'v_fma_f32 v{acc+r}, v{acc+r}, {rs}, v{tmp}')
        a(f'v_cvt_pk_bf16_f32 v{dst}, v{acc}, v{acc+1}\nv_cvt_pk_bf16_f32 v{dst+1}, v{acc+2}, v{acc+3}')
    acc = {('k', 0): 20, ('v', 0): 24, ('k', 1): 28, ('v', 1): 32, ('k', 2): 36, ('v', 2): 40, ('k', 3): 44, ('v', 3): 48,
           ('q', 0): 52, ('q', 1): 56, ('q', 2): 60, ('q', 3): 64}
    OA = [28, 44]
    QF = [20, 24]

    a(f's_bitcmp1_b32 {sL}, 0\ns_cbranch_scc1 L_B')
    wo_dma(WOA)
    if profile == 'cyc': stamp(14)
    sw = {'k': False, 'v': False, 'q': True}
    gemm_pass('a', [0, 1], 'kv', acc, sw)
    gemm_pass('a', [2, 3], 'kv', acc, sw)
    stamp(2)
    a(f'ds_read_b32 v100, {vCSb} offset:{64}\nds_read_b32 v101, {vCSb} offset:{128}')
    for t in range(4):
        a(f'ds_read_b128 v[104:107], {vRSa} offset:{t*64}\nds_read_b128 v[108:111], {vRSa} offset:{256 + t*64}')
        epi_d(acc[('k', t)], t, 'v100', 68 + 2*t, True, 104)
        epi_d(acc[('v', t)], t, 'v101', 76 + 2*t, False, 104)
    a(f'v_mfma_f32_16x16x32_bf16 v[84:87], v[68:71], v[76:79], 0')
    a(f'v_mfma_f32_16x16x32_bf16 v[88:91], v[68:71], {vr(ONES,4)}, 0')
    a(f'v_mfma_f32_16x16x32_bf16 v[84:87], v[72:75], v[80:83], v[84:87]')
    a(f'v_mfma_f32_16x16x32_bf16 v[88:91], v[72:75], {vr(ONES,4)}, v[88:91]')
    a(f's_lshr_b32 s3, {sL}, 1\ns_mul_i32 s4, s3, {KVA_I}\ns_lshl_b32 s5, {sJ}, 2\ns_add_u32 s5, s5, {sW}\ns_mul_i32 s5, s5, {32*640}\ns_add_u32 s4, s4, s5\ns_add_u32 s4, s4, {KVA0}')
    a(f's_lshl_b32 s3, s3, 15\ns_lshl_b32 s5, {sJ}, 12\ns_add_u32 s3, s3, s5\ns_add_u32 s6, s3, {FA0}')
    a(f's_lshl_b32 s3, {sG}, 7\ns_add_u32 s7, s6, s3')
    a(f's_mul_i32 s3, {sG}, 640\ns_add_u32 s5, s4, s3')
    a('v_lshrrev_b32 v97, 5, v0\nv_and_b32 v98, 15, v0\nv_lshlrev_b32 v98, 4, v98\nv_lshl_add_u32 v96, v97, 8, v98')
    a('v_lshlrev_b32 v97, 4, v97\nv_add_u32 v97, 512, v97\nv_and_b32 v99, 16, v0\nv_cmp_eq_u32 vcc, 0, v99\nv_cndmask_b32 v96, v97, v96, vcc')
    a('v_cvt_pk_bf16_f32 v92, v84, v85\nv_cvt_pk_bf16_f32 v93, v86, v87\nv_cvt_pk_bf16_f32 v94, v88, v89\nv_cvt_pk_bf16_f32 v95, v90, v91')
    a('v_permlane16_swap_b32 v92, v94\nv_permlane16_swap_b32 v93, v95')
    a('s_mov_b32 exec_lo, 0x1ffff\ns_mov_b32 exec_hi, 0x1ffff')
    a(f'buffer_store_dwordx4 v[92:95], v96, {WS}, s5 offen sc1')
    a('s_mov_b64 exec, -1')
    publish('s7', 'v100', 'v101')
    stamp(3)
    gemm_pass('a', [0, 1, 2, 3], 'q', acc, sw)
    if profile == 'cyc': stamp(15)
    a(f'ds_read_b128 v[100:103], {vCSa} offset:0')
    for t in range(4):
        a(f'ds_read_b32 v104, {vRSb} offset:{t*64}\nds_read_b32 v105, {vRSb} offset:{256 + t*64}')
        epi_t(acc[('q', t)], 'v104', 'v105', 100, 20 + 2*t, True, 106)
    for u in range(2):
        a(f'v_permlane16_swap_b32 v{QF[u]}, v{QF[u]+2}\nv_permlane16_swap_b32 v{QF[u]+1}, v{QF[u]+3}')
    if profile == 'cyc': stamp(6)
    wo_convert(28)
    a('v_and_b32 v104, 15, v0\nv_lshrrev_b32 v105, 1, v0\nv_and_b32 v105, 8, v105\nv_sub_u32 v104, v104, v105')
    a('v_mov_b32 v106, 0x3f80\nv_mov_b32 v107, 0x3f800000')
    for i in range(4):
        a(f'v_cmp_eq_u32 vcc, {2*i}, v104\nv_cndmask_b32 v{100+i}, 0, v106, vcc')
        a(f'v_cmp_eq_u32 vcc, {2*i+1}, v104\nv_cndmask_b32 v{100+i}, v{100+i}, v107, vcc')
    a('v_lshrrev_b32 v106, 5, v0\nv_mul_u32_u24 v106, 640, v106\nv_and_b32 v107, 31, v0\nv_lshl_add_u32 v104, v107, 4, v106')
    a('v_and_b32 v108, 15, v0\nv_mul_u32_u24 v108, 1280, v108\nv_add_u32 v105, v106, v108\nv_and_b32 v108, 16, v0\nv_add3_u32 v105, v105, v108, 64\nv_add_u32 v105, 448, v105')
    a('v_lshlrev_b32 v106, 7, v107')
    stamp(4)
    poll('v106', 's6', 'v107')
    stamp(5)
    a(f'buffer_load_dwordx4 v[108:111], v105, {WS}, s4 offen sc1')
    for i in range(16):
        if i % 3 == 0 and i: a(f's_add_u32 s4, s4, {3*1280}')
        a(f'buffer_load_dwordx4 {vr(28+4*i,4)}, v104, {WS}, s4 offen offset:{(i%3)*1280} sc1')
    a('v_mfma_f32_16x16x32_bf16 v[116:119], v[100:103], v[108:111], 0')
    for sh in (8, 4, 2, 1):
        for r in range(4):
            a(f'v_add_f32_dpp v{116+r}, v{116+r}, v{116+r} row_ror:{sh} row_mask:0xf bank_mask:0xf')
    for i in range(16):
        a(f'v_mfma_f32_16x16x32_bf16 v[112:115], v[100:103], {vr(28+4*i,4)}, {"0" if i == 0 else "v[112:115]"}')
    a('v_cvt_pk_bf16_f32 v122, v116, v117\nv_cvt_pk_bf16_f32 v123, v118, v119')
    a('v_cvt_pk_bf16_f32 v120, v112, v113\nv_cvt_pk_bf16_f32 v121, v114, v115')
    a('v_permlane16_swap_b32 v120, v122\nv_permlane16_swap_b32 v121, v123')
    for u in range(2):
        a(f'v_mfma_f32_32x32x16_bf16 {vr(OA[u],16)}, v[120:123], {vr(QF[u],4)}, 0')
    for u in range(2):
        a(f'v_add_f32 v{OA[u]+8}, v{OA[u]+8}, {vE6}')
    a('s_branch L_common')

    a('L_B:')
    wo_dma(WOB)
    sw = {'k': True, 'v': False, 'q': True}
    gemm_pass('b', [0, 1], 'kv', acc, sw)
    gemm_pass('b', [2, 3], 'kv', acc, sw)
    stamp(2)
    a(f'ds_read_b128 v[100:103], {vCSa} offset:{768+64}\nds_read_b32 v116, {vCSb} offset:{768+128}')
    for t in range(4):
        a(f'ds_read_b128 v[104:107], {vRSa} offset:{t*64}\nds_read_b128 v[108:111], {vRSa} offset:{256 + t*64}')
        a(f'ds_read_b32 v114, {vRSb} offset:{t*64}\nds_read_b32 v115, {vRSb} offset:{256 + t*64}')
        epi_d(acc[('v', t)], t, 'v116', 76 + 2*t, False, 104)
        epi_t(acc[('k', t)], 'v114', 'v115', 100, 68 + 2*t, False, 112)
    for u in range(2):
        a(f'v_permlane16_swap_b32 v{68+4*u}, v{70+4*u}\nv_permlane16_swap_b32 v{69+4*u}, v{71+4*u}')
        a(f'v_permlane32_swap_b32 v{76+4*u}, v{78+4*u}\nv_permlane32_swap_b32 v{77+4*u}, v{79+4*u}')
    a(f's_lshr_b32 s3, {sL}, 1\ns_lshl_b32 s4, s3, 17\ns_lshl_b32 s5, {sJ}, 2\ns_add_u32 s5, s5, {sW}\ns_lshl_b32 s5, s5, 12\ns_add_u32 s4, s4, s5\ns_add_u32 s4, s4, {oKVB}')
    a(f's_lshl_b32 s3, s3, 10\ns_lshl_b32 s5, {sJ}, 7\ns_add_u32 s3, s3, s5\ns_add_u32 s6, s3, {oFL + 7*0x400}')
    a(f's_add_u32 s5, s4, {sGb}\ns_add_u32 s7, s6, {sGb}')
    a(f's_mul_i32 s3, {sW}, {2*TS}\ns_add_u32 s3, s3, {OWN}\nv_add_u32 v100, s3, {vL16}')
    for u in range(2):
        a(f'buffer_store_dwordx4 {vr(68+4*u,4)}, {vL16}, {WS}, s5 offen offset:{u*2048} sc1')
        a(f'buffer_store_dwordx4 {vr(76+4*u,4)}, {vL16}, {WS}, s5 offen offset:{u*2048+1024} sc1')
        a(f'ds_write_b128 v100, {vr(68+4*u,4)} offset:{u*TS}\nds_write_b128 v100, {vr(76+4*u,4)} offset:{u*TS+1024}')
    publish('s7', 'v101', 'v102')
    stamp(3)
    gemm_pass('b', [0, 1, 2, 3], 'q', acc, sw)
    if profile == 'cyc': stamp(14)
    a(f'ds_read_b128 v[100:103], {vCSa} offset:768')
    QS = 0.25 * L2E
    for t in range(4):
        a(f'ds_read_b32 v104, {vRSb} offset:{t*64}\nds_read_b32 v105, {vRSb} offset:{256 + t*64}')
        a(f'v_mul_f32 v104, {f2u(QS)}, v104\nv_mul_f32 v105, {f2u(QS)}, v105')
        epi_t(acc[('q', t)], 'v104', 'v105', 100, 20 + 2*t, False, 106)
    for u in range(2):
        a(f'v_permlane16_swap_b32 v{QF[u]}, v{QF[u]+2}\nv_permlane16_swap_b32 v{QF[u]+1}, v{QF[u]+3}')
    wo_convert(28)
    a('s_waitcnt lgkmcnt(0)\ns_barrier')
    if profile == 'cyc': stamp(15)
    a(f's_mul_i32 s44, {sW}, {8*TS}\ns_add_u32 s44, s44, {KVN}')
    a(f's_mul_i32 s45, {sW}, {2*TS}\ns_add_u32 s45, s45, {OWN - 8*TS}')
    a(f'v_mov_b32 v100, s44\nv_mov_b32 v101, s45\nv_cmp_gt_u32 vcc, 8, v0\nv_cndmask_b32 v100, v101, v100, vcc')
    a(f'v_mul_u32_u24 v101, {TS}, v0\nv_add_u32 v100, v100, v101')
    a(f's_lshl_b32 s3, {sG}, 1\ns_sub_i32 s46, 8, s3')
    a(f'v_cmp_le_i32 vcc, s46, v0\nv_cndmask_b32 v104, 0, v{ONES}, vcc\nv_mov_b32 v105, v104\nv_mov_b32 v106, v104\nv_mov_b32 v107, v104')
    a('s_mov_b64 exec, 0x3ff\nds_write_b128 v100, v[104:107] offset:2048\ns_mov_b64 exec, -1')
    vK, vVa, vVb = 'v120', 'v121', 'v122'
    a('v_lshrrev_b32 v100, 5, v0\nv_and_b32 v101, 15, v0\nv_lshlrev_b32 v101, 4, v101\nv_lshl_add_u32 v100, v100, 8, v101\nv_add_u32 v100, 1024, v100\nv_add_u32 v101, 512, v100')
    a(f'v_mov_b32 v102, 2048\nv_and_b32 v103, 16, v0\nv_cmp_eq_u32 vcc, 0, v103\nv_cndmask_b32 v100, v102, v100, vcc\nv_cndmask_b32 v101, v102, v101, vcc')
    a(f'v_add_u32 {vK}, s45, {vL16}\nv_add_u32 {vVa}, s45, v100\nv_add_u32 {vVb}, s45, v101')
    CB, SB, KB, VB = 60, [76, 92], 108, 112
    NEG = f2u(-1e30)
    def rdK(kt): return f'ds_read_b128 {vr(KB,4)}, {vK} offset:{kt*TS}'
    def rdV(kt): return [f'ds_read_b128 {vr(VB,4)}, {vVa} offset:{kt*TS}', f'ds_read_b128 {vr(VB+4,4)}, {vVb} offset:{kt*TS}']
    def qk(u, sb, c): return f'v_mfma_f32_32x32x16_bf16 {vr(sb,16)}, {vr(KB,4)}, {vr(QF[u],4)}, {c}'
    def pv(u, sb, h, init=False): return f'v_mfma_f32_32x32x16_bf16 {vr(OA[u],16)}, {vr(VB+4*h,4)}, {vr(sb+8*h,4)}, {"0" if init else vr(OA[u],16)}'
    def expcvt(sb, h):
        o = [f'v_exp_f32 v{sb+8*h+i}, v{sb+8*h+i}' for i in range(8)]
        c = [f'v_cvt_pk_bf16_f32 v{sb+8*h+i}, v{sb+8*h+2*i}, v{sb+8*h+2*i+1}' for i in range(4)]
        return o, c
    vM = ['v123', 'v124']
    a(f'v_mov_b32 v125, {NEG}')
    for u in range(2):
        kt = 8 + u; sb = SB[u]
        a(rdK(kt)); a.extend(rdV(kt))
        a(qk(u, sb, '0'))
        for i in range(16): a(f'v_cndmask_b32 v{sb+i}, v125, v{sb+i}, s[{MASK0+2*i}:{MASK0+2*i+1}]')
        a(f'v_max_f32 {vM[u]}, v{sb}, v{sb+1}')
        for i in range(7): a(f'v_max3_f32 {vM[u]}, {vM[u]}, v{sb+2+2*i}, v{sb+3+2*i}')
        a(f'v_mov_b32 v126, {vM[u]}\nv_permlane32_swap_b32 {vM[u]}, v126\nv_max_f32 {vM[u]}, {vM[u]}, v126')
        if force_fb: a(f'v_subrev_f32 {vM[u]}, {f2u(200.0)}, {vM[u]}')
        for i in range(16): a(f'v_sub_f32 v{sb+i}, v{sb+i}, {vM[u]}')
        for h in range(2):
            e, c = expcvt(sb, h); a.extend(e); a.extend(c); a(pv(u, sb, h, init=(h == 0)))
    def fillC(u):
        for i in range(16): a(f'v_sub_f32 v{CB+i}, 0, {vM[u]}')
    def run_tiles(u, tiles, far):
        C = vr(CB, 16)
        a(rdK(tiles[0])); a.extend(rdV(tiles[0]))
        a(qk(u, SB[0], C))
        if len(tiles) > 1: a(rdK(tiles[1]))
        pend = []
        for n, kt in enumerate(tiles):
            sb = SB[n % 2]
            e0, c0 = expcvt(sb, 0); e1, c1 = expcvt(sb, 1)
            if n == 0 and len(tiles) > 1:
                a(qk(u, SB[1], C))
                if len(tiles) > 2: a(rdK(tiles[2]))
            if kt == far:
                for i in range(16): a(f'v_cndmask_b32 v{sb+i}, v{sb+i}, v125, s[{MASK0+2*i}:{MASK0+2*i+1}]')
            a.extend(e0[:2]); a.extend(pend); pend = []
            a.extend(e0[2:]); a.extend(e1[:1]); a.extend(c0); a.extend(e1[1:3])
            a(pv(u, sb, 0))
            a.extend(e1[3:]); a.extend(c1)
            pend = [pv(u, sb, 1)]
            if n + 1 < len(tiles): pend += rdV(tiles[n+1])
            if n + 2 < len(tiles):
                pend.append(qk(u, sb, C))
                if n + 3 < len(tiles): pend.append(rdK(tiles[n+3]))
        a.extend(pend)
    fillC(1)
    run_tiles(1, [8], None)
    a(f's_sub_u32 s3, s44, s45\nv_add_u32 {vK}, s3, {vK}\nv_add_u32 {vVa}, s3, {vVa}\nv_add_u32 {vVb}, s3, {vVb}')
    a(f'v_and_b32 v126, 3, v0\nv_sub_u32 v126, {sG}, v126\nv_subrev_u32 v126, 1, v126\nv_cmp_gt_i32 vcc, 0, v126\nv_mov_b32 v127, {sG}\nv_cndmask_b32 v126, v126, v127, vcc\nv_lshlrev_b32 v126, 20, v126')
    a(f's_add_u32 s6, s6, {G0}')
    stamp(4)
    poll('v126', 's6', 'v127')
    stamp(5)
    for i in range(1, 5):
        a(f's_cmp_ge_u32 {sG}, {i}\ns_cselect_b32 s3, 0, 0x40000000\ns_cselect_b32 s7, {i << 20}, 0\ns_sub_u32 s7, s5, s7\nv_add_u32 v126, s3, {vL16}')
        for u in range(2):
            kt = 8 - 2*i + u
            a(f's_add_u32 m0, s44, {kt*TS - u*2048}')
            a(f'buffer_load_dwordx4 v126, {WS}, s7 offen offset:{u*2048} sc1 lds')
            a(f'buffer_load_dwordx4 v126, {WS}, s7 offen offset:{u*2048+1024} sc1 lds')
    a('s_waitcnt vmcnt(0)')
    stamp(6)
    run_tiles(1, [7, 6, 5, 4, 3, 2, 1], 1)
    fillC(0)
    run_tiles(0, [7, 6, 5, 4, 3, 2, 1, 0], 0)
    for u in range(2):
        o = OA[u]
        a(f'v_add_f32 v126, abs(v{o}), v{o+8}')
        for i in range(1, 8): a(f'v_add_f32 v126, abs(v{o+i}), v126')
        a(f'v_cmp_nlt_f32 vcc, v126, abs(v125)' if u == 0 else f'v_cmp_nlt_f32 s[46:47], v126, abs(v125)')
        if u == 0: a('s_mov_b64 s[48:49], vcc')
    a('s_or_b64 s[46:47], s[46:47], s[48:49]\ns_cbranch_scc1 L_fallback')
    a('L_fbdone:')

    a('L_common:')
    stamp(7)
    a(f's_lshl_b32 s3, {sL}, 16\ns_add_u32 s4, s3, {sGb}')
    a(f's_lshl_b32 s3, {sL}, 10\ns_add_u32 s3, s3, {sGb}\ns_add_u32 s6, s3, {oFL}')
    a(f's_lshl_b32 s3, {sJ}, 7\ns_add_u32 s7, s6, s3\ns_add_u32 s5, s4, 32768')
    for u in range(2):
        o = OA[u]
        a(f'v_rcp_f32 v{o+8}, v{o+8}')
        for i in range(8): a(f'v_mul_f32 v{o+i}, v{o+i}, v{o+8}')
        for i in range(4): a(f'v_cvt_pk_bf16_f32 v{o+10+i}, v{o+2*i}, v{o+2*i+1}')
        a(f'buffer_store_dwordx4 {vr(o+10,4)}, {vXo}, {WS}, {"s4" if u == 0 else "s5"} offen sc1')
    publish('s7', 'v100', 'v101')
    stamp(8)
    a(f'v_and_b32 v108, 15, v0\nv_lshlrev_b32 v108, 10, v108\nv_lshrrev_b32 v109, 4, v0\nv_lshl_add_u32 v108, v109, 4, v108')
    a(f's_lshl_b32 s3, {sG}, 16\ns_lshl_b32 s5, {sW}, 14\ns_add_u32 s3, s3, s5\ns_lshl_b32 s7, {sJ}, 7\ns_add_u32 s50, s3, s7')
    a(f's_lshl_b32 s7, {sJ}, 11\ns_add_u32 s5, s5, s7\ns_add_u32 s51, s5, s4\ns_add_u32 s51, s51, {oXX}')
    a(f's_cmp_lg_u32 {sL}, 0\ns_cbranch_scc1 L_res1')
    a(f'buffer_load_dwordx4 v[100:103], v108, {X0}, s50 offen\nbuffer_load_dwordx4 v[104:107], v108, {X0}, s50 offen offset:64')
    a('s_branch L_res2\nL_res1:')
    a(f's_sub_u32 s3, s51, 0x10000')
    a(f'buffer_load_dwordx4 v[100:103], {vL16}, {WS}, s3 offen sc1\nbuffer_load_dwordx4 v[104:107], {vL16}, {WS}, s3 offen offset:1024 sc1')
    a('L_res2:\ns_waitcnt vmcnt(0)')
    for i in range(8):
        a(f'v_lshlrev_b32 v{20+2*i}, 16, v{100+i}\nv_and_b32 v{21+2*i}, 0xffff0000, v{100+i}')
    WR = 100; nring = 6
    rdw = lambda n: f'ds_read_b128 {vr(WR + 4*(n % nring), 4)}, {vL16} offset:{WO + n*1024}'
    a(f'v_mov_b32 v126, v108')
    for n in range(nring - 1): a(rdw(n))
    a(f's_lshl_b32 s3, {sW}, 14\ns_add_u32 s5, s4, s3')
    poll(vPG, 's6', 'v127')
    stamp(9)
    for s in range(16):
        if s % 4 == 0 and s: a('s_add_u32 s5, s5, 4096')
        a(f'buffer_load_dwordx4 {vr(36+4*s,4)}, {vL16}, {WS}, s5 offen offset:{(s%4)*1024} sc1')
    for n in range(64):
        s, t = n >> 2, n & 3
        d = vr(20+4*t, 4)
        a(f'v_mfma_f32_16x16x32_bf16 {d}, {vr(WR + 4*(n % nring), 4)}, {vr(36+4*s,4)}, {d}')
        if n + nring - 1 < 64: a(rdw(n + nring - 1))
    for i in range(8): a(f'v_cvt_pk_bf16_f32 v{36+i}, v{20+2*i}, v{21+2*i}')
    stamp(10)
    a(f's_cmp_eq_u32 {sL}, 3\ns_cbranch_scc1 L_final')
    a(f'buffer_store_dwordx4 v[36:39], {vL16}, {WS}, s51 offen sc1\nbuffer_store_dwordx4 v[40:43], {vL16}, {WS}, s51 offen offset:1024 sc1')
    a('v_mov_b32 v44, 0\nv_mov_b32 v45, 0\nv_mov_b32 v46, 0\nv_mov_b32 v47, 0')
    for r in range(8):
        a(f'v_dot2c_f32_bf16 v{44 + (r&1)}, v{36+r}, v{ONES}')
        a(f'v_dot2c_f32_bf16 v{46 + (r&1)}, v{36+r}, v{36+r}')
    a('v_add_f32 v44, v44, v45\nv_add_f32 v46, v46, v47')
    quad_reduce('v44', 'v46', 'v45')
    a(f's_lshl_b32 s3, {sL}, 12\ns_add_u32 s3, s3, {sGb}\ns_add_u32 s52, s3, {oST}')
    a(f's_lshl_b32 s3, {sJ}, 9\ns_lshl_b32 s5, {sW}, 7\ns_add_u32 s3, s3, s5\ns_add_u32 s3, s3, s52')
    a('v_and_b32 v48, 15, v0\nv_lshlrev_b32 v48, 3, v48\nv_lshrrev_b32 v49, 5, v0\nv_lshl_add_u32 v48, v49, 2, v48')
    a('s_mov_b32 exec_lo, 0xffff\ns_mov_b32 exec_hi, 0xffff')
    a(f'buffer_store_dword v44, v48, {WS}, s3 offen sc1')
    a('s_mov_b64 exec, -1')
    a(f's_add_u32 s6, s6, {4*0x400}\ns_lshl_b32 s3, {sJ}, 7\ns_add_u32 s7, s6, s3')
    publish('s7', 'v100', 'v101')
    stamp(11)
    a(f's_lshl_b32 s3, {sW}, 13\ns_add_u32 s4, s4, {oXX}\ns_add_u32 s4, s4, s3\ns_add_u32 s5, s3, {T}')
    a('v_lshlrev_b32 v48, 3, v0')
    poll(vPG, 's6', 'v127')
    stamp(12)
    for jj in range(8): a(f'buffer_load_dwordx2 {vr(100+2*jj,2)}, v48, {WS}, s52 offen offset:{jj*512} sc1')
    for hf in range(2):
        for q in range(2):
            off = hf*32768 + q*4096
            a(f's_add_u32 m0, s5, {off}\ns_add_u32 s3, s4, {off}')
            for i in range(4): a(f'buffer_load_dwordx4 {vL16}, {WS}, s3 offen offset:{i*1024} sc1 lds')
    for jj in range(1, 8): a(f'v_add_f32 v100, v100, v{100+2*jj}\nv_add_f32 v101, v101, v{101+2*jj}')
    a(f'v_lshlrev_b32 v48, 2, v0\nv_add_u32 v48, {STAT}, v48')
    stats_finalize('v100', 'v101', 'v48', 'v102', 'v103')
    a('s_waitcnt vmcnt(0) lgkmcnt(0)\ns_barrier')
    stamp(13)
    a(f's_add_u32 {sL}, {sL}, 1\ns_branch L_loop')

    a('L_final:')
    a(f'buffer_store_dwordx4 v[36:39], v126, {OUT}, s50 offen\nbuffer_store_dwordx4 v[40:43], v126, {OUT}, s50 offen offset:64')
    a(f's_or_b32 s3, s2, {sW}\ns_cmp_lg_u32 s3, 0\ns_cbranch_scc1 L_noep')
    a(f'v_mov_b32 v44, {sEp}\nv_mov_b32 v45, 0\ns_mov_b64 exec, 1\nbuffer_store_dword v44, v45, {WS}, 0 offen\ns_mov_b64 exec, -1')
    a('L_noep:')
    if profile:
        a('s_waitcnt vmcnt(0)')
        stamp(11)
        a(f's_lshl_b32 s3, s2, 2\ns_add_u32 s3, s3, {sW}\ns_lshl_b32 s3, s3, 8\ns_add_u32 s3, s3, {STAMP0}\nv_lshlrev_b32 v45, 2, v0')
        a(f'buffer_store_dword {vStamp}, v45, {WS}, s3 offen')
        amp = [x for x in sys.argv if x.startswith('amp=')]
        if amp:
            i0, i1, wg = map(int, amp[0][4:].split(','))
            a(f's_cmp_lg_u32 s2, {wg}\ns_cbranch_scc1 L_end\ns_cmp_lg_u32 {sW}, 0\ns_cbranch_scc1 L_end')
            a(f'v_readlane_b32 s4, {vStamp}, {i0}\nv_readlane_b32 s5, {vStamp}, {i1}\nv_readlane_b32 s6, {vStamp}, 59\ns_nop 3\ns_sub_u32 s5, s5, s4\ns_lshl_b32 s5, s5, 3\ns_min_u32 s5, s5, 100000')
            a('L_amp:\ns_memrealtime s[96:97]\ns_waitcnt lgkmcnt(0)\ns_sub_u32 s7, s96, s6\ns_cmp_lt_u32 s7, s5\ns_cbranch_scc1 L_amp')
        if 'dbg' in sys.argv:
            a(f's_cmp_lg_u32 s2, 255\ns_cbranch_scc1 L_end\ns_cmp_lg_u32 {sW}, 0\ns_cbranch_scc1 L_end')
            a('s_load_dwordx2 s[44:45], s[0:1], 56\ns_waitcnt lgkmcnt(0)\ns_mov_b32 s46, 256\ns_mov_b32 s47, 0x20000')
            sel = [0, 1, 3, 5, 9, 13, 16+5, 16+7, 16+9, 16+13, 32+5, 32+9, 32+13, 48+5, 48+9, 48+11]
            a(f'v_readlane_b32 s4, {vStamp}, 0\nv_mov_b32 v46, 0')
            for n, i in enumerate(sel):
                a(f'v_readlane_b32 s5, {vStamp}, {i}\ns_nop 1\ns_sub_u32 s5, s5, s4')
                if n == 0: a(f's_mov_b32 s5, {sEp}')
                a(f'v_writelane_b32 v46, s5, {n}')
            a('buffer_store_dword v46, v45, s[44:47], 0 offen')
    a('L_end:\ns_endpgm')

    a('L_fallback:')
    a('s_nop 15')
    a(f's_lshl_b32 s3, {sG}, 1\ns_sub_i32 s46, 8, s3\ns_max_i32 s46, s46, 0')
    a('s_sub_u32 s47, s45, s44')
    for u in range(2):
        sb = SB[0]
        def tile_addr():
            a(f's_mul_i32 s3, s48, {TS}\ns_cmp_ge_u32 s48, 8\ns_cselect_b32 s7, s47, 0\ns_add_u32 s3, s3, s7')
            a(f'v_add_u32 v92, s3, {vK}\nv_add_u32 v93, s3, {vVa}\nv_add_u32 v94, s3, {vVb}')
        def scores():
            l1, l2 = lab('m'), lab('m')
            a(f'ds_read_b128 {vr(KB,4)}, v92\ns_waitcnt lgkmcnt(0)')
            a(qk(u, sb, '0'))
            a('s_nop 15')
            a(f's_cmp_lg_u32 s48, {8+u}\ns_cbranch_scc1 {l1}')
            for i in range(16): a(f'v_cndmask_b32 v{sb+i}, v125, v{sb+i}, s[{MASK0+2*i}:{MASK0+2*i+1}]')
            a(f'{l1}:\ns_cmp_lg_u32 s48, {u}\ns_cbranch_scc1 {l2}')
            for i in range(16): a(f'v_cndmask_b32 v{sb+i}, v{sb+i}, v125, s[{MASK0+2*i}:{MASK0+2*i+1}]')
            a(f'{l2}:')
        lp = lab('fb1')
        a(f's_max_i32 s48, s46, {u}\nv_mov_b32 {vM[u]}, v125')
        a(f'{lp}:')
        tile_addr(); scores()
        for i in range(8): a(f'v_max3_f32 {vM[u]}, {vM[u]}, v{sb+2*i}, v{sb+1+2*i}')
        a(f's_add_u32 s48, s48, 1\ns_cmp_le_u32 s48, {8+u}\ns_cbranch_scc1 {lp}')
        a(f'v_mov_b32 v126, {vM[u]}\nv_permlane32_swap_b32 {vM[u]}, v126\nv_max_f32 {vM[u]}, {vM[u]}, v126')
        for i in range(16): a(f'v_mov_b32 v{OA[u]+i}, 0')
        lp = lab('fb2')
        a(f's_max_i32 s48, s46, {u}')
        a(f'{lp}:')
        tile_addr(); scores()
        a(f'ds_read_b128 {vr(VB,4)}, v93\nds_read_b128 {vr(VB+4,4)}, v94')
        for i in range(16): a(f'v_sub_f32 v{sb+i}, v{sb+i}, {vM[u]}')
        a('s_waitcnt lgkmcnt(0)')
        for h in range(2):
            e, c = expcvt(sb, h); a.extend(e); a.extend(c); a(pv(u, sb, h))
        a('s_nop 15')
        a(f's_add_u32 s48, s48, 1\ns_cmp_le_u32 s48, {8+u}\ns_cbranch_scc1 {lp}')
    a('s_branch L_fbdone')

    a.auto_wait()
    nn = a.fix_hazards()
    bad = a.check_branch_hazards()
    for b in bad: print('BRANCH HAZARD', b, file=sys.stderr)
    hdr = f'; fused persistent kernel: 256 workgroups (one per CU), generated by work/gen*.py\n; @launch grid=(256,1,1) block=(256,1,1) lds={LDS_BYTES}\n'
    tail = f'''.section .rodata,"a"
.p2align 6
.amdhsa_kernel {KNAME}
  .amdhsa_next_free_vgpr 512
  .amdhsa_next_free_sgpr 102
  .amdhsa_accum_offset 256
  .amdhsa_group_segment_fixed_size 0
  .amdhsa_kernarg_size 72
  .amdhsa_user_sgpr_count 2
  .amdhsa_user_sgpr_kernarg_segment_ptr 1
  .amdhsa_system_sgpr_workgroup_id_x 1
.end_amdhsa_kernel
'''
    print('instructions', sum(1 for I in a.ins if I.kind not in ('label', 'dir')), 'nop states added', nn, file=sys.stderr)
    return hdr + a.text() + tail

if __name__ == '__main__':
    out = sys.argv[1]
    open(out, 'w').write(gen(profile=('cyc' if 'cyc' in sys.argv else 'profile' in sys.argv), force_fb='fb' in sys.argv))
```

```python
import sys
from asmlib import Asm, Ins, vr, interleave

KNAME = 'interleave_layers__linear_attn_block__sliding_block__prompt_kernel'
WO = 0; T = 65536; S = 131072
TS = 2064
KVN = T
OWN = S + 512
STAT = S + 17024
CS = S + 17536
LDS_BYTES = 163840
KVA0 = 0x10000; KVA_I = 0xA0000
FA0 = 0x150000
G0 = 0x200000
oXO = 0; oXX = 0x40000; oST = 0x70000; oFL = 0x78000; oKVB = 0x80000
WS_BYTES = 0x2200000
STAMP0 = 0x2200000
X0, WA, WOA, WB, WOB, OUT, WS = 's[8:11]', 's[12:15]', 's[16:19]', 's[20:23]', 's[24:27]', 's[28:31]', 's[32:35]'
sG, sJ, sW, sTag, sL, sGb, sEp = 's36', 's37', 's38', 's39', 's40', 's41', 's42'
sCnt = 's43'
MASK0 = 64
vLane, vL16, vT, vRSa, vRSb, vCSa, vCSb, vXo, vPG, vE6, vL2E, vNE = ['v%d' % i for i in range(12)]
ONES = 12
vStamp = 'v16'
def Wreg(mat, part, s):
    base = {('a', 'k'): ('a', 0), ('a', 'v'): ('a', 64), ('a', 'q'): ('a', 128), ('b', 'q'): ('a', 192), ('b', 'k'): ('v', 128), ('b', 'v'): ('v', 192)}[(mat, part)]
    return base[0], base[1] + 4 * s
def Wfrag(mat, part, s):
    k, b = Wreg(mat, part, s); return vr(b, 4, k)
PARTOFF = {'q': 0, 'k': 1024, 'v': 2048}
PARTI = {'q': 0, 'k': 1, 'v': 2}

def f2u(x):
    import struct
    return '0x%08x' % struct.unpack('<I', struct.pack('<f', x))[0]

def gen(profile=False, force_fb=False):
    a = Asm()
    uid = [0]
    def lab(n):
        uid[0] += 1; return f'L_{n}_{uid[0]}'
    def stamp(i):
        if not profile: return
        a('s_memtime s[96:97]' if profile == 'cyc' else 's_memrealtime s[96:97]')
        a(f's_lshl_b32 s98, {sL}, 4\ns_add_u32 s98, s98, {i}')
        a('s_waitcnt lgkmcnt(0)')
        a('s_mov_b32 m0, s98')
        a(f'v_writelane_b32 {vStamp}, s96, m0')
    def poll(vaddr, sbase, vtmp):
        lp = lab('poll')
        a(f's_mov_b32 {sCnt}, 0')
        a(f'{lp}:')
        a(f'buffer_load_dword {vtmp}, {vaddr}, {WS}, {sbase} offen sc1')
        a(f's_add_u32 {sCnt}, {sCnt}, 1\ns_cmp_ge_u32 {sCnt}, 0x8000\ns_cbranch_scc1 L_end')
        a('s_waitcnt vmcnt(0)')
        a(f'v_cmp_ne_u32 vcc, {sTag}, {vtmp}')
        a(f's_cbranch_vccnz {lp}')
    def publish(sflag, vt1, vt2):
        sk = lab('nofl')
        a(f'v_mov_b32 {vt1}, {sTag}\nv_mov_b32 {vt2}, 0')
        a('s_waitcnt vmcnt(0) lgkmcnt(0)\ns_barrier')
        a(f's_cmp_lg_u32 {sW}, 0\ns_cbranch_scc1 {sk}')
        a('s_mov_b64 exec, 1')
        a(f'buffer_store_dword {vt1}, {vt2}, {WS}, {sflag} offen sc1')
        a('s_mov_b64 exec, -1')
        a(f'{sk}:')

    a(f'.amdgcn_target "amdgcn-amd-amdhsa--gfx950"\n.text\n.globl {KNAME}\n.p2align 8\n.type {KNAME},@function\n{KNAME}:')
    if profile: a('s_memrealtime s[100:101]')
    a('s_cmp_ge_u32 s2, 256\ns_cbranch_scc1 L_end')
    a('s_load_dwordx16 s[44:59], s[0:1], 0\ns_load_dwordx2 s[60:61], s[0:1], 64')
    a(f's_and_b32 s3, s2, 7\ns_lshr_b32 s4, s2, 3\ns_lshr_b32 s5, s4, 3\ns_lshl_b32 s3, s3, 2\ns_add_u32 {sG}, s3, s5\ns_and_b32 {sJ}, s4, 7')
    a(f'v_lshrrev_b32 v1, 6, v0\nv_readfirstlane_b32 {sW}, v1\nv_and_b32 v0, 63, v0')
    a(f's_mov_b32 {sL}, 0')
    if profile: a(f'v_mov_b32 {vStamp}, 0')
    a(f'v_lshlrev_b32 {vL16}, 4, v0')
    a(f'v_add_u32 {vT}, {T}, {vL16}')
    a('v_and_b32 v20, 15, v0\nv_lshrrev_b32 v21, 4, v0')
    a('v_lshlrev_b32 v22, 10, v20\nv_lshl_add_u32 v22, v21, 4, v22')
    a('v_lshrrev_b32 v23, 3, v0\nv_and_b32 v24, 7, v0\nv_and_b32 v25, 1, v21\nv_lshlrev_b32 v25, 1, v25\nv_xor_b32 v24, v24, v25')
    a('v_xor_b32 v25, 4, v24\nv_lshlrev_b32 v24, 4, v24\nv_lshlrev_b32 v25, 4, v25')
    a('v_mul_u32_u24 v26, 3072, v23\nv_add_u32 v27, v26, v25\nv_add_u32 v26, v26, v24\nv_add_u32 v27, 24576, v27')
    a('v_lshl_add_u32 v17, v23, 10, v24\nv_lshl_add_u32 v18, v23, 10, v25\nv_add_u32 v18, 8192, v18')
    a('s_waitcnt lgkmcnt(0)')
    a(f's_load_dword {sEp}, s[60:61], 0')
    for base, src, nb in ((8, 44, 0x200000), (12, 46, 0x180000), (16, 48, 0x80000), (20, 52, 0x180000), (24, 54, 0x80000), (28, 56, 0x200000), (32, 60, WS_BYTES + (0x40000 if profile else 0))):
        a(f's_mov_b32 s{base}, s{src}\ns_mov_b32 s{base+1}, s{src+1}\ns_mov_b32 s{base+2}, {hex(nb)}\ns_mov_b32 s{base+3}, 0x20000')
    stamp(0)
    if profile:
        a(f'v_writelane_b32 {vStamp}, s100, 14')
        a(f's_lshl_b32 s3, s2, 2\ns_add_u32 s3, s3, 0x8000\nv_mov_b32 v40, s100\nv_mov_b32 v41, 0\nbuffer_store_dword v40, v41, {WS}, s3 offen sc1\ns_waitcnt vmcnt(0)')
    a(f's_lshl_b32 s3, {sG}, 16\ns_lshl_b32 s4, {sW}, 14\ns_add_u32 s3, s3, s4\ns_add_u32 s4, s4, {T}')
    for s in range(16):
        a(f's_add_u32 m0, s4, {s*1024 - s*64}')
        a(f'buffer_load_dwordx4 v22, {X0}, s3 offen offset:{s*64} lds')
    a(f's_mul_i32 s5, {sW}, {32*3072}\ns_lshl_b32 s6, {sJ}, 7\ns_add_u32 s5, s5, s6')
    a(f's_lshl_b32 s6, {sW}, 12')
    chunks = [(m, p, kq) for m in 'ab' for p in 'kvq' for kq in range(4)]
    slot = lambda n: [0, 16384, 32768, 49152, S][n % 5]
    def wdma(n):
        m, p, kq = chunks[n]
        for i in range(4):
            if i % 2 == 0: a(f's_add_u32 s7, s5, {(128*kq + 8*i)*3072 + PARTOFF[p]}')
            a(f's_add_u32 m0, s6, {slot(n) + i*1024}')
            a(f'buffer_load_dwordx4 {"v26" if i % 2 == 0 else "v27"}, {WA if m == "a" else WB}, s7 offen lds')
    for n in range(5): wdma(n)
    a(f'v_lshlrev_b32 {vRSa}, 4, v21\nv_lshlrev_b32 {vRSb}, 2, v20')
    a(f's_mul_i32 s3, {sW}, 192\ns_add_u32 s3, s3, {CS}')
    a(f'v_add_u32 {vCSa}, s3, {vRSa}\nv_add_u32 {vCSb}, s3, {vRSb}')
    a(f'v_add_u32 {vRSa}, {STAT}, {vRSa}\nv_add_u32 {vRSb}, {STAT}, {vRSb}')
    a(f's_lshr_b32 s3, {sW}, 1\ns_lshl_b32 s4, {sJ}, 1\ns_add_u32 s3, s3, s4\ns_lshl_b32 s3, s3, 10\ns_and_b32 s4, {sW}, 1\ns_lshl_b32 s4, s4, 9\ns_add_u32 s3, s3, s4')
    a(f'v_and_b32 v28, 1, v21\nv_lshlrev_b32 v28, 14, v28\nv_lshrrev_b32 v29, 5, v0\nv_lshl_add_u32 v28, v29, 8, v28\nv_lshl_add_u32 v28, v20, 4, v28\nv_add_u32 {vXo}, s3, v28')
    a(f'v_and_b32 {vPG}, 7, v0\nv_lshlrev_b32 {vPG}, 7, {vPG}')
    L2E = 1.4426950408889634
    a(f'v_mov_b32 {vE6}, {f2u(1e-6)}\nv_mov_b32 {vL2E}, {f2u(L2E)}\nv_mov_b32 {vNE}, {f2u(-1e-6*L2E)}')
    for i in range(4): a(f'v_mov_b32 v{ONES+i}, 0x3f803f80')
    a(f's_lshl_b32 {sGb}, {sG}, 20\ns_add_u32 {sGb}, {sGb}, {G0}')
    a('v_and_b32 v28, 31, v0\nv_lshlrev_b32 v29, 2, v29\nv_sub_u32 v28, v28, v29')
    for i in range(16):
        a(f'v_cmp_le_i32 s[{MASK0+2*i}:{MASK0+2*i+1}], {8*(i>>2) + (i&3)}, v28')
    a('v_lshrrev_b32 v28, 2, v20\nv_and_b32 v29, 3, v20')
    a('v_lshl_add_u32 v30, v21, 3, v28\nv_lshlrev_b32 v30, 7, v30\nv_lshl_add_u32 v30, v29, 3, v30')
    a(f'v_lshrrev_b32 v31, 1, v28\nv_and_b32 v32, 1, v21\nv_lshl_or_b32 v31, v32, 1, v31\nv_xor_b32 v31, {sW}, v31\nv_lshl_add_u32 v30, v31, 5, v30')
    a(f'v_add_u32 v33, {S}, v30')
    a('v_lshrrev_b32 v31, 1, v21\nv_lshlrev_b32 v31, 4, v31\nv_lshl_add_u32 v31, v32, 2, v31\nv_add_u32 v31, v31, v28\nv_lshlrev_b32 v31, 7, v31')
    a(f'v_and_b32 v28, 2, v28\nv_xor_b32 v29, v29, v28\nv_lshl_add_u32 v31, v29, 4, v31\ns_lshl_b32 s3, {sW}, 14\nv_add_u32 v19, s3, v31')
    a(f's_waitcnt lgkmcnt(0)\ns_add_u32 {sEp}, {sEp}, 1\ns_mul_i32 {sTag}, {sEp}, 0x9E3779B1')

    def stats_finalize(vs, vq, vaddr, t1, t2):
        a(f'v_mul_f32 {vs}, {f2u(1/512)}, {vs}')
        a(f'v_mul_f32 {t1}, {vs}, {vs}')
        a(f'v_fmamk_f32 {vq}, {vq}, {f2u(1/512)}, {vE6}')
        a(f'v_sub_f32 {vq}, {vq}, {t1}')
        a(f'v_max_f32 {vq}, {vq}, {vE6}')
        a(f'v_add_f32 {vq}, {f2u(1e-5 - 1e-6)}, {vq}')
        a(f'v_rsq_f32 {t1}, {vq}')
        a(f'v_mul_f32 {t2}, {vs}, {t1}\nv_sub_f32 {t2}, 0, {t2}')
        a(f'ds_write_b32 {vaddr}, {t1}\nds_write_b32 {vaddr}, {t2} offset:256')
    def quad_reduce(vs, vq, t):
        a(f'v_permlane32_swap_b32 {vs}, {vq}\nv_add_f32 {vs}, {vs}, {vq}')
        a(f'v_mov_b32 {t}, {vs}\nv_permlane16_swap_b32 {vs}, {t}\nv_add_f32 {vs}, {vs}, {t}')
    a('s_waitcnt vmcnt(20)')
    a(f's_lshl_b32 s3, {sW}, 14\nv_add_u32 v28, s3, {vT}')
    for s in range(16): a(f'ds_read_b128 {vr(40+4*s, 4)}, v28 offset:{s*1024}')
    a('v_mov_b32 v34, 0\nv_mov_b32 v35, 0\nv_mov_b32 v36, 0\nv_mov_b32 v37, 0')
    for r in range(64):
        a(f'v_dot2c_f32_bf16 v{34 + (r&1)}, v{40+r}, v{ONES}')
        a(f'v_dot2c_f32_bf16 v{36 + (r&1)}, v{40+r}, v{40+r}')
    a('v_add_f32 v34, v34, v35\nv_add_f32 v36, v36, v37')
    quad_reduce('v34', 'v36', 'v35')
    a('v_mov_b32 v36, v34\nv_permlane32_swap_b32 v34, v36')
    a(f's_lshl_b32 s3, {sW}, 6\nv_add_u32 v28, s3, {vRSb}')
    stats_finalize('v34', 'v36', 'v28', 'v35', 'v37')
    NCH = len(chunks)
    issued = 5
    for n in range(NCH):
        a(f's_waitcnt vmcnt({4*(issued - n - 1)}) lgkmcnt(0)\ns_barrier')
        if n >= 1 and issued < NCH:
            wdma(issued); issued += 1
        m, p, kq = chunks[n]
        for s2 in range(4):
            k, b = Wreg(m, p, 4*kq + s2)
            for hi in range(2):
                if slot(n) < 65536: a(f'ds_read_b64_tr_b16 {vr(b+2*hi, 2, k)}, v30 offset:{slot(n) + s2*4096 + hi*512}')
                else: a(f'ds_read_b64_tr_b16 {vr(b+2*hi, 2, k)}, v33 offset:{s2*4096 + hi*512}')
        if kq == 3:
            for s in range(16):
                a(f'v_mfma_f32_16x16x32_bf16 v[40:43], {vr(ONES,4)}, {Wfrag(m,p,s)}, {"0" if s == 0 else "v[40:43]"}')
            a(f'ds_write_b32 {vCSb}, v40 offset:{(0 if m == "a" else 768) + PARTI[p]*64}')
    a('s_waitcnt vmcnt(0) lgkmcnt(0)\ns_barrier')
    stamp(1)

    a('L_loop:')
    def wo_dma(srd):
        a(f's_lshl_b32 s3, {sW}, 17\ns_lshl_b32 s4, {sJ}, 7\ns_add_u32 s3, s3, s4\ns_lshl_b32 s4, {sW}, 14')
        for i in range(16):
            if i % 2 == 0 and i: a(f's_add_u32 s3, s3, 16384')
            a(f's_add_u32 m0, s4, {WO + i*1024}')
            a(f'buffer_load_dwordx4 {"v17" if i % 2 == 0 else "v18"}, {srd}, s3 offen lds')
    def wo_convert(base):
        for s2 in range(4):
            for t in range(4):
                for hi in range(2):
                    a(f'ds_read_b64_tr_b16 {vr(base + 16*s2 + 4*t + 2*hi, 2)}, v19 offset:{s2*4096 + hi*1024 + ((t>>1)^hi)*64 + (t&1)*8}')
        a(f's_lshl_b32 s3, {sW}, 14\nv_add_u32 v{base+64}, s3, {vL16}')
        a('s_waitcnt lgkmcnt(0)')
        for i in range(16):
            a(f'ds_write_b128 v{base+64}, {vr(base + 4*i, 4)} offset:{WO + i*1024}')
    XR = 68
    def gemm_pass(mat, tiles, parts, acc, swap):
        reads = [(t, s) for s in range(16) for t in tiles]
        nring = 8; pre = 6
        rd = lambda n: f'ds_read_b128 {vr(XR + 4*(n % nring), 4)}, {vT} offset:{(reads[n][0]*16 + reads[n][1])*1024}'
        for n in range(pre): a(rd(n))
        for n, (t, s) in enumerate(reads):
            x = vr(XR + 4*(n % nring), 4)
            for p in parts:
                d = vr(acc[(p, t)], 4); w = Wfrag(mat, p, s)
                A, B = (w, x) if swap[p] else (x, w)
                a(f'v_mfma_f32_16x16x32_bf16 {d}, {A}, {B}, {"0" if s == 0 else d}')
            if n + pre < len(reads): a(rd(n + pre))
    def phi(r, rs, b, t):
        a(f'v_fma_f32 {r}, {r}, {rs}, {b}')
        a(f'v_fma_f32 {t}, {r}, {vL2E}, {vNE}')
        a(f'v_exp_f32_e64 {t}, {t} clamp')
        a(f'v_max_f32 {r}, {r}, {vE6}')
        a(f'v_add_f32 {r}, {r}, {t}')
    def epi_d(acc, t, cs, dst, do_phi, tmp):
        for r in range(4):
            if do_phi:
                a(f'v_fma_f32 v{tmp+8}, v{tmp+4+r}, {cs}, {vE6}')
                phi(f'v{acc+r}', f'v{tmp+r}', f'v{tmp+8}', f'v{tmp+9}')
            else:
                a(f'v_mul_f32 v{tmp+8}, v{tmp+4+r}, {cs}')
                a(f'v_fma_f32 v{acc+r}, v{acc+r}, v{tmp+r}, v{tmp+8}')
        a(f'v_cvt_pk_bf16_f32 v{dst}, v{acc}, v{acc+1}\nv_cvt_pk_bf16_f32 v{dst+1}, v{acc+2}, v{acc+3}')
    def epi_t(acc, rs, mr, cs4, dst, do_phi, tmp):
        for r in range(4):
            if do_phi:
                a(f'v_fma_f32 v{tmp}, {mr}, v{cs4+r}, {vE6}')
                phi(f'v{acc+r}', rs, f'v{tmp}', f'v{tmp+1}')
            else:
                a(f'v_mul_f32 v{tmp}, {mr}, v{cs4+r}')
                a(f'v_fma_f32 v{acc+r}, v{acc+r}, {rs}, v{tmp}')
        a(f'v_cvt_pk_bf16_f32 v{dst}, v{acc}, v{acc+1}\nv_cvt_pk_bf16_f32 v{dst+1}, v{acc+2}, v{acc+3}')
    acc = {('k', 0): 20, ('v', 0): 24, ('k', 1): 28, ('v', 1): 32, ('k', 2): 36, ('v', 2): 40, ('k', 3): 44, ('v', 3): 48,
           ('q', 0): 52, ('q', 1): 56, ('q', 2): 60, ('q', 3): 64}
    OA = [28, 44]
    QF = [20, 24]

    a(f's_bitcmp1_b32 {sL}, 0\ns_cbranch_scc1 L_B')
    wo_dma(WOA)
    if profile == 'cyc': stamp(14)
    sw = {'k': False, 'v': False, 'q': True}
    gemm_pass('a', [0, 1], 'kv', acc, sw)
    gemm_pass('a', [2, 3], 'kv', acc, sw)
    stamp(2)
    a(f'ds_read_b32 v100, {vCSb} offset:{64}\nds_read_b32 v101, {vCSb} offset:{128}')
    for t in range(4):
        a(f'ds_read_b128 v[104:107], {vRSa} offset:{t*64}\nds_read_b128 v[108:111], {vRSa} offset:{256 + t*64}')
        epi_d(acc[('k', t)], t, 'v100', 68 + 2*t, True, 104)
        epi_d(acc[('v', t)], t, 'v101', 76 + 2*t, False, 104)
    a(f'v_mfma_f32_16x16x32_bf16 v[84:87], v[68:71], v[76:79], 0')
    a(f'v_mfma_f32_16x16x32_bf16 v[88:91], v[68:71], {vr(ONES,4)}, 0')
    a(f'v_mfma_f32_16x16x32_bf16 v[84:87], v[72:75], v[80:83], v[84:87]')
    a(f'v_mfma_f32_16x16x32_bf16 v[88:91], v[72:75], {vr(ONES,4)}, v[88:91]')
    a(f's_lshr_b32 s3, {sL}, 1\ns_mul_i32 s4, s3, {KVA_I}\ns_lshl_b32 s5, {sJ}, 2\ns_add_u32 s5, s5, {sW}\ns_mul_i32 s5, s5, {32*640}\ns_add_u32 s4, s4, s5\ns_add_u32 s4, s4, {KVA0}')
    a(f's_lshl_b32 s3, s3, 15\ns_lshl_b32 s5, {sJ}, 12\ns_add_u32 s3, s3, s5\ns_add_u32 s6, s3, {FA0}')
    a(f's_lshl_b32 s3, {sG}, 7\ns_add_u32 s7, s6, s3')
    a(f's_mul_i32 s3, {sG}, 640\ns_add_u32 s5, s4, s3')
    a('v_lshrrev_b32 v97, 5, v0\nv_and_b32 v98, 15, v0\nv_lshlrev_b32 v98, 4, v98\nv_lshl_add_u32 v96, v97, 8, v98')
    a('v_lshlrev_b32 v97, 4, v97\nv_add_u32 v97, 512, v97\nv_and_b32 v99, 16, v0\nv_cmp_eq_u32 vcc, 0, v99\nv_cndmask_b32 v96, v97, v96, vcc')
    a('v_cvt_pk_bf16_f32 v92, v84, v85\nv_cvt_pk_bf16_f32 v93, v86, v87\nv_cvt_pk_bf16_f32 v94, v88, v89\nv_cvt_pk_bf16_f32 v95, v90, v91')
    a('v_permlane16_swap_b32 v92, v94\nv_permlane16_swap_b32 v93, v95')
    a('s_mov_b32 exec_lo, 0x1ffff\ns_mov_b32 exec_hi, 0x1ffff')
    a(f'buffer_store_dwordx4 v[92:95], v96, {WS}, s5 offen sc1')
    a('s_mov_b64 exec, -1')
    publish('s7', 'v100', 'v101')
    stamp(3)
    gemm_pass('a', [0, 1, 2, 3], 'q', acc, sw)
    if profile == 'cyc': stamp(15)
    a(f'ds_read_b128 v[100:103], {vCSa} offset:0')
    for t in range(4):
        a(f'ds_read_b32 v104, {vRSb} offset:{t*64}\nds_read_b32 v105, {vRSb} offset:{256 + t*64}')
        epi_t(acc[('q', t)], 'v104', 'v105', 100, 20 + 2*t, True, 106)
    for u in range(2):
        a(f'v_permlane16_swap_b32 v{QF[u]}, v{QF[u]+2}\nv_permlane16_swap_b32 v{QF[u]+1}, v{QF[u]+3}')
    if profile == 'cyc': stamp(6)
    wo_convert(28)
    a('v_and_b32 v104, 15, v0\nv_lshrrev_b32 v105, 1, v0\nv_and_b32 v105, 8, v105\nv_sub_u32 v104, v104, v105')
    a('v_mov_b32 v106, 0x3f80\nv_mov_b32 v107, 0x3f800000')
    for i in range(4):
        a(f'v_cmp_eq_u32 vcc, {2*i}, v104\nv_cndmask_b32 v{100+i}, 0, v106, vcc')
        a(f'v_cmp_eq_u32 vcc, {2*i+1}, v104\nv_cndmask_b32 v{100+i}, v{100+i}, v107, vcc')
    a('v_lshrrev_b32 v106, 5, v0\nv_mul_u32_u24 v106, 640, v106\nv_and_b32 v107, 31, v0\nv_lshl_add_u32 v104, v107, 4, v106')
    a('v_and_b32 v108, 15, v0\nv_mul_u32_u24 v108, 1280, v108\nv_add_u32 v105, v106, v108\nv_and_b32 v108, 16, v0\nv_add3_u32 v105, v105, v108, 64\nv_add_u32 v105, 448, v105')
    a('v_lshlrev_b32 v106, 7, v107')
    stamp(4)
    poll('v106', 's6', 'v107')
    stamp(5)
    a(f'buffer_load_dwordx4 v[108:111], v105, {WS}, s4 offen sc1')
    for i in range(16):
        if i % 3 == 0 and i: a(f's_add_u32 s4, s4, {3*1280}')
        a(f'buffer_load_dwordx4 {vr(28+4*i,4)}, v104, {WS}, s4 offen offset:{(i%3)*1280} sc1')
    a('v_mfma_f32_16x16x32_bf16 v[116:119], v[100:103], v[108:111], 0')
    for sh in (8, 4, 2, 1):
        for r in range(4):
            a(f'v_add_f32_dpp v{116+r}, v{116+r}, v{116+r} row_ror:{sh} row_mask:0xf bank_mask:0xf')
    for i in range(16):
        a(f'v_mfma_f32_16x16x32_bf16 v[112:115], v[100:103], {vr(28+4*i,4)}, {"0" if i == 0 else "v[112:115]"}')
    a('v_cvt_pk_bf16_f32 v122, v116, v117\nv_cvt_pk_bf16_f32 v123, v118, v119')
    a('v_cvt_pk_bf16_f32 v120, v112, v113\nv_cvt_pk_bf16_f32 v121, v114, v115')
    a('v_permlane16_swap_b32 v120, v122\nv_permlane16_swap_b32 v121, v123')
    for u in range(2):
        a(f'v_mfma_f32_32x32x16_bf16 {vr(OA[u],16)}, v[120:123], {vr(QF[u],4)}, 0')
    for u in range(2):
        a(f'v_add_f32 v{OA[u]+8}, v{OA[u]+8}, {vE6}')
    a('s_branch L_common')

    a('L_B:')
    wo_dma(WOB)
    sw = {'k': True, 'v': False, 'q': True}
    gemm_pass('b', [0, 1], 'kv', acc, sw)
    gemm_pass('b', [2, 3], 'kv', acc, sw)
    stamp(2)
    a(f'ds_read_b128 v[100:103], {vCSa} offset:{768+64}\nds_read_b32 v116, {vCSb} offset:{768+128}')
    for t in range(4):
        a(f'ds_read_b128 v[104:107], {vRSa} offset:{t*64}\nds_read_b128 v[108:111], {vRSa} offset:{256 + t*64}')
        a(f'ds_read_b32 v114, {vRSb} offset:{t*64}\nds_read_b32 v115, {vRSb} offset:{256 + t*64}')
        epi_d(acc[('v', t)], t, 'v116', 76 + 2*t, False, 104)
        epi_t(acc[('k', t)], 'v114', 'v115', 100, 68 + 2*t, False, 112)
    for u in range(2):
        a(f'v_permlane16_swap_b32 v{68+4*u}, v{70+4*u}\nv_permlane16_swap_b32 v{69+4*u}, v{71+4*u}')
        a(f'v_permlane32_swap_b32 v{76+4*u}, v{78+4*u}\nv_permlane32_swap_b32 v{77+4*u}, v{79+4*u}')
    a(f's_lshr_b32 s3, {sL}, 1\ns_lshl_b32 s4, s3, 17\ns_lshl_b32 s5, {sJ}, 2\ns_add_u32 s5, s5, {sW}\ns_lshl_b32 s5, s5, 12\ns_add_u32 s4, s4, s5\ns_add_u32 s4, s4, {oKVB}')
    a(f's_lshl_b32 s3, s3, 10\ns_lshl_b32 s5, {sJ}, 7\ns_add_u32 s3, s3, s5\ns_add_u32 s6, s3, {oFL + 7*0x400}')
    a(f's_add_u32 s5, s4, {sGb}\ns_add_u32 s7, s6, {sGb}')
    a(f's_mul_i32 s3, {sW}, {2*TS}\ns_add_u32 s3, s3, {OWN}\nv_add_u32 v100, s3, {vL16}')
    for u in range(2):
        a(f'buffer_store_dwordx4 {vr(68+4*u,4)}, {vL16}, {WS}, s5 offen offset:{u*2048} sc1')
        a(f'buffer_store_dwordx4 {vr(76+4*u,4)}, {vL16}, {WS}, s5 offen offset:{u*2048+1024} sc1')
        a(f'ds_write_b128 v100, {vr(68+4*u,4)} offset:{u*TS}\nds_write_b128 v100, {vr(76+4*u,4)} offset:{u*TS+1024}')
    publish('s7', 'v101', 'v102')
    stamp(3)
    gemm_pass('b', [0, 1, 2, 3], 'q', acc, sw)
    if profile == 'cyc': stamp(14)
    a(f'ds_read_b128 v[100:103], {vCSa} offset:768')
    QS = 0.25 * L2E
    for t in range(4):
        a(f'ds_read_b32 v104, {vRSb} offset:{t*64}\nds_read_b32 v105, {vRSb} offset:{256 + t*64}')
        a(f'v_mul_f32 v104, {f2u(QS)}, v104\nv_mul_f32 v105, {f2u(QS)}, v105')
        epi_t(acc[('q', t)], 'v104', 'v105', 100, 20 + 2*t, False, 106)
    for u in range(2):
        a(f'v_permlane16_swap_b32 v{QF[u]}, v{QF[u]+2}\nv_permlane16_swap_b32 v{QF[u]+1}, v{QF[u]+3}')
    wo_convert(28)
    a('s_waitcnt lgkmcnt(0)\ns_barrier')
    if profile == 'cyc': stamp(15)
    a(f's_mul_i32 s44, {sW}, {8*TS}\ns_add_u32 s44, s44, {KVN}')
    a(f's_mul_i32 s45, {sW}, {2*TS}\ns_add_u32 s45, s45, {OWN - 8*TS}')
    a(f'v_mov_b32 v100, s44\nv_mov_b32 v101, s45\nv_cmp_gt_u32 vcc, 8, v0\nv_cndmask_b32 v100, v101, v100, vcc')
    a(f'v_mul_u32_u24 v101, {TS}, v0\nv_add_u32 v100, v100, v101')
    a(f's_lshl_b32 s3, {sG}, 1\ns_sub_i32 s46, 8, s3')
    a(f'v_cmp_le_i32 vcc, s46, v0\nv_cndmask_b32 v104, 0, v{ONES}, vcc\nv_mov_b32 v105, v104\nv_mov_b32 v106, v104\nv_mov_b32 v107, v104')
    a('s_mov_b64 exec, 0x3ff\nds_write_b128 v100, v[104:107] offset:2048\ns_mov_b64 exec, -1')
    vK, vVa, vVb = 'v120', 'v121', 'v122'
    a('v_lshrrev_b32 v100, 5, v0\nv_and_b32 v101, 15, v0\nv_lshlrev_b32 v101, 4, v101\nv_lshl_add_u32 v100, v100, 8, v101\nv_add_u32 v100, 1024, v100\nv_add_u32 v101, 512, v100')
    a(f'v_mov_b32 v102, 2048\nv_and_b32 v103, 16, v0\nv_cmp_eq_u32 vcc, 0, v103\nv_cndmask_b32 v100, v102, v100, vcc\nv_cndmask_b32 v101, v102, v101, vcc')
    a(f'v_add_u32 {vK}, s45, {vL16}\nv_add_u32 {vVa}, s45, v100\nv_add_u32 {vVb}, s45, v101')
    CB, SB, KB, VB = 60, [76, 92], 108, 112
    NEG = f2u(-1e30)
    def rdK(kt): return f'ds_read_b128 {vr(KB,4)}, {vK} offset:{kt*TS}'
    def rdV(kt): return [f'ds_read_b128 {vr(VB,4)}, {vVa} offset:{kt*TS}', f'ds_read_b128 {vr(VB+4,4)}, {vVb} offset:{kt*TS}']
    def qk(u, sb, c): return f'v_mfma_f32_32x32x16_bf16 {vr(sb,16)}, {vr(KB,4)}, {vr(QF[u],4)}, {c}'
    def pv(u, sb, h, init=False): return f'v_mfma_f32_32x32x16_bf16 {vr(OA[u],16)}, {vr(VB+4*h,4)}, {vr(sb+8*h,4)}, {"0" if init else vr(OA[u],16)}'
    def expcvt(sb, h):
        o = [f'v_exp_f32 v{sb+8*h+i}, v{sb+8*h+i}' for i in range(8)]
        c = [f'v_cvt_pk_bf16_f32 v{sb+8*h+i}, v{sb+8*h+2*i}, v{sb+8*h+2*i+1}' for i in range(4)]
        return o, c
    vM = ['v123', 'v124']
    a(f'v_mov_b32 v125, {NEG}')
    for u in range(2):
        kt = 8 + u; sb = SB[u]
        a(rdK(kt)); a.extend(rdV(kt))
        a(qk(u, sb, '0'))
        for i in range(16): a(f'v_cndmask_b32 v{sb+i}, v125, v{sb+i}, s[{MASK0+2*i}:{MASK0+2*i+1}]')
        a(f'v_max_f32 {vM[u]}, v{sb}, v{sb+1}')
        for i in range(7): a(f'v_max3_f32 {vM[u]}, {vM[u]}, v{sb+2+2*i}, v{sb+3+2*i}')
        a(f'v_mov_b32 v126, {vM[u]}\nv_permlane32_swap_b32 {vM[u]}, v126\nv_max_f32 {vM[u]}, {vM[u]}, v126')
        if force_fb: a(f'v_subrev_f32 {vM[u]}, {f2u(200.0)}, {vM[u]}')
        for i in range(16): a(f'v_sub_f32 v{sb+i}, v{sb+i}, {vM[u]}')
        for h in range(2):
            e, c = expcvt(sb, h); a.extend(e); a.extend(c); a(pv(u, sb, h, init=(h == 0)))
    def fillC(u):
        for i in range(16): a(f'v_sub_f32 v{CB+i}, 0, {vM[u]}')
    def run_tiles(u, tiles, far):
        C = vr(CB, 16)
        a(rdK(tiles[0])); a.extend(rdV(tiles[0]))
        a(qk(u, SB[0], C))
        if len(tiles) > 1: a(rdK(tiles[1]))
        pend = []
        for n, kt in enumerate(tiles):
            sb = SB[n % 2]
            e0, c0 = expcvt(sb, 0); e1, c1 = expcvt(sb, 1)
            if n == 0 and len(tiles) > 1:
                a(qk(u, SB[1], C))
                if len(tiles) > 2: a(rdK(tiles[2]))
            if kt == far:
                for i in range(16): a(f'v_cndmask_b32 v{sb+i}, v{sb+i}, v125, s[{MASK0+2*i}:{MASK0+2*i+1}]')
            a.extend(e0[:2]); a.extend(pend); pend = []
            a.extend(e0[2:]); a.extend(e1[:1]); a.extend(c0); a.extend(e1[1:3])
            a(pv(u, sb, 0))
            a.extend(e1[3:]); a.extend(c1)
            pend = [pv(u, sb, 1)]
            if n + 1 < len(tiles): pend += rdV(tiles[n+1])
            if n + 2 < len(tiles):
                pend.append(qk(u, sb, C))
                if n + 3 < len(tiles): pend.append(rdK(tiles[n+3]))
        a.extend(pend)
    fillC(1)
    run_tiles(1, [8], None)
    a(f's_sub_u32 s3, s44, s45\nv_add_u32 {vK}, s3, {vK}\nv_add_u32 {vVa}, s3, {vVa}\nv_add_u32 {vVb}, s3, {vVb}')
    a(f'v_and_b32 v126, 3, v0\nv_sub_u32 v126, {sG}, v126\nv_subrev_u32 v126, 1, v126\nv_cmp_gt_i32 vcc, 0, v126\nv_mov_b32 v127, {sG}\nv_cndmask_b32 v126, v126, v127, vcc\nv_lshlrev_b32 v126, 20, v126')
    a(f's_add_u32 s6, s6, {G0}')
    stamp(4)
    poll('v126', 's6', 'v127')
    stamp(5)
    for i in range(1, 5):
        a(f's_cmp_ge_u32 {sG}, {i}\ns_cselect_b32 s3, 0, 0x40000000\ns_cselect_b32 s7, {i << 20}, 0\ns_sub_u32 s7, s5, s7\nv_add_u32 v126, s3, {vL16}')
        for u in range(2):
            kt = 8 - 2*i + u
            a(f's_add_u32 m0, s44, {kt*TS - u*2048}')
            a(f'buffer_load_dwordx4 v126, {WS}, s7 offen offset:{u*2048} sc1 lds')
            a(f'buffer_load_dwordx4 v126, {WS}, s7 offen offset:{u*2048+1024} sc1 lds')
    a('s_waitcnt vmcnt(0)')
    stamp(6)
    run_tiles(1, [7, 6, 5, 4, 3, 2, 1], 1)
    fillC(0)
    run_tiles(0, [7, 6, 5, 4, 3, 2, 1, 0], 0)
    for u in range(2):
        o = OA[u]
        a(f'v_add_f32 v126, abs(v{o}), v{o+8}')
        for i in range(1, 8): a(f'v_add_f32 v126, abs(v{o+i}), v126')
        a(f'v_cmp_nlt_f32 vcc, v126, abs(v125)' if u == 0 else f'v_cmp_nlt_f32 s[46:47], v126, abs(v125)')
        if u == 0: a('s_mov_b64 s[48:49], vcc')
    a('s_or_b64 s[46:47], s[46:47], s[48:49]\ns_cbranch_scc1 L_fallback')
    a('L_fbdone:')

    a('L_common:')
    stamp(7)
    a(f's_lshl_b32 s3, {sL}, 16\ns_add_u32 s4, s3, {sGb}')
    a(f's_lshl_b32 s3, {sL}, 10\ns_add_u32 s3, s3, {sGb}\ns_add_u32 s6, s3, {oFL}')
    a(f's_lshl_b32 s3, {sJ}, 7\ns_add_u32 s7, s6, s3\ns_add_u32 s5, s4, 32768')
    for u in range(2):
        o = OA[u]
        a(f'v_rcp_f32 v{o+8}, v{o+8}')
        for i in range(8): a(f'v_mul_f32 v{o+i}, v{o+i}, v{o+8}')
        for i in range(4): a(f'v_cvt_pk_bf16_f32 v{o+10+i}, v{o+2*i}, v{o+2*i+1}')
        a(f'buffer_store_dwordx4 {vr(o+10,4)}, {vXo}, {WS}, {"s4" if u == 0 else "s5"} offen sc1')
    publish('s7', 'v100', 'v101')
    stamp(8)
    a(f'v_and_b32 v108, 15, v0\nv_lshlrev_b32 v108, 10, v108\nv_lshrrev_b32 v109, 4, v0\nv_lshl_add_u32 v108, v109, 4, v108')
    a(f's_lshl_b32 s3, {sG}, 16\ns_lshl_b32 s5, {sW}, 14\ns_add_u32 s3, s3, s5\ns_lshl_b32 s7, {sJ}, 7\ns_add_u32 s50, s3, s7')
    a(f's_lshl_b32 s7, {sJ}, 11\ns_add_u32 s5, s5, s7\ns_add_u32 s51, s5, s4\ns_add_u32 s51, s51, {oXX}')
    a(f's_cmp_lg_u32 {sL}, 0\ns_cbranch_scc1 L_res1')
    a(f'buffer_load_dwordx4 v[100:103], v108, {X0}, s50 offen\nbuffer_load_dwordx4 v[104:107], v108, {X0}, s50 offen offset:64')
    a('s_branch L_res2\nL_res1:')
    a(f's_sub_u32 s3, s51, 0x10000')
    a(f'buffer_load_dwordx4 v[100:103], {vL16}, {WS}, s3 offen sc1\nbuffer_load_dwordx4 v[104:107], {vL16}, {WS}, s3 offen offset:1024 sc1')
    a('L_res2:\ns_waitcnt vmcnt(0)')
    for i in range(8):
        a(f'v_lshlrev_b32 v{20+2*i}, 16, v{100+i}\nv_and_b32 v{21+2*i}, 0xffff0000, v{100+i}')
    WR = 100; nring = 6
    rdw = lambda n: f'ds_read_b128 {vr(WR + 4*(n % nring), 4)}, {vL16} offset:{WO + n*1024}'
    a(f'v_mov_b32 v126, v108')
    for n in range(nring - 1): a(rdw(n))
    a(f's_lshl_b32 s3, {sW}, 14\ns_add_u32 s5, s4, s3')
    poll(vPG, 's6', 'v127')
    stamp(9)
    for s in range(16):
        if s % 4 == 0 and s: a('s_add_u32 s5, s5, 4096')
        a(f'buffer_load_dwordx4 {vr(36+4*s,4)}, {vL16}, {WS}, s5 offen offset:{(s%4)*1024} sc1')
    for n in range(64):
        s, t = n >> 2, n & 3
        d = vr(20+4*t, 4)
        a(f'v_mfma_f32_16x16x32_bf16 {d}, {vr(WR + 4*(n % nring), 4)}, {vr(36+4*s,4)}, {d}')
        if n + nring - 1 < 64: a(rdw(n + nring - 1))
    for i in range(8): a(f'v_cvt_pk_bf16_f32 v{36+i}, v{20+2*i}, v{21+2*i}')
    stamp(10)
    a(f's_cmp_eq_u32 {sL}, 3\ns_cbranch_scc1 L_final')
    a(f'buffer_store_dwordx4 v[36:39], {vL16}, {WS}, s51 offen sc1\nbuffer_store_dwordx4 v[40:43], {vL16}, {WS}, s51 offen offset:1024 sc1')
    a('v_mov_b32 v44, 0\nv_mov_b32 v45, 0\nv_mov_b32 v46, 0\nv_mov_b32 v47, 0')
    for r in range(8):
        a(f'v_dot2c_f32_bf16 v{44 + (r&1)}, v{36+r}, v{ONES}')
        a(f'v_dot2c_f32_bf16 v{46 + (r&1)}, v{36+r}, v{36+r}')
    a('v_add_f32 v44, v44, v45\nv_add_f32 v46, v46, v47')
    quad_reduce('v44', 'v46', 'v45')
    a(f's_lshl_b32 s3, {sL}, 12\ns_add_u32 s3, s3, {sGb}\ns_add_u32 s52, s3, {oST}')
    a(f's_lshl_b32 s3, {sJ}, 9\ns_lshl_b32 s5, {sW}, 7\ns_add_u32 s3, s3, s5\ns_add_u32 s3, s3, s52')
    a('v_and_b32 v48, 15, v0\nv_lshlrev_b32 v48, 3, v48\nv_lshrrev_b32 v49, 5, v0\nv_lshl_add_u32 v48, v49, 2, v48')
    a('s_mov_b32 exec_lo, 0xffff\ns_mov_b32 exec_hi, 0xffff')
    a(f'buffer_store_dword v44, v48, {WS}, s3 offen sc1')
    a('s_mov_b64 exec, -1')
    a(f's_add_u32 s6, s6, {4*0x400}\ns_lshl_b32 s3, {sJ}, 7\ns_add_u32 s7, s6, s3')
    publish('s7', 'v100', 'v101')
    stamp(11)
    a(f's_lshl_b32 s3, {sW}, 13\ns_add_u32 s4, s4, {oXX}\ns_add_u32 s4, s4, s3\ns_add_u32 s5, s3, {T}')
    a('v_lshlrev_b32 v48, 3, v0')
    poll(vPG, 's6', 'v127')
    stamp(12)
    for jj in range(8): a(f'buffer_load_dwordx2 {vr(100+2*jj,2)}, v48, {WS}, s52 offen offset:{jj*512} sc1')
    for hf in range(2):
        for q in range(2):
            off = hf*32768 + q*4096
            a(f's_add_u32 m0, s5, {off}\ns_add_u32 s3, s4, {off}')
            for i in range(4): a(f'buffer_load_dwordx4 {vL16}, {WS}, s3 offen offset:{i*1024} sc1 lds')
    for jj in range(1, 8): a(f'v_add_f32 v100, v100, v{100+2*jj}\nv_add_f32 v101, v101, v{101+2*jj}')
    a(f'v_lshlrev_b32 v48, 2, v0\nv_add_u32 v48, {STAT}, v48')
    stats_finalize('v100', 'v101', 'v48', 'v102', 'v103')
    a('s_waitcnt vmcnt(0) lgkmcnt(0)\ns_barrier')
    stamp(13)
    a(f's_add_u32 {sL}, {sL}, 1\ns_branch L_loop')

    a('L_final:')
    a(f'buffer_store_dwordx4 v[36:39], v126, {OUT}, s50 offen\nbuffer_store_dwordx4 v[40:43], v126, {OUT}, s50 offen offset:64')
    a(f's_or_b32 s3, s2, {sW}\ns_cmp_lg_u32 s3, 0\ns_cbranch_scc1 L_noep')
    a(f'v_mov_b32 v44, {sEp}\nv_mov_b32 v45, 0\ns_mov_b64 exec, 1\nbuffer_store_dword v44, v45, {WS}, 0 offen\ns_mov_b64 exec, -1')
    a('L_noep:')
    if profile:
        a('s_waitcnt vmcnt(0)')
        stamp(11)
        a(f's_lshl_b32 s3, s2, 2\ns_add_u32 s3, s3, {sW}\ns_lshl_b32 s3, s3, 8\ns_add_u32 s3, s3, {STAMP0}\nv_lshlrev_b32 v45, 2, v0')
        a(f'buffer_store_dword {vStamp}, v45, {WS}, s3 offen')
        amp = [x for x in sys.argv if x.startswith('amp=')]
        if amp:
            i0, i1, wg = map(int, amp[0][4:].split(','))
            a(f's_cmp_lg_u32 s2, {wg}\ns_cbranch_scc1 L_end\ns_cmp_lg_u32 {sW}, 0\ns_cbranch_scc1 L_end')
            a(f's_mov_b32 s3, 0x8000\nbuffer_load_dwordx4 v[40:43], {vL16}, {WS}, s3 offen sc1\ns_waitcnt vmcnt(0)\nv_min_u32 v40, v40, v41\nv_min_u32 v42, v42, v43\nv_min_u32 v40, v40, v42\ns_mov_b32 s4, -1')
            for l in range(64): a(f'v_readlane_b32 s5, v40, {l}\ns_min_u32 s4, s4, s5')
            a(f'v_writelane_b32 {vStamp}, s4, 15\ns_nop 4')
            a(f'v_readlane_b32 s4, {vStamp}, {i0}\nv_readlane_b32 s5, {vStamp}, {i1}\nv_readlane_b32 s6, {vStamp}, 59\ns_nop 3\ns_sub_u32 s5, s5, s4\ns_lshl_b32 s5, s5, 3\ns_min_u32 s5, s5, 100000')
            a('L_amp:\ns_memrealtime s[96:97]\ns_waitcnt lgkmcnt(0)\ns_sub_u32 s7, s96, s6\ns_cmp_lt_u32 s7, s5\ns_cbranch_scc1 L_amp')
        if 'dbg' in sys.argv:
            a(f's_cmp_lg_u32 s2, 255\ns_cbranch_scc1 L_end\ns_cmp_lg_u32 {sW}, 0\ns_cbranch_scc1 L_end')
            a('s_load_dwordx2 s[44:45], s[0:1], 56\ns_waitcnt lgkmcnt(0)\ns_mov_b32 s46, 256\ns_mov_b32 s47, 0x20000')
            sel = [0, 1, 3, 5, 9, 13, 16+5, 16+7, 16+9, 16+13, 32+5, 32+9, 32+13, 48+5, 48+9, 48+11]
            a(f'v_readlane_b32 s4, {vStamp}, 0\nv_mov_b32 v46, 0')
            for n, i in enumerate(sel):
                a(f'v_readlane_b32 s5, {vStamp}, {i}\ns_nop 1\ns_sub_u32 s5, s5, s4')
                if n == 0: a(f's_mov_b32 s5, {sEp}')
                a(f'v_writelane_b32 v46, s5, {n}')
            a('buffer_store_dword v46, v45, s[44:47], 0 offen')
    a('L_end:\ns_endpgm')

    a('L_fallback:')
    a('s_nop 15')
    a(f's_lshl_b32 s3, {sG}, 1\ns_sub_i32 s46, 8, s3\ns_max_i32 s46, s46, 0')
    a('s_sub_u32 s47, s45, s44')
    for u in range(2):
        sb = SB[0]
        def tile_addr():
            a(f's_mul_i32 s3, s48, {TS}\ns_cmp_ge_u32 s48, 8\ns_cselect_b32 s7, s47, 0\ns_add_u32 s3, s3, s7')
            a(f'v_add_u32 v92, s3, {vK}\nv_add_u32 v93, s3, {vVa}\nv_add_u32 v94, s3, {vVb}')
        def scores():
            l1, l2 = lab('m'), lab('m')
            a(f'ds_read_b128 {vr(KB,4)}, v92\ns_waitcnt lgkmcnt(0)')
            a(qk(u, sb, '0'))
            a('s_nop 15')
            a(f's_cmp_lg_u32 s48, {8+u}\ns_cbranch_scc1 {l1}')
            for i in range(16): a(f'v_cndmask_b32 v{sb+i}, v125, v{sb+i}, s[{MASK0+2*i}:{MASK0+2*i+1}]')
            a(f'{l1}:\ns_cmp_lg_u32 s48, {u}\ns_cbranch_scc1 {l2}')
            for i in range(16): a(f'v_cndmask_b32 v{sb+i}, v{sb+i}, v125, s[{MASK0+2*i}:{MASK0+2*i+1}]')
            a(f'{l2}:')
        lp = lab('fb1')
        a(f's_max_i32 s48, s46, {u}\nv_mov_b32 {vM[u]}, v125')
        a(f'{lp}:')
        tile_addr(); scores()
        for i in range(8): a(f'v_max3_f32 {vM[u]}, {vM[u]}, v{sb+2*i}, v{sb+1+2*i}')
        a(f's_add_u32 s48, s48, 1\ns_cmp_le_u32 s48, {8+u}\ns_cbranch_scc1 {lp}')
        a(f'v_mov_b32 v126, {vM[u]}\nv_permlane32_swap_b32 {vM[u]}, v126\nv_max_f32 {vM[u]}, {vM[u]}, v126')
        for i in range(16): a(f'v_mov_b32 v{OA[u]+i}, 0')
        lp = lab('fb2')
        a(f's_max_i32 s48, s46, {u}')
        a(f'{lp}:')
        tile_addr(); scores()
        a(f'ds_read_b128 {vr(VB,4)}, v93\nds_read_b128 {vr(VB+4,4)}, v94')
        for i in range(16): a(f'v_sub_f32 v{sb+i}, v{sb+i}, {vM[u]}')
        a('s_waitcnt lgkmcnt(0)')
        for h in range(2):
            e, c = expcvt(sb, h); a.extend(e); a.extend(c); a(pv(u, sb, h))
        a('s_nop 15')
        a(f's_add_u32 s48, s48, 1\ns_cmp_le_u32 s48, {8+u}\ns_cbranch_scc1 {lp}')
    a('s_branch L_fbdone')

    a.auto_wait()
    nn = a.fix_hazards()
    bad = a.check_branch_hazards()
    for b in bad: print('BRANCH HAZARD', b, file=sys.stderr)
    hdr = f'; fused persistent kernel: 256 workgroups (one per CU), generated by work/gen*.py\n; @launch grid=(256,1,1) block=(256,1,1) lds={LDS_BYTES}\n'
    tail = f'''.section .rodata,"a"
.p2align 6
.amdhsa_kernel {KNAME}
  .amdhsa_next_free_vgpr 512
  .amdhsa_next_free_sgpr 102
  .amdhsa_accum_offset 256
  .amdhsa_group_segment_fixed_size 0
  .amdhsa_kernarg_size 72
  .amdhsa_user_sgpr_count 2
  .amdhsa_user_sgpr_kernarg_segment_ptr 1
  .amdhsa_system_sgpr_workgroup_id_x 1
.end_amdhsa_kernel
'''
    print('instructions', sum(1 for I in a.ins if I.kind not in ('label', 'dir')), 'nop states added', nn, file=sys.stderr)
    return hdr + a.text() + tail

if __name__ == '__main__':
    out = sys.argv[1]
    open(out, 'w').write(gen(profile=('cyc' if 'cyc' in sys.argv else 'profile' in sys.argv), force_fb='fb' in sys.argv))
```

```python
import re

REG_RE = re.compile(r'^(-?)(\|?)(?:abs\()?([vas])(\d+|\[(\d+):(\d+)\])\)?\|?$')

def regs_of(op):
    op = op.strip()
    if op in ('vcc',): return ['vcc']
    if op in ('exec',): return ['exec']
    if op in ('m0',): return ['m0']
    if op in ('vcc_lo', 'vcc_hi'): return ['vcc']
    if op in ('exec_lo', 'exec_hi'): return ['exec']
    m = REG_RE.match(op)
    if not m: return []
    k = m.group(3)
    if m.group(5) is not None:
        return [f'{k}{i}' for i in range(int(m.group(5)), int(m.group(6)) + 1)]
    return [f'{k}{int(m.group(4))}']

TRANS = ('v_exp_', 'v_log_', 'v_rcp_', 'v_rsq_', 'v_sqrt_', 'v_sin_', 'v_cos_')

class Ins:
    __slots__ = ('text', 'mn', 'ops', 'w', 'r', 'kind', 'srcc', 'ab', 'passes', 'mods', 'tag')
    def __init__(self, text, tag=None):
        self.text = text; self.tag = tag
        t = text.split(';')[0].strip()
        self.w = []; self.r = []; self.srcc = []; self.ab = []; self.passes = 0; self.mods = ''
        if t.endswith(':') or t.startswith('.') or not t:
            self.kind = 'label' if t.endswith(':') else 'dir'; self.mn = t; self.ops = []
            return
        p = t.split(None, 1)
        self.mn = mn = p[0]
        rest = p[1] if len(p) > 1 else ''
        ops = []; cur = ''; d = 0
        for ch in rest:
            if ch in '[(': d += 1
            if ch in '])': d -= 1
            if ch == ',' and d == 0: ops.append(cur.strip()); cur = ''
            else: cur += ch
        if cur.strip(): ops.append(cur.strip())
        if ops:
            last = ops[-1].split(None, 1)
            if len(last) > 1 and not mn.startswith('s_waitcnt'):
                ops[-1] = last[0]; self.mods = last[1]
        self.ops = ops
        R = [regs_of(o) for o in ops]
        flat = lambda l: [x for y in l for x in y]
        if mn.startswith('v_mfma'):
            self.kind = 'mfma'; self.w = R[0]; self.ab = R[1] + R[2]; self.srcc = R[3]; self.r = self.ab + self.srcc
            self.passes = 8 if '32x32' in mn else 4
        elif mn.startswith('v_'):
            self.kind = 'valu'
            if mn.startswith('v_permlane') and 'swap' in mn:
                self.w = R[0] + R[1]; self.r = R[0] + R[1]
            elif mn.startswith(('v_fmac', 'v_dot2c', 'v_pk_fmac', 'v_writelane')):
                self.w = R[0]; self.r = flat(R)
            elif mn.startswith(('v_add_co', 'v_sub_co', 'v_addc_co', 'v_subb_co', 'v_subrev_co')):
                self.w = R[0] + R[1]; self.r = flat(R[2:])
            elif mn.startswith('v_cmpx'):
                self.w = R[0] + ['exec']; self.r = flat(R[1:])
            elif mn == 'v_nop':
                pass
            else:
                self.w = R[0]; self.r = flat(R[1:])
                if 'dpp' in mn or 'sdwa' in mn: self.r = self.r + R[0]
        elif mn.startswith('ds_'):
            self.kind = 'ds'
            if mn.startswith(('ds_read', 'ds_bpermute', 'ds_permute', 'ds_swizzle')):
                self.w = R[0]; self.r = flat(R[1:])
            else:
                self.r = flat(R)
        elif mn.startswith(('buffer_', 'global_')):
            self.kind = 'vmem'
            mods = self.mods.split()
            if 'lds' in mods or '_lds_' in mn:
                self.r = flat(R) + ['m0']
            elif mn.startswith(('buffer_load', 'global_load')):
                self.w = R[0]; self.r = flat(R[1:])
            elif 'atomic' in mn and 'sc0' in mods:
                self.w = R[0]; self.r = flat(R)
            else:
                self.r = flat(R)
        elif mn.startswith(('s_load', 's_memtime', 's_memrealtime', 's_buffer_load')):
            self.kind = 'smem'; self.w = R[0]; self.r = flat(R[1:])
        elif mn.startswith('s_'):
            self.kind = 'salu'
            if mn.startswith(('s_cmp', 's_bitcmp', 's_cbranch', 's_branch', 's_waitcnt', 's_nop', 's_barrier', 's_endpgm', 's_sleep', 's_setprio', 's_setpc')):
                self.r = flat(R)
                if mn.startswith('s_cbranch_vcc'): self.r = ['vcc']
                if mn.startswith('s_cbranch_exec'): self.r = ['exec']
            elif 'saveexec' in mn:
                self.w = R[0] + ['exec']; self.r = flat(R[1:]) + ['exec']
            else:
                self.w = R[0]; self.r = flat(R[1:])
                if mn.startswith(('s_addk', 's_mulk', 's_cmov', 's_bitset')): self.r = flat(R)
        else:
            raise ValueError('unknown instr ' + text)
    def states(self):
        if self.kind in ('label', 'dir'): return 0
        if self.mn == 's_nop': return int(self.ops[0], 0) + 1
        return 1
    def is_trans(self): return self.mn.startswith(TRANS)
    def is_dpp(self): return 'dpp' in self.mn or 'row_' in self.mods or 'quad_perm' in self.mods
    def is_wide_store(self): return self.kind == 'vmem' and 'store' in self.mn and ('x3' in self.mn or 'x4' in self.mn)

def need_states(p, c):
    n = 0
    if p.kind in ('label', 'dir') or c.kind in ('label', 'dir'): return 0
    pw = set(p.w); cr = set(c.r); cw = set(c.w)
    isv = lambda s: {x for x in s if x[0] in 'va' and x != 'vcc'}
    iss = lambda s: {x for x in s if x[0] == 's' or x == 'vcc'}
    if p.kind == 'valu':
        vw = isv(pw); sw = iss(pw)
        if c.kind == 'mfma' and vw & cr: n = max(n, 2)
        if c.kind == 'valu':
            if c.mn.startswith('v_permlane') and vw & cr: n = max(n, 2)
            if c.is_dpp() and vw & cr: n = max(n, 2)
            if c.mn.startswith(('v_readfirstlane', 'v_readlane')) and vw & cr: n = max(n, 1)
            if p.is_trans() and not c.is_trans() and vw & cr: n = max(n, 1)
            if p.is_trans() and c.is_trans() and vw & cr: n = max(n, 1)
            if sw & cr: n = max(n, 4 if c.mn.startswith(('v_readlane', 'v_writelane')) else 2)
            if c.mn.startswith('v_cndmask') and 'vcc' in sw and len(c.ops) == 4 and c.ops[3] == 'vcc': n = max(n, 2)
            if p.mn.startswith('v_dot') and vw & (cr | cw):
                if not (c.mn == p.mn and not (vw & set(regs_of(c.ops[1]) + regs_of(c.ops[2])))): n = max(n, 3)
            if ('sdwa' in p.mn or 'op_sel' in p.mods) and not p.mn.startswith('v_pk') and vw & (cr | cw): n = max(n, 1)
        if p.mn.startswith('v_dot') and c.kind in ('vmem', 'ds', 'mfma') and vw & (cr | cw): n = max(n, 3)
        if p.is_trans() and c.kind in ('vmem', 'ds') and vw & cr: n = max(n, 1)
        if c.kind == 'vmem' and sw & cr: n = max(n, 5)
        if c.kind == 'salu' and sw & cr and p.mn.startswith(('v_readfirstlane', 'v_readlane')): n = max(n, 1)
        if 'exec' in pw: n = max(n, 5)
    if p.kind == 'mfma':
        big = p.passes == 8
        if c.kind == 'mfma':
            if pw & set(c.ab): n = max(n, 12 if big else 8)
            if pw & set(c.srcc):
                if not (p.w == c.srcc and p.passes == c.passes): n = max(n, 10 if big else 6)
            if pw & cw and not (p.w == c.w and p.passes == c.passes):
                n = max(n, 10 if big else 6)
        elif c.kind in ('valu', 'vmem', 'ds'):
            if pw & (cr | cw): n = max(n, 12 if big else 8)
            if c.kind == 'valu' and set(p.srcc) & cw: n = max(n, 7 if big else 3)
    if p.is_wide_store() and c.kind in ('valu', 'mfma'):
        if set(regs_of(p.ops[0])) & cw: n = max(n, 2)
    if p.kind == 'ds' and p.mn.startswith('ds_write_b128') and c.kind in ('valu', 'mfma'):
        if set(regs_of(p.ops[1])) & cw: n = max(n, 2)
    if p.kind == 'salu' and 'm0' in pw and c.kind == 'vmem' and 'm0' in cr: n = max(n, 1)
    return n

class Asm:
    def __init__(self):
        self.ins = []
    def __call__(self, text, tag=None):
        for line in text.split('\n'):
            line = line.strip()
            if line: self.ins.append(Ins(line, tag))
    def extend(self, lst):
        for x in lst:
            if isinstance(x, Ins): self.ins.append(x)
            else: self(x)

    def auto_wait(self):
        out = []; vm = []; lg = []; smem = False
        for I in self.ins:
            pseudo = False
            if I.kind == 'dir' and I.mn.startswith('.resetwait'):
                vm = []; lg = []; smem = False; continue
            if I.kind == 'dir' and I.mn.startswith('.waitfor'):
                pseudo = True
                I.r = []
                for x in I.mn.split()[1:]:
                    I.r += [x] if x.startswith('tok:') else regs_of(x)
            elif I.kind in ('label', 'dir'):
                out.append(I); continue
            if I.mn == 's_waitcnt':
                t = I.text.split(';')[0]
                m = re.search(r'vmcnt\((\d+)\)', t)
                if m:
                    n = int(m.group(1)); vm = vm[len(vm) - n:] if n < len(vm) else vm
                    if n == 0: vm = []
                m = re.search(r'lgkmcnt\((\d+)\)', t)
                if m:
                    n = int(m.group(1))
                    if n == 0: lg = []; smem = False
                    elif not smem: lg = lg[len(lg) - n:] if n < len(lg) else lg
                out.append(I); continue
            touch = set(I.r) | set(I.w)
            nv = nl = None
            for k in range(len(vm) - 1, -1, -1):
                if vm[k] & touch:
                    if I.kind == 'vmem' and not (vm[k] & set(I.r)): continue
                    nv = len(vm) - 1 - k; break
            for k in range(len(lg) - 1, -1, -1):
                if lg[k] & touch:
                    if I.kind == 'ds' and not smem and not (lg[k] & set(I.r)): continue
                    nl = 0 if smem else len(lg) - 1 - k; break
            if nv is not None or nl is not None:
                parts = []
                if nv is not None:
                    nv = min(nv, 62); parts.append(f'vmcnt({nv})'); vm = vm[len(vm) - nv:] if nv else []
                if nl is not None:
                    nl = min(nl, 14); parts.append(f'lgkmcnt({nl})'); lg = lg[len(lg) - nl:] if nl else []
                    if nl == 0: smem = False
                out.append(Ins('s_waitcnt ' + ' '.join(parts), 'auto'))
            if pseudo: continue
            out.append(I)
            tk = {I.tag} if I.tag and I.tag.startswith('tok:') else set()
            if I.tag == 'nocount': continue
            if I.kind == 'vmem': vm.append(set(I.w) | tk)
            elif I.kind == 'ds': lg.append(set(I.w) | tk)
            elif I.kind == 'smem': lg.append(set(I.w)); smem = True
        self.ins = out

    def fix_hazards(self):
        out = []; added = 0
        for I in self.ins:
            if I.kind not in ('label', 'dir'):
                need = 0; dist = 0
                for P in reversed(out):
                    if dist >= 20: break
                    if P.kind in ('label', 'dir'): continue
                    if P.mn in ('s_branch', 's_endpgm', 's_setpc_b64'): break
                    n = need_states(P, I) - dist
                    if n > need: need = n
                    dist += P.states()
                while need > 0:
                    k = min(need, 16); out.append(Ins(f's_nop {k-1}', 'haz')); need -= k; added += k
            out.append(I)
        self.ins = out
        return added

    def check_branch_hazards(self):
        lab = {I.mn[:-1]: k for k, I in enumerate(self.ins) if I.kind == 'label'}
        bad = []
        for k, I in enumerate(self.ins):
            if I.mn.startswith(('s_cbranch', 's_branch')):
                tgt = lab[I.ops[0]]
                before = []; d = 0
                for P in reversed(self.ins[:k + 1]):
                    if P.kind in ('label', 'dir'): continue
                    before.append((P, d)); d += P.states()
                    if d > 20: break
                d2 = 0
                for C in self.ins[tgt:]:
                    if C.kind in ('label', 'dir'): continue
                    for P, dp in before:
                        if need_states(P, C) > dp + d2: bad.append((P.text, C.text, I.text))
                    d2 += C.states()
                    if d2 > 20 or C.mn in ('s_branch', 's_endpgm'): break
        return bad

    def text(self):
        return '\n'.join(('' if I.kind == 'label' or I.kind == 'dir' else '    ') + I.text for I in self.ins) + '\n'

def interleave(main, fill, per=2, start=0):
    out = []; f = list(fill)
    for k, m in enumerate(main):
        out.append(m)
        if k >= start:
            for _ in range(per):
                if f: out.append(f.pop(0))
    return out + f

def vr(b, n=1, k='v'):
    return f'{k}{b}' if n == 1 else f'{k}[{b}:{b+n-1}]'

def slots(x):
    t = x.text if isinstance(x, Ins) else x
    if t.startswith('.resetwait') or t.endswith(':'): return 0
    return 2 if t.startswith(TRANS) else 1

def weave(main, fill, budget=2):
    txt = lambda x: x.text if isinstance(x, Ins) else x
    ism = lambda x: txt(x).startswith('v_mfma')
    nm = sum(ism(x) for x in main)
    f = list(fill); out = []; k = 0; i = 0
    n = len(main)
    while i < n:
        x = main[i]; out.append(x); i += 1
        if not ism(x): continue
        k += 1
        forced = []
        while i < n and not ism(main[i]): forced.append(main[i]); i += 1
        used = sum(slots(y) for y in forced)
        rem_f = sum(slots(y) for y in f if not isinstance(y, tuple))
        rem_forced = used + sum(slots(y) for y in main[i:] if not ism(y))
        gaps = nm - k + 1
        target = max(budget, -(-(rem_f + rem_forced) // gaps))
        pre = []
        while f and used < target:
            if isinstance(f[0], tuple):
                if k < f[0][1]: break
                f.pop(0); continue
            if ism(f[0]):
                pre.append(f.pop(0)); used -= budget; continue
            if used + slots(f[0]) > target and used > 0 and target == budget: break
            used += slots(f[0]); pre.append(f.pop(0))
        head = [y for y in forced if txt(y).startswith(('ds_read', 'buffer_load'))]
        if head == forced[:len(head)]:
            out += head + pre + forced[len(head):]
        else:
            out += pre + forced
    return out + [y for y in f if not isinstance(y, tuple)]
```

```python
import sys, struct
from asmlib import Asm, Ins, vr, weave

KNAME = 'interleave_layers__linear_attn_block__sliding_block__prompt_kernel'
WO = 0; T = 65536; S = 131072
TS = 2064
KVN = T
OWN = S + 512
STAT = S + 17024
CS = S + 17536
RES = S + 19072
LDS_BYTES = 163840
KVA0 = 0x10000; KVA_I = 0xA0000
FA0 = 0x150000
G0 = 0x200000
oXO = 0; oXX = 0x40000; oST = 0x70000; oFL = 0x78000; oFB = 0x7a000; oKVB = 0x80000
WS_BYTES = 0x2200000
STAMP0 = 0x2200000
OOB = 0x4000000
X0, WA, WOA, WB, WOB, OUT, WS = 's[8:11]', 's[12:15]', 's[16:19]', 's[20:23]', 's[24:27]', 's[28:31]', 's[32:35]'
sG, sJ, sW, sTag, sL, sGb, sEp, sCnt = ['s%d' % i for i in range(36, 44)]
sW14, sWsrc, sW12, sWoSrc, sXoLd, sXxSt, sRow, sFl, sFlOwn, sFast, sKVA, sFA, sKVB, sFB, sKVN, sOwn = ['s%d' % i for i in range(44, 60)]
sNb = ['s60', 's61', 's62', 's63']
MASK0 = 64
vLane, vL16, vT, vRSa, vRSb, vCSa, vCSb, vXo, vPG, vWoD, vWoR, vXs, vStamp = ['v%d' % i for i in range(13)]
NE, E6, L2Er, ONES = 13, 14, 15, 16
L2E = 1.4426950408889634
def Wreg(mat, part, s):
    base = {('a', 'k'): ('a', 0), ('a', 'v'): ('a', 64), ('a', 'q'): ('a', 128), ('b', 'q'): ('a', 192), ('b', 'k'): ('v', 128), ('b', 'v'): ('v', 192)}[(mat, part)]
    return base[0], base[1] + 4 * s
def Wfrag(mat, part, s):
    k, b = Wreg(mat, part, s); return vr(b, 4, k)
PARTOFF = {'q': 0, 'k': 1024, 'v': 2048}
PARTI = {'q': 0, 'k': 1, 'v': 2}
def f2u(x): return '0x%08x' % struct.unpack('<I', struct.pack('<f', x))[0]
def M16(d, A, B, C): return f'v_mfma_f32_16x16x32_bf16 {d}, {A}, {B}, {C}'
def M32(d, A, B, C): return f'v_mfma_f32_32x32x16_bf16 {d}, {A}, {B}, {C}'
def pk(op, dst, *srcs):
    ops = []; lo = []; hi = []
    for s in srcs:
        if isinstance(s, tuple):
            n = s[1]; ops.append(vr(n & ~1, 2)); lo.append(n & 1); hi.append(n & 1)
        else:
            assert s % 2 == 0; ops.append(vr(s, 2)); lo.append(0); hi.append(1)
    assert dst % 2 == 0
    f = lambda l: '[' + ','.join(map(str, l)) + ']'
    return f'v_pk_{op}_f32 {vr(dst,2)}, ' + ', '.join(ops) + f' op_sel:{f(lo)} op_sel_hi:{f(hi)}'
def cvt(d, s): return f'v_cvt_pk_bf16_f32 v{d}, v{s}, v{s+1}'
def sw16(x, y): return f'v_permlane16_swap_b32 v{x}, v{y}'
def sw32(x, y): return f'v_permlane32_swap_b32 v{x}, v{y}'
def tok(text, name): return Ins(text, 'tok:' + name)
def lines(s): return [x.strip() for x in s.split('\n') if x.strip()]

def gen(opt):
    profile = opt.get('profile'); reuse = opt.get('reuse', 0)
    a = Asm(); ool = Asm()
    uid = [0]
    def lab(n):
        uid[0] += 1; return f'L_{n}_{uid[0]}'
    def stamp(L, i):
        if not profile: return
        a('s_memtime s[96:97]' if profile == 'cyc' else 's_memrealtime s[96:97]')
        a('s_waitcnt lgkmcnt(0)')
        a(f'v_writelane_b32 {vStamp}, s96, {16*L+i}')
    def poll_start(vaddr, sbase, vtmp, off=0):
        return f'buffer_load_dword {vtmp}, {vaddr}, {WS}, {sbase} offen offset:{off} sc1'
    def poll_finish(vaddr, sbase, vtmp, off=0, cmp=None):
        r, c = lab('retry'), lab('chk')
        a(f's_branch {c}\n{r}:')
        a(Ins(poll_start(vaddr, sbase, vtmp, off), 'nocount').text, 'nocount')
        a(f's_add_u32 {sCnt}, {sCnt}, 1\ns_cmp_ge_u32 {sCnt}, 0x20000\ns_cbranch_scc1 L_end')
        a(f'{c}:\ns_waitcnt vmcnt(0)')
        a.extend(cmp or [f'v_cmp_ne_u32 vcc, {sTag}, {vtmp}'])
        a(f's_cbranch_vccnz {r}')
    def fast_stores(stores):
        s, b = lab('slow'), lab('back')
        a(f's_cbranch_scc1 {s}')
        for x in stores: a.ins.append(x if isinstance(x, Ins) else Ins(x))
        a(f'{b}:')
        ool(f'{s}:')
        for x in stores: ool((x.text if isinstance(x, Ins) else x) + ' sc1')
        ool(f's_branch {b}')
    XO = lambda L: oXO + (0 if reuse else L * 0x10000)
    XX = lambda L: (0 if reuse else L * 0x10000)
    ST = lambda L: oST + (0 if reuse else L * 0x1000)

    def w_addr(E, O, R, t):
        o = lines(f'''v_lshrrev_b32 v{t}, 3, v0
        v_and_b32 v{t+1}, 7, v0
        v_lshrrev_b32 v{t+2}, 3, v0
        v_and_b32 v{t+2}, 2, v{t+2}
        v_xor_b32 v{t+1}, v{t+1}, v{t+2}
        v_mul_u32_u24 v{t}, 3072, v{t}
        v_lshl_add_u32 v{E}, v{t+1}, 4, v{t}
        v_xor_b32 v{O}, 64, v{E}
        v_add_u32 v{O}, 24576, v{O}''')
        o += lines(f'''v_lshrrev_b32 v{t}, 4, v0
        v_bfe_u32 v{t+1}, v0, 2, 2
        v_lshl_add_u32 v{t}, v{t}, 3, v{t+1}
        v_and_b32 v{t+1}, 3, v0
        v_lshlrev_b32 v{t+1}, 3, v{t+1}
        v_lshl_add_u32 v{t}, v{t}, 7, v{t+1}
        v_bfe_u32 v{t+1}, v0, 3, 2
        v_xor_b32 v{t+1}, {sW}, v{t+1}
        v_lshl_add_u32 v{R}, v{t+1}, 5, v{t}''')
        return o
    def w_dma(m, p, kq, slot, E, O, name):
        o = []
        for i in range(4):
            o.append(f's_add_u32 m0, {sW12}, {slot + i*1024}')
            if i % 2 == 0: o.append(f's_add_u32 s7, {sWsrc}, {(128*kq + 8*i)*3072 + PARTOFF[p]}')
            o.append(tok(f'buffer_load_dwordx4 v{E if i % 2 == 0 else O}, {WA if m == "a" else WB}, s7 offen lds', name))
        return o
    def w_read(m, p, kq, R, off):
        o = []
        for s2 in range(4):
            k, b = Wreg(m, p, 4*kq + s2)
            for hi in range(2): o.append(f'ds_read_b64_tr_b16 {vr(b+2*hi, 2, k)}, v{R} offset:{off + s2*4096 + hi*512}')
        return o
    def cs_mfma(m, p, d, lo=0, hi=16):
        return [M16(vr(d,4), vr(ONES,4), Wfrag(m,p,s), '0' if s == 0 else vr(d,4)) for s in range(lo, hi)]
    def cs_write(m, p, d): return f'ds_write_b32 {vCSb}, v{d} offset:{(0 if m == "a" else 768) + PARTI[p]*64}'
    def consts(): return [f'v_mov_b32 v{E6}, {f2u(1e-6)}', f'v_mov_b32 v{L2Er}, {f2u(L2E)}', f'v_mov_b32 v{NE}, {f2u(-1e-6*L2E)}'] + ones()
    def ones(): return [f'v_mov_b32 v{ONES+i}, 0x3f803f80' for i in range(4)]
    def stats_fin(vs, vq, vaddr, t1):
        return lines(f'''v_mul_f32 v{vs}, {f2u(-1/512)}, v{vs}
        v_mul_f32 v{vq}, {f2u(1/512)}, v{vq}
        v_fma_f32 v{vq}, -v{vs}, v{vs}, v{vq}
        v_max_f32 v{vq}, 0, v{vq}
        v_add_f32 v{vq}, {f2u(1e-5)}, v{vq}
        v_rsq_f32 v{t1}, v{vq}
        v_mul_f32 v{vs}, v{vs}, v{t1}''') + [tok(f'ds_write2st64_b32 v{vaddr}, v{t1}, v{vs} offset0:0 offset1:1', 'stw')]

    a(f'.amdgcn_target "amdgcn-amd-amdhsa--gfx950"\n.text\n.globl {KNAME}\n.p2align 8\n.type {KNAME},@function\n{KNAME}:')
    if profile: a('s_memtime s[100:101]' if profile == 'cyc' else 's_memrealtime s[100:101]')
    a('s_cmp_ge_u32 s2, 256\ns_cbranch_scc1 L_end')
    a('s_load_dwordx16 s[64:79], s[0:1], 0\ns_load_dwordx2 s[80:81], s[0:1], 64')
    a('s_lshr_b32 s4, s2, 3')
    if opt.get('codepf', 1):
        a('s_getpc_b64 s[82:83]\nL_pc0:')
        a('v_lshrrev_b32 v1, 6, v0\nv_lshl_add_u32 v1, s4, 2, v1\nv_and_b32 v2, 3, v0\nv_lshl_add_u32 v1, v1, 2, v2\nv_lshlrev_b32 v1, 7, v1')
        a('v_min_u32 v1, L_codeend-L_pc0-4, v1')
        a('global_load_dword v127, v1, s[82:83]')
    a(f's_and_b32 s3, s2, 7\ns_lshr_b32 s5, s4, 3\ns_lshl_b32 s3, s3, 2\ns_add_u32 {sG}, s3, s5\ns_and_b32 {sJ}, s4, 7')
    a(f'v_lshrrev_b32 v2, 6, v0\nv_and_b32 v0, 63, v0\nv_readfirstlane_b32 {sW}, v2')
    if profile: a(f'v_mov_b32 {vStamp}, 0')
    a(f'v_lshlrev_b32 {vL16}, 4, v0')
    a('v_lshrrev_b32 v22, 2, v0\nv_and_b32 v23, 3, v0\nv_lshrrev_b32 v24, 4, v0\nv_and_b32 v24, 2, v24\nv_xor_b32 v23, v23, v24\nv_lshlrev_b32 v22, 10, v22\nv_lshl_add_u32 v118, v23, 4, v22')
    WE, WOd, WR = 124, 125, 126
    wa = w_addr(WE, WOd, WR, 24)
    a.extend(wa[:9])
    a(f's_lshl_b32 {sW14}, {sW}, 14\ns_lshl_b32 {sW12}, {sW}, 12\ns_lshl_b32 s6, {sJ}, 7')
    a(f's_mul_i32 {sWsrc}, {sW}, {32*3072}\ns_add_u32 {sWsrc}, {sWsrc}, s6')
    a(f's_lshl_b32 s3, {sG}, 16\ns_add_u32 s3, s3, {sW14}\ns_add_u32 {sRow}, s3, s6\ns_add_u32 s5, {sW14}, {T}')
    a(f's_lshl_b32 s84, s4, 2\ns_add_u32 s84, s84, {sW}\ns_mul_i32 s84, s84, 12288')
    a('v_and_b32 v27, 3, v0\nv_mul_u32_u24 v27, 3072, v27\nv_bfe_u32 v28, v0, 2, 1\nv_lshl_add_u32 v27, v28, 10, v27')
    a('s_waitcnt lgkmcnt(0)')
    def srd(base, src, nb): a(f's_mov_b32 s{base}, s{src}\ns_mov_b32 s{base+1}, s{src+1}\ns_mov_b32 s{base+2}, {hex(nb)}\ns_mov_b32 s{base+3}, 0x20000')
    srd(8, 64, 0x200000); srd(12, 66, 0x180000)
    if opt.get('pf3', 1): a(f's_mov_b64 exec, 0xff\nbuffer_load_dword v127, v27, {WA}, s84 offen offset:1408\ns_mov_b64 exec, -1')
    def x_dma(kq):
        o = []
        for s in range(4*kq, 4*kq+4):
            o += [f's_add_u32 m0, s5, {s*1024 - s*64}', tok(f'buffer_load_dwordx4 v118, {X0}, s3 offen offset:{s*64} lds', f'x{kq}')]
        return o
    ring = [('a','k',0),('a','v',0),('a','k',1),('a','v',1),('a','k',2),('a','v',2),('a','k',3),('a','v',3),('a','q',0),('a','q',1),('a','q',2),('a','q',3),('b','k',0)]
    slot = lambda n: [0, 16384, 32768, 49152, S][n % 5]
    rd = lambda n: w_dma(*ring[n], slot(n), WE, WOd, f'r{n}')
    a.extend(x_dma(0)); a.extend(rd(0))
    a(f's_load_dword {sEp}, s[80:81], 0')
    srd(16, 68, 0x80000); srd(20, 72, 0x180000); srd(24, 74, 0x80000); srd(28, 76, 0x200000); srd(32, 80, WS_BYTES + (0x40000 if profile else 0))
    a.extend(rd(1))
    if profile: a(f'v_writelane_b32 {vStamp}, s100, 0')
    stamp(0, 1)
    a.extend(wa[9:])
    a(f'v_add_u32 v123, {S}, v{WR}')
    a('v_and_b32 v20, 15, v0\nv_lshrrev_b32 v21, 4, v0')
    a(f'v_lshlrev_b32 {vRSa}, 4, v21\nv_lshlrev_b32 {vRSb}, 2, v20')
    a(f's_mul_i32 s6, {sW}, 192\ns_add_u32 s6, s6, {CS}')
    a(f'v_add_u32 {vCSa}, s6, {vRSa}\nv_add_u32 {vCSb}, s6, {vRSb}\nv_add_u32 {vRSa}, {STAT}, {vRSa}\nv_add_u32 {vRSb}, {STAT}, {vRSb}')
    a(f'v_lshrrev_b32 v23, 2, v20\nv_and_b32 v23, 2, v23\nv_xor_b32 v24, v21, v23\nv_lshlrev_b32 v24, 4, v24\nv_lshl_add_u32 v24, v20, 6, v24\nv_add_u32 {vT}, {T}, v24')
    a(f'v_add_u32 v122, {sW14}, {vT}')
    a(f'v_and_b32 v25, 1, v21\nv_lshrrev_b32 v26, 1, v21\nv_lshl_add_u32 v27, v25, 1, v26\nv_lshlrev_b32 v28, 4, v20\nv_lshl_add_u32 {vXs}, v27, 8, v28')
    a(f'v_xor_b32 v27, v27, v23\nv_lshlrev_b32 v27, 4, v27\nv_lshl_add_u32 v27, v20, 6, v27\ns_lshl_b32 s6, {sJ}, 11\ns_add_u32 s7, s6, s5\nv_add_u32 v121, s7, v27')
    a(f's_lshl_b32 {sGb}, {sG}, 20\ns_add_u32 {sGb}, {sGb}, {G0}\ns_add_u32 {sXoLd}, {sGb}, {sW14}\ns_add_u32 {sXxSt}, {sXoLd}, s6\ns_add_u32 {sXxSt}, {sXxSt}, {oXX}')
    a(f's_lshl_b32 s6, {sJ}, 2\ns_add_u32 s6, s6, {sW}\ns_lshl_b32 s7, s6, 9')
    a(f'v_lshl_add_u32 v27, v25, 14, v28\nv_lshl_add_u32 v27, v26, 8, v27\nv_add_u32 {vXo}, s7, v27')
    a(f's_mul_i32 {sKVA}, s6, {32*640}\ns_add_u32 {sKVA}, {sKVA}, {KVA0}')
    a(f's_lshl_b32 {sKVB}, s6, 12\ns_add_u32 {sKVB}, {sKVB}, {sGb}\ns_add_u32 {sKVB}, {sKVB}, {oKVB}')
    a(f's_lshl_b32 {sFB}, s6, 7\ns_add_u32 {sFB}, {sFB}, {oFB}')
    a(f's_lshl_b32 {sFA}, {sJ}, 12\ns_add_u32 {sFA}, {sFA}, {FA0}')
    a(f's_add_u32 {sFl}, {sGb}, {oFL}\ns_lshl_b32 s6, {sJ}, 2\ns_add_u32 {sFlOwn}, {sFl}, s6\ns_cmp_eq_u32 {sW}, 0\ns_cselect_b32 {sFlOwn}, {sFlOwn}, {OOB}')
    a(f's_lshl_b32 {sWoSrc}, {sW}, 17\ns_lshl_b32 s6, {sJ}, 7\ns_add_u32 {sWoSrc}, {sWoSrc}, s6')
    a(f's_mul_i32 {sKVN}, {sW}, {8*TS}\ns_add_u32 {sKVN}, {sKVN}, {KVN}\ns_mul_i32 {sOwn}, {sW}, {2*TS}\ns_add_u32 {sOwn}, {sOwn}, {OWN - 8*TS}')
    for i in range(4):
        a(f's_sub_u32 s6, {sKVB}, {(i+1) << 20}\ns_cmp_gt_u32 {sG}, {i}\ns_cselect_b32 {sNb[i]}, s6, {OOB}')
    a(f's_mov_b32 {sCnt}, 0\ns_mov_b32 {sL}, 0')
    a(f'v_and_b32 {vPG}, 7, v0\nv_lshlrev_b32 v27, 4, {vPG}\nv_lshlrev_b32 {vPG}, 2, {vPG}\nv_lshrrev_b32 v29, 3, v0\nv_lshl_add_u32 {vWoD}, v29, 12, v27')
    a(f'v_bfe_u32 v27, v0, 2, 2\nv_lshl_add_u32 v29, v26, 2, v25\nv_lshl_add_u32 v29, v27, 3, v29\nv_lshlrev_b32 v29, 7, v29\nv_lshl_add_u32 v29, v27, 5, v29\nv_and_b32 v27, 3, v0\nv_lshl_add_u32 {vWoR}, v27, 3, v29')
    a.extend(consts())
    a.extend(x_dma(1))
    a(f's_waitcnt lgkmcnt(0)\ns_add_u32 {sEp}, {sEp}, 1\ns_mul_i32 {sTag}, {sEp}, 0x9E3779B1')
    a('v_and_b32 v28, 31, v0\nv_lshlrev_b32 v29, 2, v26\nv_sub_u32 v28, v28, v29')
    for i in range(16): a(f'v_cmp_le_i32 s[{MASK0+2*i}:{MASK0+2*i+1}], {8*(i>>2) + (i&3)}, v28')
    a(f's_getreg_b32 s6, hwreg(HW_REG_XCC_ID, 0, 4)\ns_add_u32 s6, s6, {sTag}\nv_mov_b32 v117, s6')
    a(f'v_mov_b32 v29, {OOB}\nv_cmp_eq_u32 vcc, 0, v0\nv_cndmask_b32 v120, v29, v0, vcc')
    xccst = [f'buffer_store_dword v117, v120, {WS}, {sFlOwn} offen offset:256 sc1']
    a.extend(rd(2)); a.extend(rd(3))
    acc0 = lambda p, t: 20 + 8*t + (0 if p == 'k' else 4)
    XR0 = 52
    GR, SM, CK, CV, OT = 84, 88, 92, 96, 100
    later = {0: (x_dma(2) + x_dma(3) + rd(4), rd(5)), 1: (rd(6), rd(7) + rd(8) + xccst), 2: ([], rd(9) + rd(10)), 3: ([], rd(11) + rd(12))}
    for kq in range(4):
        xs = {0: 'tok:x0', 1: 'tok:x1', 2: 'tok:x2 tok:x3', 3: ''}[kq]
        a(f'.waitfor {xs} tok:r{2*kq} tok:r{2*kq+1} tok:stw\ns_barrier')
        if kq == 3: stamp(0, 2)
        for n in (2*kq, 2*kq+1):
            a.extend(w_read(*ring[n], WR if slot(n) < 65536 else 123, slot(n) if slot(n) < 65536 else 0))
        reads = [(t, s) for s in range(4*kq, 4*kq+4) for t in range(4)]
        rdx = lambda n: f'ds_read_b128 {vr(XR0 + 4*(n % 8), 4)}, {vT} offset:{(reads[n][0]*16 + reads[n][1])*1024}'
        own = {0: range(0, 4), 1: range(4, 8), 2: range(8, 16), 3: []}[kq]
        main = [rdx(n) for n in range(6)]
        main += cs_mfma('a', 'k', CK, 4*kq, 4*kq+4) + cs_mfma('a', 'v', CV, 4*kq, 4*kq+4)
        main += ['s_barrier']
        st = []
        for h in range(0, len(own), 4):
            st += [f'ds_read_b128 {vr(OT + 4*i, 4)}, v122 offset:{s*1024}' for i, s in enumerate(list(own)[h:h+4])]
            for i, s in enumerate(list(own)[h:h+4]):
                x = vr(OT + 4*i, 4)
                st += [M16(vr(GR,4), x, x, '0' if s == 0 else vr(GR,4)), M16(vr(SM,4), vr(ONES,4), x, '0' if s == 0 else vr(SM,4))]
        body = []
        for n, (t, s) in enumerate(reads):
            x = vr(XR0 + 4*(n % 8), 4)
            if n % 2 == 0: body.append(f'.waitfor {vr(XR0 + 4*((n+1) % 8), 4)}')
            for p in 'kv':
                d = vr(acc0(p, t), 4); body.append(M16(d, x, Wfrag('a', p, s), '0' if s == 0 else d))
            if n + 6 < 16: body.append(rdx(n + 6))
        a.extend(weave(main, later[kq][0][:14]))
        fill = later[kq][0][14:] + later[kq][1]
        if kq == 2:
            a.extend(weave(st, fill[:10])); fill = fill[10:]
            fin = lines(f'''v_and_b32 v116, 3, v0
            v_cmp_eq_u32 vcc, 1, v116
            v_cndmask_b32 v{GR}, v{GR}, v{GR+1}, vcc
            v_cmp_eq_u32 vcc, 2, v116
            v_cndmask_b32 v{GR}, v{GR}, v{GR+2}, vcc
            v_cmp_eq_u32 vcc, 3, v116
            v_cndmask_b32 v{GR}, v{GR}, v{GR+3}, vcc
            s_lshl_b32 s6, {sW}, 6
            v_add_u32 v117, s6, {vRSb}
            v_bfe_u32 v116, v0, 2, 2
            v_lshrrev_b32 v118, 4, v0
            v_cmp_eq_u32 vcc, v116, v118
            v_mov_b32 v116, {LDS_BYTES - 1024}
            v_cndmask_b32 v117, v116, v117, vcc''') + stats_fin(SM, GR, 117, 116)
            res = [f'ds_read_b128 v[100:103], v121', f'ds_read_b128 v[104:107], v121 offset:1024', f's_lshl_b32 s6, {sW}, 11', f's_add_u32 s6, s6, {RES}', f'v_add_u32 v119, s6, {vL16}',
                   'ds_write_b128 v119, v[100:103]', 'ds_write_b128 v119, v[104:107] offset:1024']
            a.extend(weave(body, fill + [('at', 6)] + res[:5] + fin + res[5:]))
        elif kq == 3:
            pre = [cs_write('a', 'k', CK), cs_write('a', 'v', CV)]
            for t in range(2): pre += [f'ds_read_b128 {vr(100+8*t,4)}, {vRSa} offset:{t*64}', f'ds_read_b128 {vr(104+8*t,4)}, {vRSa} offset:{256+t*64}']
            a.extend(weave(body, fill + pre))
        else:
            a.extend(weave(body + st, fill))
    PK, VV, KVr, Zr = 80, 88, 96, 100
    def epi_A_pk(K, V, RS, MR, B, csk, csv, t):
        o = []
        o += [pk('fma', B+i, MR+i, ('b', csk), ('b', E6)) for i in (0, 2)]
        o += [pk('mul', MR+i, MR+i, ('b', csv)) for i in (0, 2)]
        o2 = [pk('fma', K+i, K+i, RS+i, B+i) for i in (0, 2)]
        o2 += [pk('fma', V+i, V+i, RS+i, MR+i) for i in (0, 2)]
        o2 += [pk('fma', B+i, K+i, ('b', L2Er), ('b', NE)) for i in (0, 2)]
        o2 += [f'v_exp_f32_e64 v{B+i}, v{B+i} clamp' for i in range(4)]
        o2 += [f'v_max_f32 v{K+i}, v{K+i}, v{E6}' for i in range(4)]
        o2 += [cvt(VV+2*t, V), cvt(VV+2*t+1, V+2)]
        o2 += [pk('add', K+i, K+i, B+i) for i in (0, 2)]
        o2 += [cvt(PK+2*t, K), cvt(PK+2*t+1, K+2)]
        return o, o2
    a(f'v_mov_b32 v116, v{CK}\nv_mov_b32 v117, v{CV}')
    for t in range(2, 4): a(f'ds_read_b128 {vr(52+8*(t-2),4)}, {vRSa} offset:{t*64}\nds_read_b128 {vr(56+8*(t-2),4)}, {vRSa} offset:{256+t*64}')
    for t in range(4):
        rs = (100 + 8*t) if t < 2 else (52 + 8*(t-2))
        o, o2 = epi_A_pk(acc0('k', t), acc0('v', t), rs, rs+4, 68, 116, 117, t)
        a.extend(o + o2)
    def kv_mfma(h): return [M16(vr(KVr,4), vr(PK+4*h,4), vr(VV+4*h,4), '0' if h == 0 else vr(KVr,4)), M16(vr(Zr,4), vr(PK+4*h,4), vr(ONES,4), '0' if h == 0 else vr(Zr,4))]
    def kvst_addr(d, t):
        return lines(f'''v_lshrrev_b32 v{t}, 5, v0
        v_and_b32 v{t+1}, 31, v0
        v_lshlrev_b32 v{d}, 4, v{t+1}
        v_lshl_add_u32 v{d}, v{t}, 8, v{d}
        v_lshlrev_b32 v{t}, 4, v{t}
        v_add_u32 v{t}, 512, v{t}
        v_cmp_eq_u32 vcc, 16, v{t+1}
        v_cndmask_b32 v{d}, v{d}, v{t}, vcc
        v_mov_b32 v{t}, {OOB}
        v_cmp_lt_u32 vcc, 16, v{t+1}
        v_cndmask_b32 v{d}, v{d}, v{t}, vcc''')
    a.extend(kv_mfma(0) + kv_mfma(1))
    a.extend(kvst_addr(118, 104))

    QA, XRq = 28, 44
    QF = [20, 24]; OA = [28, 44]
    def wo_dma(srd, t):
        o = [f'v_xor_b32 v{t+i}, {32*(i+1)}, {vWoD}' for i in range(3)]
        for g in range(4):
            o += [f's_add_u32 m0, {sW14}, {WO + g*4096}', f's_add_u32 s7, {sWoSrc}, {g*32768}']
            for i in range(4): o.append(tok(f'buffer_load_dwordx4 {vWoD if i == 0 else "v%d" % (t+i-1)}, {srd}, s7 offen offset:{i*1024} lds', 'wo'))
        return o
    def q_pass(mat, fill, forced):
        reads = [(t, s) for s in range(16) for t in range(4)]
        rdx = lambda n: f'ds_read_b128 {vr(XRq + 4*(n % 8), 4)}, {vT} offset:{(reads[n][0]*16 + reads[n][1])*1024}'
        main = [rdx(n) for n in range(7)]
        for n, (t, s) in enumerate(reads):
            if n % 2 == 0: main.append(f'.waitfor {vr(XRq + 4*((n+1) % 8), 4)}')
            d = vr(QA + 4*t, 4); main.append(M16(d, Wfrag(mat, 'q', s), vr(XRq + 4*(n % 8), 4), '0' if s == 0 else d))
            if n + 7 < 64: main.append(rdx(n + 7))
            main += forced.get(n, [])
        a.extend(weave(main, fill))
    def flag_line(t):
        return [f'v_mov_b32 v{t+i}, {sTag}' for i in range(4)] + lines(f'''v_mov_b32 v{t+4}, {OOB}
        v_cmp_gt_u32 vcc, 8, v0
        v_cndmask_b32 v{t+4}, v{t+4}, {vL16}, vcc''')
    def passes(L, mat, fills, tailpre):
        accp = lambda p, t: 20 + 8*(t & 1) + (0 if p == 'k' else 4)
        XR = 36
        dma = lambda n, name: [tok(f'buffer_load_dwordx4 {vL16}, {WS}, s3 offen offset:{i*1024} sc1 lds', name) for i in range(n)]
        a(f'buffer_load_dwordx2 v[112:113], v118, {WS}, s6 offen sc1\nbuffer_load_dwordx2 v[114:115], v118, {WS}, s6 offen offset:128 sc1')
        a.extend(dma(2, 't0a'))
        a('s_add_u32 m0, m0, 8192\ns_add_u32 s3, s3, 8192'); a.extend(dma(2, 't0b'))
        nxt = lambda t: [f's_add_u32 m0, s5, {t*16384}', f's_add_u32 s3, s4, {t*16384}'] + dma(4, f't{t}')
        a.extend(nxt(1))
        stat = lines(f'''v_add_f32 v112, v112, v114
        v_add_f32 v113, v113, v115
        {sw32(112,113)}
        v_add_f32 v112, v112, v113
        v_mov_b32 v113, v112
        {sw16(112,113)}
        v_add_f32 v112, v112, v113
        v_mov_b32 v113, v112
        {sw32(112,113)}''') + stats_fin(112, 113, 119, 114)
        a.extend(stat[:9])
        a('.waitfor tok:t0a\ns_barrier')
        stamp(L, 1)
        rdx = lambda n: f'ds_read_b128 {vr(XR + 4*(n % 8), 4)}, {vT} offset:{n*1024}'
        D = 6
        a.extend([rdx(n) for n in range(D)])
        for t in range(4):
            main = []
            for s in range(16):
                n = 16*t + s; x = vr(XR + 4*(n % 8), 4)
                if n % 2 == 0: main.append(f'.waitfor {vr(XR + 4*((n+1) % 8), 4)}')
                for p in 'kv':
                    d = vr(accp(p, t), 4); w = Wfrag(mat, p, s)
                    A, B = (w, x) if (mat == 'b' and p == 'k') else (x, w)
                    main.append(M16(d, A, B, '0' if s == 0 else d))
                m = n + D
                if m == 8: main += ['.waitfor tok:t0b', 's_barrier']
                if m in (16, 32, 48): main += [f'.waitfor tok:t{m//16} tok:stw', 's_barrier']
                if m < 64: main.append(rdx(m))
            f = fills[t]
            if t == 0: f = stat[9:] + nxt(2) + f
            if t == 1: f = nxt(3) + f
            a.extend(weave(main, f))
        return accp
    def entry_prep(L):
        return lines(f'''s_lshl_b32 s6, {sW}, 11
        s_add_u32 s4, {sGb}, {oXX + XX(L-1)}
        s_add_u32 s3, s4, s6
        s_add_u32 m0, s6, {T}
        s_add_u32 s4, s4, {sW12}
        s_add_u32 s5, {sW12}, {T}
        s_lshl_b32 s6, {sW}, 6
        v_add_u32 v119, s6, {vRSb}
        s_lshl_b32 s6, {sW}, 10
        s_add_u32 s6, s6, {sGb}
        s_add_u32 s6, s6, {ST(L-1)}
        v_and_b32 v118, 15, v0
        v_lshrrev_b32 v117, 4, v0
        v_lshlrev_b32 v118, 3, v118
        v_lshl_add_u32 v118, v117, 8, v118
        v_add_u32 {vT}, {T}, {vL16}''')

    def A_passes(L):
        RS, MR, B = 68, 72, 76
        def epi(t, accp):
            K, V = accp('k', t), accp('v', t)
            o = [f'ds_read_b128 {vr(RS,4)}, {vRSa} offset:{t*64}', f'ds_read_b128 {vr(MR,4)}, {vRSa} offset:{256+t*64}', ('at', 5), f'.waitfor {vr(MR,4)}']
            o += [f'v_fma_f32 v{B+i}, v{MR+i}, v104, v{E6}' for i in range(4)]
            o += [f'v_mul_f32 v{MR+i}, v{MR+i}, v105' for i in range(4)]
            o += [f'v_fma_f32 v{K+i}, v{K+i}, v{RS+i}, v{B+i}' for i in range(4)]
            o += [f'v_fma_f32 v{V+i}, v{V+i}, v{RS+i}, v{MR+i}' for i in range(4)]
            o += [f'v_fma_f32 v{B+i}, v{K+i}, v{L2Er}, v{NE}' for i in range(4)]
            o += [cvt(VV+2*t, V), cvt(VV+2*t+1, V+2)]
            for i in range(4): o += [f'v_exp_f32_e64 v{B+i}, v{B+i} clamp', f'v_max_f32 v{K+i}, v{K+i}, v{E6}']
            o += [f'v_add_f32 v{K+i}, v{K+i}, v{B+i}' for i in range(4)]
            o += [cvt(PK+2*t, K), cvt(PK+2*t+1, K+2)]
            return o
        accp = lambda p, t: 20 + 8*(t & 1) + (0 if p == 'k' else 4)
        last = [f'ds_read_b128 v[108:111], {vRSa} offset:{3*64}', f'ds_read_b128 v[112:115], {vRSa} offset:{256+3*64}']
        fills = [[f'ds_read2_b32 v[104:105], {vCSb} offset0:16 offset1:32'] + kvst_addr(120, 106), epi(0, accp), epi(1, accp), last + kv_mfma(0) + epi(2, accp)]
        passes(L, 'a', fills, None)
        stamp(L, 2)
        o, o2 = epi_A_pk(accp('k', 3), accp('v', 3), 108, 112, B, 104, 105, 3)
        a.extend(o + o2 + kv_mfma(1))
        a('v_mov_b32 v118, v120')
    def A_tail(L):
        it = L >> 1
        a(f's_mul_i32 s3, {sG}, 640\ns_add_u32 s4, {sKVA}, {it*KVA_I}\ns_add_u32 s5, s4, s3')
        a(f's_add_u32 s6, {sFA}, {it*0x8000}\ns_lshl_b32 s3, {sG}, 7\ns_add_u32 s3, s3, s6\ns_cmp_eq_u32 {sW}, 0\ns_cselect_b32 s98, s3, {OOB}')
        a.extend([cvt(104, KVr), cvt(105, KVr+2), cvt(106, Zr), cvt(107, Zr+2), sw16(104, 106), sw16(105, 107)])
        a.ins.append(tok(f'buffer_store_dwordx4 v[104:107], v118, {WS}, s5 offen sc1', 'kvst'))
        stamp(L, 3)
        fill = flag_line(108) + wo_dma(WOA, 113)
        pub = ['.waitfor tok:kvst', 's_barrier', f'buffer_store_dwordx4 v[108:111], v112, {WS}, s98 offen sc1']
        if L == 0:
            a('.waitfor tok:r12\ns_barrier')
            for n in range(8, 13): a.extend(w_read(*ring[n], WR if slot(n) < 65536 else 123, slot(n) if slot(n) < 65536 else 0))
            a.extend(weave(cs_mfma('a', 'q', 76), flag_line(108)))
            a('s_waitcnt lgkmcnt(0)\ns_barrier')
            a(cs_write('a', 'q', 76))
            fill = wo_dma(WOA, 113) + w_dma('b', 'k', 1, S, WE, WOd, 'b1')
            q_pass('a', fill, {14: pub})
        else:
            q_pass('a', fill, {52: pub})
        stamp(L, 4)
        e = [f'ds_read_b128 v[76:79], {vCSa}'] + [f'ds_read2_b32 {vr(80+2*t,2)}, {vRSb} offset0:{t*16} offset1:{64+t*16}' for t in range(4)]
        for t in range(4):
            q = QA + 4*t; B = 88
            e += [pk('fma', B+i, 76+i, ('b', 81+2*t), ('b', E6)) for i in (0, 2)]
            e += [pk('fma', q+i, q+i, ('b', 80+2*t), B+i) for i in (0, 2)]
            e += [pk('fma', B+i, q+i, ('b', L2Er), ('b', NE)) for i in (0, 2)]
            e += [f'v_exp_f32_e64 v{B+i}, v{B+i} clamp' for i in range(4)]
            e += [f'v_max_f32 v{q+i}, v{q+i}, v{E6}' for i in range(4)]
            e += [pk('add', q+i, q+i, B+i) for i in (0, 2)]
            e += [cvt(20+2*t, q), cvt(21+2*t, q+2)]
        e += lines('''v_and_b32 v104, 15, v0
        v_lshrrev_b32 v105, 1, v0
        v_and_b32 v105, 8, v105
        v_sub_u32 v104, v104, v105
        v_and_b32 v105, 1, v104
        v_lshlrev_b32 v105, 4, v105
        v_mov_b32 v106, 0x3f80
        v_lshlrev_b32 v106, v105, v106
        v_ashrrev_i32 v104, 1, v104''')
        for i in range(4): e += [f'v_cmp_eq_u32 vcc, {i}, v104', sw16(*[(20, 22), (21, 23), (24, 26), (25, 27)][i]), 's_nop 0', f'v_cndmask_b32 v{100+i}, 0, v106, vcc']
        e += lines('''v_lshrrev_b32 v106, 5, v0
        v_mul_u32_u24 v106, 640, v106
        v_and_b32 v107, 31, v0
        v_lshl_add_u32 v104, v107, 4, v106
        v_and_b32 v108, 15, v0
        v_mul_u32_u24 v108, 1280, v108
        v_and_b32 v105, 16, v0
        v_add3_u32 v105, v105, v108, v106
        v_lshlrev_b32 v106, 7, v107''')
        if L == 0:
            a('s_barrier')
            st = []
            for i, (p, kq) in enumerate([('k', 2), ('k', 3), ('v', 0), ('v', 1)]): st += w_dma('b', p, kq, T + i*16384, WE, WOd, 'b2')
            k = 0
            for x in e:
                a.extend([x]); k += 1
                if k % 6 == 0 and st:
                    while st:
                        y = st.pop(0); a.extend([y])
                        if isinstance(y, Ins): break
            a.extend(st)
            a(poll_start(vPG, sFl, 'v107', 256))
            a(f'buffer_load_dword v108, {vPG}, {WS}, {sFl} offen sc1\nbuffer_load_dword v108, {vPG}, {WS}, {sFl} offen offset:128 sc1')
            poll_finish(vPG, sFl, 'v107', 256, [f'v_subrev_u32 v108, {sTag}, v107', 'v_cmp_lt_u32 vcc, 15, v108'])
            a(f'v_readfirstlane_b32 s3, v107\nv_cmp_ne_u32 vcc, s3, v107\ns_cmp_eq_u64 vcc, 0\ns_cselect_b32 {sFast}, {0 if opt.get("slow") else 1}, 0')
        else:
            a.extend(e)
        stamp(L, 5)
        a(poll_start('v106', 's6', 'v107'))
        poll_finish('v106', 's6', 'v107')
        stamp(L, 6)
        a(f'buffer_load_dwordx4 v[108:111], v105, {WS}, s4 offen offset:512 sc1')
        for i in range(16):
            if i % 4 == 0 and i: a(f's_add_u32 s4, s4, {4*1280}')
            a(f'buffer_load_dwordx4 {vr(28+4*i,4)}, v104, {WS}, s4 offen offset:{(i%4)*1280} sc1')
            if L == 0 and i == 8:
                a(f's_barrier\nv_add_u32 v122, {T}, v{WR}')
                a.extend(w_read('b', 'k', 1, 123, 0))
                for i2, (p, kq) in enumerate([('k', 2), ('k', 3), ('v', 0), ('v', 1)]): a.extend(w_read('b', p, kq, 122, i2*16384))
        if L == 0:
            a.extend(cs_mfma('b', 'k', 92))
            a('s_waitcnt lgkmcnt(0)\ns_barrier')
        a(M16('v[116:119]', 'v[100:103]', 'v[108:111]', '0'))
        if L == 0: a(cs_write('b', 'k', 92))
        dpp = [f'v_add_f32_dpp v{116+r}, v{116+r}, v{116+r} row_ror:{sh} row_mask:0xf bank_mask:0xf' for sh in (8, 4, 2, 1) for r in range(4)]
        dpp += [cvt(98, 116), cvt(99, 118)]
        dpp += [f's_add_u32 s4, {sGb}, {XO(L)}', f's_add_u32 s5, s4, 32768']
        a.extend(weave([M16('v[112:115]', 'v[100:103]', vr(28+4*i,4), '0' if i == 0 else 'v[112:115]') for i in range(16)], [('at', 4)] + dpp))
        a.extend([cvt(96, 112), cvt(97, 114), sw16(96, 98), sw16(97, 99)])
        for u in range(2): a(M32(vr(OA[u],16), 'v[96:99]', vr(QF[u],4), '0'))
        for u in range(2): a(f'v_add_f32 v{OA[u]+8}, v{OA[u]+8}, v{E6}')

    CB, SB, KB, VB = 60, [96, 112], 76, 88
    vK, vVa, vVb, NM, NEG, TMP = 13, 14, 15, [16, 17], 18, 19
    mk = lambda i: f's[{MASK0+2*i}:{MASK0+2*i+1}]'
    def qk(u, sb, c, k=KB): return M32(vr(sb,16), vr(k,4), vr(QF[u],4), c)
    def pv(u, sb, h, init=False): return M32(vr(OA[u],16), vr(VB+4*h,4), vr(sb+8*h,4), '0' if init else vr(OA[u],16))
    def B_layer(L):
        it = L >> 1
        RS, MR, B = 68, 72, 76
        KK = PK
        accp = lambda p, t: 20 + 8*(t & 1) + (0 if p == 'k' else 4)
        def rds(t, RS, MR, rm): return [f'ds_read_b128 {vr(RS,4)}, {vRSa} offset:{t*64}', f'ds_read_b128 {vr(MR,4)}, {vRSa} offset:{256+t*64}', f'ds_read2_b32 {vr(rm,2)}, {vRSb} offset0:{t*16} offset1:{64+t*16}']
        def epi(t):
            K, V = accp('k', t), accp('v', t)
            o = rds(t, RS, MR, 110) + [('at', 5), '.waitfor v[110:111]']
            o += [f'v_mul_f32 v{B+i}, v111, v{104+i}' for i in range(4)]
            o += [f'v_mul_f32 v{MR+i}, v{MR+i}, v108' for i in range(4)]
            o += [f'v_fma_f32 v{K+i}, v{K+i}, v110, v{B+i}' for i in range(4)]
            o += [f'v_fma_f32 v{V+i}, v{V+i}, v{RS+i}, v{MR+i}' for i in range(4)]
            o += [cvt(KK+2*t, K), cvt(KK+2*t+1, K+2), cvt(VV+2*t, V), cvt(VV+2*t+1, V+2)]
            return o
        def out(u):
            k, v = KK + 4*u, VV + 4*u
            return [sw16(k, k+2), sw16(k+1, k+3), sw32(v, v+2), sw32(v+1, v+3),
                    tok(f'buffer_store_dwordx4 {vr(k,4)}, {vL16}, {WS}, s98 offen offset:{u*2048} sc1', f'kv{u}'),
                    tok(f'buffer_store_dwordx4 {vr(v,4)}, {vL16}, {WS}, s98 offen offset:{u*2048+1024} sc1', f'kv{u}'),
                    f'ds_write_b128 v109, {vr(k,4)} offset:{(8+u)*TS}', f'ds_write_b128 v109, {vr(v,4)} offset:{(8+u)*TS+1024}']
        f0 = [f'ds_read_b128 v[104:107], {vCSa} offset:{768+64}', f'ds_read_b32 v108, {vCSb} offset:{768+128}',
              f's_add_u32 s98, {sKVB}, {it*0x20000}', f'v_add_u32 v109, {sOwn}, {vL16}',
              f's_add_u32 s99, {sFB}, {sGb}', f's_add_u32 s99, s99, {it*0x2000}'] + flag_line(96)
        bq = [w_dma('b', 'q', kq, kq*16384, WE, WOd, 'bq') for kq in range(4)] if L == 1 else [[], [], [], []]
        last = rds(3, 112, 116, 120) + ['.waitfor v[120:121]'] + [f'v_mul_f32 v{116+i}, v{116+i}, v108' for i in range(4)]
        fills = [f0, epi(0) + bq[0], epi(1) + out(0) + bq[1], epi(2) + last + bq[2] + bq[3]]
        passes(L, 'b', fills, None)
        stamp(L, 2)
        K, V = accp('k', 3), accp('v', 3)
        a.extend([pk('mul', B+i, 104+i, ('b', 121)) for i in (0, 2)])
        a.extend([pk('fma', K+i, K+i, ('b', 120), B+i) for i in (0, 2)] + [pk('fma', V+i, V+i, 112+i, 116+i) for i in (0, 2)])
        a.extend([cvt(KK+6, K), cvt(KK+7, K+2), cvt(VV+6, V), cvt(VV+7, V+2)])
        a.extend(out(1))
        fl = lambda e: [f'.waitfor tok:kv{e}', f'buffer_store_dwordx4 v[96:99], v100, {WS}, {"s99" if e == 0 else "s3"} offen sc1']
        a(f's_add_u32 s3, s99, 0x1000')
        a.extend(fl(0))
        stamp(L, 3)
        if L == 1:
            a('.waitfor tok:bq\ns_barrier')
            for kq in range(4): a.extend(w_read('b', 'q', kq, WR, kq*16384))
            a.extend(cs_mfma('b', 'q', 76))
            a('s_waitcnt lgkmcnt(0)\ns_barrier')
            a(cs_write('b', 'q', 76))
        q_pass('b', wo_dma(WOB, 101), {(14 if L == 1 else 50): fl(1)})
        stamp(L, 4)
        a(f'ds_read_b128 v[76:79], {vCSa} offset:768')
        for t in range(4): a(f'ds_read2_b32 {vr(104+2*t,2)}, {vRSb} offset0:{t*16} offset1:{64+t*16}')
        a('s_barrier')
        a(f'v_mov_b32 v120, {f2u(0.25*L2E)}')
        a(f'v_and_b32 v{TMP}, 3, v0\nv_sub_u32 v{TMP}, {sG}, v{TMP}\nv_subrev_u32 v{TMP}, 1, v{TMP}\nv_cmp_gt_i32 vcc, 0, v{TMP}\nv_mov_b32 v122, {sG}')
        a(f's_add_u32 s6, {sFB}, {G0 + it*0x2000}\ns_add_u32 s5, s6, 0x1000')
        a(f'v_cndmask_b32 v{TMP}, v{TMP}, v122, vcc\nv_lshlrev_b32 v{TMP}, 20, v{TMP}')
        for t in range(4): a(pk('mul', 104+2*t, 104+2*t, ('b', 120)))
        for t in range(4):
            q = QA + 4*t
            a.extend([pk('mul', 112+i, 76+i, ('b', 105+2*t)) for i in (0, 2)] + [pk('fma', q+i, q+i, ('b', 104+2*t), 112+i) for i in (0, 2)])
            a.extend([cvt(20+2*t, q), cvt(21+2*t, q+2)])
            if t & 1: a.extend([f'v_mov_b32 v{NEG}, {f2u(-1e30)}', 's_nop 0', sw16(QF[t>>1], QF[t>>1]+2), sw16(QF[t>>1]+1, QF[t>>1]+3)])
        a('s_nop 0')
        a(qk(0, SB[0], '0', KK)); a(qk(1, SB[1], '0', KK+4))
        a(f'v_mov_b32 v60, {sKVN}\nv_mov_b32 v61, {sOwn}\nv_cmp_gt_u32 vcc, 8, v0\nv_mul_u32_u24 v62, {TS}, v0\ns_lshl_b32 s3, {sG}, 1\nv_cndmask_b32 v60, v61, v60, vcc\nv_add_u32 v60, v60, v62')
        a(f'v_add_u32 v61, s3, v0\nv_cmp_le_u32 vcc, 8, v61\nv_mov_b32 v62, 0x3f803f80\nv_mov_b32 v63, {LDS_BYTES - 4096}\nv_cndmask_b32 v64, 0, v62, vcc\nv_cmp_gt_u32 vcc, 10, v0')
        a(f'v_mov_b32 v65, v64\nv_mov_b32 v66, v64\nv_mov_b32 v67, v64\nv_cndmask_b32 v60, v63, v60, vcc\nds_write_b128 v60, v[64:67] offset:2048')
        a(f'v_lshrrev_b32 v60, 5, v0\nv_and_b32 v61, 15, v0\nv_lshlrev_b32 v61, 4, v61\nv_lshl_add_u32 v60, v60, 8, v61\nv_and_b32 v63, 16, v0\nv_cmp_eq_u32 vcc, 0, v63\nv_add_u32 v60, 1024, v60\nv_add_u32 v61, 512, v60\nv_mov_b32 v62, 2048')
        a(f'v_cndmask_b32 v60, v62, v60, vcc\nv_cndmask_b32 v61, v62, v61, vcc\nv_add_u32 v{vK}, {sKVN}, {vL16}\nv_add_u32 v{vVa}, {sOwn}, v60\nv_add_u32 v{vVb}, {sOwn}, v61')
        rdK = lambda kt: f'ds_read_b128 {vr(KB,4)}, v{vK} offset:{kt*TS}'
        rdV = lambda kt, h: f'ds_read_b128 {vr(VB+4*h,4)}, v{vVa if h == 0 else vVb} offset:{kt*TS}'
        a(poll_start(f'v{TMP}', 's6', 'v79'))
        for u in range(2):
            sb = SB[u]
            for i in range(16): a(f'v_cndmask_b32 v{sb+i}, v{NEG}, v{sb+i}, {mk(i)}')
        for u in range(2): a(f'v_max_f32 v{NM[u]}, v{SB[u]}, v{SB[u]+1}')
        for i in range(7):
            for u in range(2): a(f'v_max3_f32 v{NM[u]}, v{NM[u]}, v{SB[u]+2+2*i}, v{SB[u]+3+2*i}')
        a(f'v_mov_b32 v76, v{NM[0]}\nv_mov_b32 v77, v{NM[1]}\ns_sub_u32 s4, {sKVN}, {sOwn}\n{sw32(NM[0], 76)}\n{sw32(NM[1], 77)}')
        for u in range(2): a(f'v_min_f32_e64 v{NM[u]}, -v{NM[u]}, -v{76+u}')
        if opt.get('fb'):
            for u in range(2): a(f'v_add_f32 v{NM[u]}, {f2u(200.0)}, v{NM[u]}')
        stamp(L, 5)
        poll_finish(f'v{TMP}', 's6', 'v79')
        stamp(L, 6)
        def nb_dma(e):
            o = []
            for i in range(4):
                kt = 6 - 2*i + e
                o += [f's_add_u32 m0, {sKVN}, {kt*TS - e*2048}', f's_add_u32 s3, {sNb[i]}, {it*0x20000}']
                o += [tok(f'buffer_load_dwordx4 {vL16}, {WS}, s3 offen offset:{e*2048 + h*1024} sc1 lds', f'n{kt}') for h in range(2)]
            return o
        sh = [pk('add', SB[u]+i, SB[u]+i, ('b', NM[u])) for u in range(2) for i in range(0, 16, 2)]
        sh += [f'v_mov_b32 v{CB+i}, v{NM[1]}' for i in range(16)]
        d = nb_dma(0)
        for i in range(4): a.extend(d[4*i:4*i+4] + sh[8*i:8*i+8])
        ops = [(0, 8), (1, 9), (1, 8), (1, 6), (1, 4), (1, 2), (0, 6), (0, 4), (0, 2), (0, 0), (0, 7), (0, 5), (0, 3), (0, 1), (1, 7), (1, 5), (1, 3), (1, 1)]
        N = len(ops); seen = set()
        for n in range(N + 1):
            sb, pb = SB[n % 2], SB[1 - n % 2]
            far = n < N and ops[n][1] == ops[n][0]
            def E(i):
                if n == N: return []
                o = [f'v_exp_f32 v{sb+i}, v{sb+i}', f'v_exp_f32 v{sb+i+1}, v{sb+i+1}']
                return o
            def Cv(h, i, b=None, isfar=far):
                b = sb if b is None else b
                o = []
                if isfar: o += [f'v_cndmask_b32 v{b+8*h+2*i+k}, v{b+8*h+2*i+k}, 0, {mk(8*h+2*i+k)}' for k in range(2)]
                return o + [f'v_cvt_pk_bf16_f32 v{b+8*h+i}, v{b+8*h+2*i}, v{b+8*h+2*i+1}']
            C = (lambda h, i: Cv(h, i)) if n < N else (lambda h, i: [])
            lateK = n + 1 < N and n + 1 in (3, 10)
            toks = []
            for m in ([n] if n < N else []) + ([n+1] if lateK else []) + ([n+2] if n + 2 < N and n + 2 not in (3, 10) else []):
                kt = ops[m][1]
                if kt < 8 and kt not in seen: seen.add(kt); toks.append(f'tok:n{kt}')
            s = E(0)
            if n > 0: s += Cv(1, 3, pb, ops[n-1][1] == ops[n-1][0])
            s += [f'.waitfor {" ".join(toks)} {vr(KB,4)} {vr(VB,8)}']
            if n == 3: s += [f'v_add_u32 v{vVa}, s4, v{vVa}', f'v_add_u32 v{vVb}, s4, v{vVb}']
            if lateK: s += [rdK(ops[n+1][1])]
            if n > 0: s += [pv(ops[n-1][0], pb, 0, init=(n-1 < 2))]
            if n < N: s += [rdV(ops[n][1], 0)]
            s += E(2) + C(0, 0) + E(4)
            if n > 0: s += [pv(ops[n-1][0], pb, 1)]
            if n < N: s += [rdV(ops[n][1], 1)]
            s += C(0, 1) + E(6) + C(0, 2)
            if 2 <= n + 1 < N:
                s += [qk(ops[n+1][0], pb, vr(CB,16), KK if n + 1 == 2 else KB)]
            if n + 2 < N and n + 2 > 2 and n + 2 not in (3, 10): s += [rdK(ops[n+2][1])]
            s += E(8) + C(0, 3) + E(10) + C(1, 0) + E(12)
            if n + 2 < N and n + 1 >= 2 and ops[n+2][0] != ops[n+1][0]:
                s += [f'v_mov_b32 v{CB+i}, v{NM[ops[n+2][0]]}' for i in range(16)]
            s += C(1, 1) + E(14) + C(1, 2)
            if n == 3: s += [poll_start(f'v{TMP}', 's5', 'v84')]
            a.extend(s)
            if n == 5:
                poll_finish(f'v{TMP}', 's5', 'v84')
                a.extend(nb_dma(1))
        a(f's_add_u32 s4, {sGb}, {XO(L)}\ns_add_u32 s5, s4, 32768\ns_mov_b32 {sL}, {L}')
        o = OA[0]
        a(f'v_maximum3_f32 v76, abs(v{o}), abs(v{o+1}), v{o+8}')
        for i in range(2, 8, 2): a(f'v_maximum3_f32 v76, abs(v{o+i}), abs(v{o+i+1}), v76')
        o = OA[1]
        for i in range(0, 8, 2): a(f'v_maximum3_f32 v76, abs(v{o+i}), abs(v{o+i+1}), v76')
        a(f'v_maximum3_f32 v76, v{o+8}, v76, v76')
        a(f'v_cmp_nlt_f32 vcc, v76, abs(v{NEG})\ns_cbranch_vccnz L_fallback\nL_fbdone{L}:')

    def common(L):
        stamp(L, 7)
        for u in range(2): a(f'v_rcp_f32 v{OA[u]+8}, v{OA[u]+8}')
        a(f's_cmp_eq_u32 {sFast}, 0')
        for u in range(2):
            o = OA[u]
            a.extend([pk('mul', o+i, o+i, ('b', o+8)) for i in range(0, 8, 2)] + [cvt(o+10+i, o+2*i) for i in range(4)])
        fast_stores([tok(f'buffer_store_dwordx4 {vr(OA[u]+10,4)}, {vXo}, {WS}, {"s4" if u == 0 else "s5"} offen', 'ost') for u in range(2)])
        if L == 0:
            a.extend(w_dma('b', 'v', 2, T, WE, WOd, 'b3') + w_dma('b', 'v', 3, T + 16384, WE, WOd, 'b3'))
            a(f'v_mov_b32 v13, v122')
        a(f's_lshl_b32 s6, {sW}, 11\ns_add_u32 s6, s6, {RES}\nv_add_u32 v14, s6, {vL16}')
        a('ds_read_b128 v[60:63], v14\nds_read_b128 v[64:67], v14 offset:1024')
        a(f'v_mov_b32 v68, {sTag}\nv_mov_b32 v69, {OOB}\nv_cmp_eq_u32 vcc, 0, v0')
        a.extend([f'v_xor_b32 v{124+i}, {32*(i+1)}, {vWoR}' for i in range(3)])
        a(f'v_cndmask_b32 v15, v69, v0, vcc\ns_add_u32 s5, {sXoLd}, {XO(L)}')
        a.extend(ones())
        a.extend([sw16(60, 62), sw16(61, 63), sw16(64, 66), sw16(65, 67)])
        for i in range(8): a(f'v_lshlrev_b32 v{20+2*i}, 16, v{60+i}\nv_and_b32 v{21+2*i}, 0xffff0000, v{60+i}')
        a(f's_cmp_eq_u32 {sFast}, 0\n.waitfor tok:ost\ns_barrier')
        fast_stores([f'buffer_store_dword v68, v15, {WS}, {sFlOwn} offen offset:{64*L}'])
        stamp(L, 8)
        NW, NO, Wr, Or = 12, 10, 76, 36
        def rdw(n):
            s, t = n >> 2, n & 3
            ad = vWoR if t == 0 else f'v{123+t}'
            return [f'ds_read_b64_tr_b16 {vr(Wr + 4*(n % NW) + 2*hi, 2)}, {ad} offset:{WO + s*4096 + hi*256}' for hi in range(2)]
        def ldo(s):
            o = [f's_add_u32 s5, s5, 4096'] if s % 4 == 0 and s else []
            return o + [f'buffer_load_dwordx4 {vr(Or + 4*(s % NO), 4)}, {vL16}, {WS}, s5 offen offset:{(s%4)*1024} sc1']
        for n in range(NW): a.extend(rdw(n))
        a(poll_start(vPG, sFl, 'v127', 64*L))
        poll_finish(vPG, sFl, 'v127', 64*L)
        stamp(L, 9)
        for s in range(NO): a.extend(ldo(s))
        if L == 0:
            a('s_barrier')
            a.extend(w_read('b', 'v', 2, 13, 0) + w_read('b', 'v', 3, 13, 16384))
        for n in range(64):
            s, t = n >> 2, n & 3
            if t == 0: a(f'.waitfor {vr(Or + 4*(s % NO), 4)} {vr(Wr + 4*((n+3) % NW), 4)}')
            d = vr(20+4*t, 4)
            a(M16(d, vr(Wr + 4*(n % NW), 4), vr(Or + 4*(s % NO), 4), d))
            if n + NW < 64: a.extend(rdw(n + NW))
            if t == 3 and s + NO < 16: a.extend(ldo(s + NO))
            if n == 56 and L < 3:
                a(f's_add_u32 s4, {sXxSt}, {XX(L)}')
            if n == 57 and L < 3: a(f's_lshl_b32 s3, {sJ}, 7\ns_lshl_b32 s5, {sW}, 10')
            if n == 58 and L < 3: a(f's_add_u32 s3, s3, s5\ns_add_u32 s3, s3, {sGb}')
            if n == 59 and L < 3: a(f's_add_u32 s3, s3, {ST(L)}\nv_mov_b32 v70, 0')
            if n == 60 and L < 3: a('v_mov_b32 v71, 0\nv_mov_b32 v72, 0')
            if n == 61 and L < 3: a(f'v_mov_b32 v73, 0\ns_cmp_eq_u32 {sFast}, 0')
            if n == 56 and L == 3: a(f'v_and_b32 v70, 15, v0\nv_lshlrev_b32 v70, 10, v70')
            if n == 57 and L == 3: a(f'v_lshrrev_b32 v71, 8, {vXs}\nv_lshl_add_u32 v70, v71, 4, v70')
        a.extend([cvt(36+i, 20+2*i) for i in range(8)])
        a.extend([sw16(36, 38), sw16(37, 39), sw16(40, 42), sw16(41, 43)])
        if L == 3:
            a(f'buffer_store_dwordx4 v[36:39], v70, {OUT}, {sRow} offen\nbuffer_store_dwordx4 v[40:43], v70, {OUT}, {sRow} offen offset:64')
            stamp(L, 10)
            return
        fast_stores([f'buffer_store_dwordx4 {vr(36+4*i,4)}, {vXs}, {WS}, s4 offen offset:{i*1024}' for i in range(2)])
        for r in range(8):
            a(f'v_dot2c_f32_bf16 v{70 + (r&1)}, v{36+r}, v{ONES}\nv_dot2c_f32_bf16 v{72 + (r&1)}, v{36+r}, v{36+r}')
        a(f'v_and_b32 v48, 15, v0\nv_lshlrev_b32 v48, 3, v48\nv_lshrrev_b32 v49, 5, v0')
        a(f'v_add_f32 v70, v70, v71\nv_add_f32 v72, v72, v73\nv_lshl_add_u32 v48, v49, 2, v48\nv_and_b32 v49, 16, v0')
        a(f'{sw32(70, 72)}\nv_add_f32 v70, v70, v72\nv_mov_b32 v71, v70\nv_lshl_add_u32 v48, v49, 22, v48\nv_mov_b32 v68, {sTag}\n{sw16(70, 71)}\nv_add_f32 v70, v70, v71')
        fast_stores([f'buffer_store_dword v70, v48, {WS}, s3 offen'])
        stamp(L, 10)
        a('ds_write_b128 v14, v[36:39]\nds_write_b128 v14, v[40:43] offset:1024')
        a.extend(entry_prep(L + 1))
        a(f's_cmp_eq_u32 {sFast}, 0\ns_waitcnt vmcnt(0) lgkmcnt(0)\ns_barrier')
        fast_stores([f'buffer_store_dword v68, v15, {WS}, {sFlOwn} offen offset:{64*L+32}'])
        stamp(L, 11)
        if L == 0:
            a.extend(weave(cs_mfma('b', 'v', 92), w_addr(WE, WOd, WR, 100)))
            a(poll_start(vPG, sFl, 'v127', 64*L+32))
            a(cs_write('b', 'v', 92))
        else:
            if L == 1: a.extend(consts())
            a(poll_start(vPG, sFl, 'v127', 64*L+32))
        poll_finish(vPG, sFl, 'v127', 64*L+32)
        stamp(L, 12)

    A_tail(0); common(0)
    B_layer(1); common(1)
    A_passes(2); A_tail(2); common(2)
    B_layer(3); common(3)
    a(f's_or_b32 s3, s2, {sW}\ns_cmp_eq_u32 s3, 0\ns_cselect_b32 s3, 0, {OOB}\nv_mov_b32 v44, {sEp}\nbuffer_store_dword v44, v15, {WS}, s3 offen')
    if profile:
        a('s_waitcnt vmcnt(0)')
        stamp(3, 11)
        a(f's_lshl_b32 s3, s2, 2\ns_add_u32 s3, s3, {sW}\ns_lshl_b32 s3, s3, 8\ns_add_u32 s3, s3, {STAMP0}\nv_lshlrev_b32 v45, 2, v0')
        a(f'buffer_store_dword {vStamp}, v45, {WS}, s3 offen')
        if opt.get('amp'):
            i0, i1, wg = opt['amp']
            a(f's_cmp_lg_u32 s2, {wg}\ns_cbranch_scc1 L_end\ns_cmp_lg_u32 {sW}, 0\ns_cbranch_scc1 L_end')
            a(f'v_readlane_b32 s4, {vStamp}, {i0}\nv_readlane_b32 s5, {vStamp}, {i1}\nv_readlane_b32 s6, {vStamp}, 59\ns_nop 3\ns_sub_u32 s5, s5, s4\ns_lshl_b32 s5, s5, 3\ns_min_u32 s5, s5, 100000')
            a('L_amp:\ns_memrealtime s[96:97]\ns_waitcnt lgkmcnt(0)\ns_sub_u32 s7, s96, s6\ns_cmp_lt_u32 s7, s5\ns_cbranch_scc1 L_amp')
    a('L_end:\ns_endpgm\nL_codeend:')
    a('.resetwait')
    a.extend(ool.ins)

    a('L_fallback:\n.resetwait\ns_nop 15')
    a(f's_lshl_b32 s3, {sG}, 1\ns_sub_i32 s96, 8, s3\ns_max_i32 s96, s96, 0\ns_sub_u32 s97, {sOwn}, {sKVN}')
    for u in range(2):
        sb = SB[0]
        def tile_addr():
            a(f's_mul_i32 s3, s98, {TS}\ns_cmp_ge_u32 s98, 8\ns_cselect_b32 s7, s97, 0\ns_add_u32 s3, s3, s7')
            a(f'v_add_u32 v112, s3, v{vK}\nv_add_u32 v113, s3, v{vVa}\nv_add_u32 v114, s3, v{vVb}')
        def scores():
            l1, l2 = lab('m'), lab('m')
            a(f'ds_read_b128 {vr(KB,4)}, v112\ns_waitcnt lgkmcnt(0)')
            a(qk(u, sb, '0'))
            a('s_nop 15')
            a(f's_cmp_lg_u32 s98, {8+u}\ns_cbranch_scc1 {l1}')
            for i in range(16): a(f'v_cndmask_b32 v{sb+i}, v{NEG}, v{sb+i}, {mk(i)}')
            a(f'{l1}:\ns_cmp_lg_u32 s98, {u}\ns_cbranch_scc1 {l2}')
            for i in range(16): a(f'v_cndmask_b32 v{sb+i}, v{sb+i}, v{NEG}, {mk(i)}')
            a(f'{l2}:')
        lp = lab('fb1')
        a(f's_max_i32 s98, s96, {u}\nv_mov_b32 v{NM[u]}, v{NEG}')
        a(f'{lp}:')
        tile_addr(); scores()
        for i in range(8): a(f'v_max3_f32 v{NM[u]}, v{NM[u]}, v{sb+2*i}, v{sb+1+2*i}')
        a(f's_add_u32 s98, s98, 1\ns_cmp_le_u32 s98, {8+u}\ns_cbranch_scc1 {lp}')
        a(f'v_mov_b32 v115, v{NM[u]}\n{sw32(NM[u], 115)}\nv_max_f32 v{NM[u]}, v{NM[u]}, v115')
        for i in range(16): a(f'v_mov_b32 v{OA[u]+i}, 0')
        lp = lab('fb2')
        a(f's_max_i32 s98, s96, {u}')
        a(f'{lp}:')
        tile_addr(); scores()
        a(f'ds_read_b128 {vr(VB,4)}, v113\nds_read_b128 {vr(VB+4,4)}, v114')
        for i in range(16): a(f'v_sub_f32 v{sb+i}, v{sb+i}, v{NM[u]}')
        a('s_waitcnt lgkmcnt(0)')
        for h in range(2):
            for i in range(8): a(f'v_exp_f32 v{sb+8*h+i}, v{sb+8*h+i}')
            for i in range(4): a(f'v_cvt_pk_bf16_f32 v{sb+8*h+i}, v{sb+8*h+2*i}, v{sb+8*h+2*i+1}')
            a(pv(u, sb, h))
        a('s_nop 15')
        a(f's_add_u32 s98, s98, 1\ns_cmp_le_u32 s98, {8+u}\ns_cbranch_scc1 {lp}')
    a(f's_cmp_eq_u32 {sL}, 1\ns_cbranch_scc1 L_fbdone1\ns_branch L_fbdone3')

    a.auto_wait()
    nn = a.fix_hazards()
    for b in a.check_branch_hazards(): print('BRANCH HAZARD', b, file=sys.stderr)
    hdr = f'; fused persistent kernel: 256 workgroups (one per CU), generated by a script\n; @launch grid=(256,1,1) block=(256,1,1) lds={LDS_BYTES}\n'
    tail = f'''.section .rodata,"a"
.p2align 6
.amdhsa_kernel {KNAME}
  .amdhsa_next_free_vgpr 512
  .amdhsa_next_free_sgpr 102
  .amdhsa_accum_offset 256
  .amdhsa_group_segment_fixed_size 0
  .amdhsa_kernarg_size 72
  .amdhsa_user_sgpr_count 2
  .amdhsa_user_sgpr_kernarg_segment_ptr 1
  .amdhsa_system_sgpr_workgroup_id_x 1
.end_amdhsa_kernel
'''
    print('instructions', sum(1 for I in a.ins if I.kind not in ('label', 'dir')), 'nop states added', nn, file=sys.stderr)
    return hdr + a.text() + tail

if __name__ == '__main__':
    opt = {}
    for x in sys.argv[2:]:
        k, _, v = x.partition('=')
        opt[k] = eval(v) if v else 1
    open(sys.argv[1], 'w').write(gen(opt))
```

```python
import re

REG_RE = re.compile(r'^(-?)(\|?)(?:abs\()?([vas])(\d+|\[(\d+):(\d+)\])\)?\|?$')

def regs_of(op):
    op = op.strip()
    if op in ('vcc',): return ['vcc']
    if op in ('exec',): return ['exec']
    if op in ('m0',): return ['m0']
    if op in ('vcc_lo', 'vcc_hi'): return ['vcc']
    if op in ('exec_lo', 'exec_hi'): return ['exec']
    m = REG_RE.match(op)
    if not m: return []
    k = m.group(3)
    if m.group(5) is not None:
        return [f'{k}{i}' for i in range(int(m.group(5)), int(m.group(6)) + 1)]
    return [f'{k}{int(m.group(4))}']

TRANS = ('v_exp_', 'v_log_', 'v_rcp_', 'v_rsq_', 'v_sqrt_', 'v_sin_', 'v_cos_')

class Ins:
    __slots__ = ('text', 'mn', 'ops', 'w', 'r', 'kind', 'srcc', 'ab', 'passes', 'mods', 'tag')
    def __init__(self, text, tag=None):
        self.text = text; self.tag = tag
        t = text.split(';')[0].strip()
        self.w = []; self.r = []; self.srcc = []; self.ab = []; self.passes = 0; self.mods = ''
        if t.endswith(':') or t.startswith('.') or not t:
            self.kind = 'label' if t.endswith(':') else 'dir'; self.mn = t; self.ops = []
            return
        p = t.split(None, 1)
        self.mn = mn = p[0]
        rest = p[1] if len(p) > 1 else ''
        ops = []; cur = ''; d = 0
        for ch in rest:
            if ch in '[(': d += 1
            if ch in '])': d -= 1
            if ch == ',' and d == 0: ops.append(cur.strip()); cur = ''
            else: cur += ch
        if cur.strip(): ops.append(cur.strip())
        if ops:
            last = ops[-1].split(None, 1)
            if len(last) > 1 and not mn.startswith('s_waitcnt'):
                ops[-1] = last[0]; self.mods = last[1]
        self.ops = ops
        R = [regs_of(o) for o in ops]
        flat = lambda l: [x for y in l for x in y]
        if mn.startswith('v_mfma'):
            self.kind = 'mfma'; self.w = R[0]; self.ab = R[1] + R[2]; self.srcc = R[3]; self.r = self.ab + self.srcc
            self.passes = 8 if '32x32' in mn else 4
        elif mn.startswith('v_'):
            self.kind = 'valu'
            if mn.startswith('v_permlane') and 'swap' in mn:
                self.w = R[0] + R[1]; self.r = R[0] + R[1]
            elif mn.startswith(('v_fmac', 'v_dot2c', 'v_pk_fmac', 'v_writelane')):
                self.w = R[0]; self.r = flat(R)
            elif mn.startswith(('v_add_co', 'v_sub_co', 'v_addc_co', 'v_subb_co', 'v_subrev_co')):
                self.w = R[0] + R[1]; self.r = flat(R[2:])
            elif mn.startswith('v_cmpx'):
                self.w = R[0] + ['exec']; self.r = flat(R[1:])
            elif mn == 'v_nop':
                pass
            else:
                self.w = R[0]; self.r = flat(R[1:])
                if 'dpp' in mn or 'sdwa' in mn: self.r = self.r + R[0]
        elif mn.startswith('ds_'):
            self.kind = 'ds'
            if mn.startswith(('ds_read', 'ds_bpermute', 'ds_permute', 'ds_swizzle')):
                self.w = R[0]; self.r = flat(R[1:])
            else:
                self.r = flat(R)
        elif mn.startswith(('buffer_', 'global_')):
            self.kind = 'vmem'
            mods = self.mods.split()
            if 'lds' in mods or '_lds_' in mn:
                self.r = flat(R) + ['m0']
            elif mn.startswith(('buffer_load', 'global_load')):
                self.w = R[0]; self.r = flat(R[1:])
            elif 'atomic' in mn and 'sc0' in mods:
                self.w = R[0]; self.r = flat(R)
            else:
                self.r = flat(R)
        elif mn.startswith(('s_load', 's_memtime', 's_memrealtime', 's_buffer_load')):
            self.kind = 'smem'; self.w = R[0]; self.r = flat(R[1:])
        elif mn.startswith('s_'):
            self.kind = 'salu'
            if mn.startswith(('s_cmp', 's_bitcmp', 's_cbranch', 's_branch', 's_waitcnt', 's_nop', 's_barrier', 's_endpgm', 's_sleep', 's_setprio', 's_setpc')):
                self.r = flat(R)
                if mn.startswith('s_cbranch_vcc'): self.r = ['vcc']
                if mn.startswith('s_cbranch_exec'): self.r = ['exec']
            elif 'saveexec' in mn:
                self.w = R[0] + ['exec']; self.r = flat(R[1:]) + ['exec']
            else:
                self.w = R[0]; self.r = flat(R[1:])
                if mn.startswith(('s_addk', 's_mulk', 's_cmov', 's_bitset')): self.r = flat(R)
        else:
            raise ValueError('unknown instr ' + text)
    def states(self):
        if self.kind in ('label', 'dir'): return 0
        if self.mn == 's_nop': return int(self.ops[0], 0) + 1
        return 1
    def is_trans(self): return self.mn.startswith(TRANS)
    def is_dpp(self): return 'dpp' in self.mn or 'row_' in self.mods or 'quad_perm' in self.mods
    def is_wide_store(self): return self.kind == 'vmem' and 'store' in self.mn and ('x3' in self.mn or 'x4' in self.mn)

def need_states(p, c):
    n = 0
    if p.kind in ('label', 'dir') or c.kind in ('label', 'dir'): return 0
    pw = set(p.w); cr = set(c.r); cw = set(c.w)
    isv = lambda s: {x for x in s if x[0] in 'va' and x != 'vcc'}
    iss = lambda s: {x for x in s if x[0] == 's' or x == 'vcc'}
    if p.kind == 'valu':
        vw = isv(pw); sw = iss(pw)
        if c.kind == 'mfma' and vw & cr: n = max(n, 2)
        if c.kind == 'valu':
            if c.mn.startswith('v_permlane') and vw & cr: n = max(n, 2)
            if c.is_dpp() and vw & cr: n = max(n, 2)
            if c.mn.startswith(('v_readfirstlane', 'v_readlane')) and vw & cr: n = max(n, 1)
            if p.is_trans() and not c.is_trans() and vw & cr: n = max(n, 1)
            if p.is_trans() and c.is_trans() and vw & cr: n = max(n, 1)
            if sw & cr: n = max(n, 4 if c.mn.startswith(('v_readlane', 'v_writelane')) else 2)
            if c.mn.startswith('v_cndmask') and 'vcc' in sw and len(c.ops) == 4 and c.ops[3] == 'vcc': n = max(n, 2)
            if p.mn.startswith('v_dot') and vw & (cr | cw):
                if not (c.mn == p.mn and not (vw & set(regs_of(c.ops[1]) + regs_of(c.ops[2])))): n = max(n, 3)
            if ('sdwa' in p.mn or 'op_sel' in p.mods) and not p.mn.startswith('v_pk') and vw & (cr | cw): n = max(n, 1)
        if p.mn.startswith('v_dot') and c.kind in ('vmem', 'ds', 'mfma') and vw & (cr | cw): n = max(n, 3)
        if p.is_trans() and c.kind in ('vmem', 'ds') and vw & cr: n = max(n, 1)
        if c.kind == 'vmem' and sw & cr: n = max(n, 5)
        if c.kind == 'salu' and sw & cr and p.mn.startswith(('v_readfirstlane', 'v_readlane')): n = max(n, 1)
        if 'exec' in pw: n = max(n, 5)
    if p.kind == 'mfma':
        big = p.passes == 8
        if c.kind == 'mfma':
            if pw & set(c.ab): n = max(n, 12 if big else 8)
            if pw & set(c.srcc):
                if not (p.w == c.srcc and p.passes == c.passes): n = max(n, 10 if big else 6)
            if pw & cw and not (p.w == c.w and p.passes == c.passes):
                n = max(n, 10 if big else 6)
        elif c.kind in ('valu', 'vmem', 'ds'):
            if pw & (cr | cw): n = max(n, 12 if big else 8)
            if c.kind == 'valu' and set(p.srcc) & cw: n = max(n, 7 if big else 3)
    if p.is_wide_store() and c.kind in ('valu', 'mfma'):
        if set(regs_of(p.ops[0])) & cw: n = max(n, 2)
    if p.kind == 'ds' and p.mn.startswith('ds_write_b128') and c.kind in ('valu', 'mfma'):
        if set(regs_of(p.ops[1])) & cw: n = max(n, 2)
    if p.kind == 'salu' and 'm0' in pw and c.kind == 'vmem' and 'm0' in cr: n = max(n, 1)
    return n

class Asm:
    def __init__(self):
        self.ins = []
    def __call__(self, text, tag=None):
        for line in text.split('\n'):
            line = line.strip()
            if line: self.ins.append(Ins(line, tag))
    def extend(self, lst):
        for x in lst:
            if isinstance(x, Ins): self.ins.append(x)
            else: self(x)

    def auto_wait(self):
        out = []; vm = []; lg = []; smem = False
        for I in self.ins:
            pseudo = False
            if I.kind == 'dir' and I.mn.startswith('.resetwait'):
                vm = []; lg = []; smem = False; continue
            if I.kind == 'dir' and I.mn.startswith('.vmdone'):
                vm = []; continue
            if I.kind == 'dir' and I.mn.startswith('.waitfor'):
                pseudo = True
                I.r = []
                for x in I.mn.split()[1:]:
                    I.r += [x] if x.startswith('tok:') else regs_of(x)
            elif I.kind in ('label', 'dir'):
                out.append(I); continue
            if I.mn == 's_waitcnt' and I.tag == 'nocount':
                out.append(I); continue
            if I.mn == 's_waitcnt':
                t = I.text.split(';')[0]
                m = re.search(r'vmcnt\((\d+)\)', t)
                if m:
                    n = int(m.group(1)); vm = vm[len(vm) - n:] if n < len(vm) else vm
                    if n == 0: vm = []
                m = re.search(r'lgkmcnt\((\d+)\)', t)
                if m:
                    n = int(m.group(1))
                    if n == 0: lg = []; smem = False
                    elif not smem: lg = lg[len(lg) - n:] if n < len(lg) else lg
                out.append(I); continue
            touch = set(I.r) | set(I.w)
            nv = nl = None
            for k in range(len(vm) - 1, -1, -1):
                if vm[k] & touch:
                    if I.kind == 'vmem' and not (vm[k] & set(I.r)): continue
                    nv = len(vm) - 1 - k; break
            for k in range(len(lg) - 1, -1, -1):
                if lg[k] & touch:
                    if I.kind == 'ds' and not smem and not (lg[k] & set(I.r)): continue
                    nl = 0 if smem else len(lg) - 1 - k; break
            if nv is not None or nl is not None:
                parts = []
                if nv is not None:
                    nv = min(nv, 62); parts.append(f'vmcnt({nv})'); vm = vm[len(vm) - nv:] if nv else []
                if nl is not None:
                    nl = min(nl, 14); parts.append(f'lgkmcnt({nl})'); lg = lg[len(lg) - nl:] if nl else []
                    if nl == 0: smem = False
                out.append(Ins('s_waitcnt ' + ' '.join(parts), 'auto'))
            if pseudo: continue
            out.append(I)
            tk = {I.tag} if I.tag and I.tag.startswith('tok:') else set()
            if I.tag == 'nocount': continue
            if I.kind == 'vmem': vm.append(set(I.w) | tk)
            elif I.kind == 'ds': lg.append(set(I.w) | tk)
            elif I.kind == 'smem': lg.append(set(I.w)); smem = True
        self.ins = out

    def fix_hazards(self):
        out = []; added = 0
        for I in self.ins:
            if I.kind not in ('label', 'dir'):
                need = 0; dist = 0
                for P in reversed(out):
                    if dist >= 20: break
                    if P.kind in ('label', 'dir'): continue
                    if P.mn in ('s_branch', 's_endpgm', 's_setpc_b64'): break
                    n = need_states(P, I) - dist
                    if n > need: need = n
                    dist += P.states()
                while need > 0:
                    k = min(need, 16); out.append(Ins(f's_nop {k-1}', 'haz')); need -= k; added += k
            out.append(I)
        self.ins = out
        return added

    def check_branch_hazards(self):
        lab = {I.mn[:-1]: k for k, I in enumerate(self.ins) if I.kind == 'label'}
        bad = []
        for k, I in enumerate(self.ins):
            if I.mn.startswith(('s_cbranch', 's_branch')):
                tgt = lab[I.ops[0]]
                before = []; d = 0
                for P in reversed(self.ins[:k + 1]):
                    if P.kind in ('label', 'dir'): continue
                    before.append((P, d)); d += P.states()
                    if d > 20: break
                d2 = 0
                for C in self.ins[tgt:]:
                    if C.kind in ('label', 'dir'): continue
                    for P, dp in before:
                        if need_states(P, C) > dp + d2: bad.append((P.text, C.text, I.text))
                    d2 += C.states()
                    if d2 > 20 or C.mn in ('s_branch', 's_endpgm'): break
        return bad

    def text(self):
        return '\n'.join(('' if I.kind == 'label' or I.kind == 'dir' else '    ') + I.text for I in self.ins) + '\n'

def interleave(main, fill, per=2, start=0):
    out = []; f = list(fill)
    for k, m in enumerate(main):
        out.append(m)
        if k >= start:
            for _ in range(per):
                if f: out.append(f.pop(0))
    return out + f

def vr(b, n=1, k='v'):
    return f'{k}{b}' if n == 1 else f'{k}[{b}:{b+n-1}]'

def slots(x):
    t = x.text if isinstance(x, Ins) else x
    if t.startswith(('.resetwait', '.vmdone')) or t.endswith(':'): return 0
    return 2 if t.startswith(TRANS + ('buffer_',)) else 1

def weave(main, fill, budget=2):
    txt = lambda x: x.text if isinstance(x, Ins) else x
    ism = lambda x: txt(x).startswith('v_mfma')
    nm = sum(ism(x) for x in main)
    f = list(fill); out = []; k = 0; i = 0
    n = len(main)
    while i < n:
        x = main[i]; out.append(x); i += 1
        if not ism(x): continue
        k += 1
        forced = []
        while i < n and not ism(main[i]): forced.append(main[i]); i += 1
        used = sum(slots(y) for y in forced)
        rem_f = sum(slots(y) for y in f if not isinstance(y, tuple))
        rem_forced = used + sum(slots(y) for y in main[i:] if not ism(y))
        gaps = nm - k + 1
        target = max(budget, -(-(rem_f + rem_forced) // gaps))
        pre = []
        while f and used < target:
            if isinstance(f[0], tuple):
                if k < f[0][1]: break
                f.pop(0); continue
            if ism(f[0]):
                pre.append(f.pop(0)); used -= budget; continue
            if used + slots(f[0]) > target and used > 0 and target == budget: break
            used += slots(f[0]); pre.append(f.pop(0))
        h = 0
        while h < len(forced) and not txt(forced[h]).startswith(('.waitfor', 's_waitcnt', 's_barrier')): h += 1
        out += forced[:h] + pre + forced[h:]
    return out + [y for y in f if not isinstance(y, tuple)]

def place(main, items, start, step):
    txt = lambda x: x.text if isinstance(x, Ins) else x
    groups = []; cur = []
    for x in items:
        cur.append(x)
        if txt(x).startswith(('buffer_', 'global_')): groups.append(cur); cur = []
    tail = cur
    nm = sum(txt(x).startswith('v_mfma') for x in main)
    at = {}; left = []
    for i, g in enumerate(groups):
        p = start + i * step
        if p > nm: left += g; continue
        at.setdefault(p - 1, []).extend(g[:-1]); at.setdefault(p, []).insert(0, g[-1])
    out = list(at.get(0, [])); k = 0
    for x in main:
        out.append(x)
        if txt(x).startswith('v_mfma'):
            k += 1; out += at.get(k, [])
    return out, left + tail
```

```python
import sys, struct
from asmlib import Asm, Ins, vr, weave, place

KNAME = 'interleave_layers__linear_attn_block__sliding_block__prompt_kernel'
WO = 0; T = 65536; S = 131072
TS = 2064
KVN = T
OWN = S + 512
STAT = S + 17024
CS = S + 17536
RES = S + 19072
LDS_BYTES = 163840
H2 = 0x10000; H1 = 0x100000
G0 = 0x300000
oXO = 0; oXX = 0x40000; oST = 0x70000; oFL = 0x78000; oFB = 0x7a000; oKVB = 0x80000
WS_BYTES = 0x2300000
STAMP0 = 0x2300000
OOB = 0x4000000
X0, WA, WOA, WB, WOB, OUT, WS = 's[8:11]', 's[12:15]', 's[16:19]', 's[20:23]', 's[24:27]', 's[28:31]', 's[32:35]'
sG, sJ, sW, sTag, sL, sGb, sEp, sCnt = ['s%d' % i for i in range(36, 44)]
sW14, sWsrc, sW12, sWoSrc, sXoLd, sXxSt, sRow, sFl, sFlOwn, sFast, sH1, sH2, sKVB, sFB, sKVN, sOwn = ['s%d' % i for i in range(44, 60)]
sNb = ['s60', 's61', 's62', 's63']
MASK0 = 64
vLane, vL16, vT, vRSa, vRSb, vCSa, vCSb, vXo, vPG, vWoD, vWoR, vXs, vStamp = ['v%d' % i for i in range(13)]
NE, E6, L2Er, ONES = 13, 14, 15, 16
L2E = 1.4426950408889634
def Wreg(mat, part, s):
    base = {('a', 'k'): ('a', 0), ('a', 'v'): ('a', 64), ('a', 'q'): ('a', 128), ('b', 'q'): ('a', 192), ('b', 'k'): ('v', 128), ('b', 'v'): ('v', 192)}[(mat, part)]
    return base[0], base[1] + 4 * s
def Wfrag(mat, part, s):
    k, b = Wreg(mat, part, s); return vr(b, 4, k)
PARTOFF = {'q': 0, 'k': 1024, 'v': 2048}
PARTI = {'q': 0, 'k': 1, 'v': 2}
def f2u(x): return '0x%08x' % struct.unpack('<I', struct.pack('<f', x))[0]
def M16(d, A, B, C): return f'v_mfma_f32_16x16x32_bf16 {d}, {A}, {B}, {C}'
def M32(d, A, B, C): return f'v_mfma_f32_32x32x16_bf16 {d}, {A}, {B}, {C}'
def pk(op, dst, *srcs):
    ops = []; lo = []; hi = []
    for s in srcs:
        if isinstance(s, tuple):
            n = s[1]; ops.append(vr(n & ~1, 2)); lo.append(n & 1); hi.append(n & 1)
        else:
            assert s % 2 == 0; ops.append(vr(s, 2)); lo.append(0); hi.append(1)
    assert dst % 2 == 0
    f = lambda l: '[' + ','.join(map(str, l)) + ']'
    return f'v_pk_{op}_f32 {vr(dst,2)}, ' + ', '.join(ops) + f' op_sel:{f(lo)} op_sel_hi:{f(hi)}'
def cvt(d, s): return f'v_cvt_pk_bf16_f32 v{d}, v{s}, v{s+1}'
def sw16(x, y): return f'v_permlane16_swap_b32 v{x}, v{y}'
def sw32(x, y): return f'v_permlane32_swap_b32 v{x}, v{y}'
def tok(text, name): return Ins(text, 'tok:' + name)
def lines(s): return [x.strip() for x in s.split('\n') if x.strip()]

def gen(opt):
    profile = opt.get('profile'); reuse = opt.get('reuse', 1)
    a = Asm(); ool = Asm()
    uid = [0]
    def lab(n):
        uid[0] += 1; return f'L_{n}_{uid[0]}'
    focus = opt.get('focus'); names = ['start']
    def stamp(L, i):
        if not profile: return
        if focus is not None:
            if L == focus or (L == focus - 1 and i == 12): fstamp(focus, f'S{L}.{i}')
            return
        a('s_memtime s[96:97]' if profile == 'cyc' else 's_memrealtime s[96:97]')
        a('s_waitcnt lgkmcnt(0)')
        a(f'v_writelane_b32 {vStamp}, s96, {16*L+i}')
    def fstamp(L, name):
        if focus != L: return
        a('s_memtime s[96:97]' if profile == 'cyc' else 's_memrealtime s[96:97]')
        a('s_waitcnt lgkmcnt(0)')
        a(f'v_writelane_b32 {vStamp}, s96, {len(names)}')
        names.append(name)
        assert len(names) <= 64
    def poll_start(vaddr, sbase, vtmp, off=0, n=1):
        return f'buffer_load_dword{"" if n == 1 else "x4"} {vr(vtmp, n)}, {vaddr}, {WS}, {sbase} offen offset:{off} sc1'
    def poll_finish(vaddr, sbase, vtmp, off=0, cmp=None, n=1, drain=True):
        r, c = lab('retry'), lab('chk')
        a(f's_branch {c}\n{r}:')
        a(poll_start(vaddr, sbase, vtmp, off, n), 'nocount')
        a(f's_add_u32 {sCnt}, {sCnt}, 1\ns_cmp_ge_u32 {sCnt}, 0x20000\ns_cbranch_scc1 L_end')
        if drain: a(f'{c}:\ns_waitcnt vmcnt(0)')
        else:
            a('s_waitcnt vmcnt(0)', 'nocount')
            a(f'{c}:\n.waitfor {vr(vtmp, n)}')
        a.extend(cmp or [f'v_cmp_ne_u32 vcc, {sTag}, v{vtmp + n - 1}'])
        a(f's_cbranch_vccnz {r}')
    def spread(alu, mem, every):
        o = []; mem = list(mem); k = 0
        isv = lambda y: (y.text if isinstance(y, Ins) else y).startswith('buffer_')
        for x in alu:
            if k % every == 0:
                while mem and not isv(mem[0]): o.append(mem.pop(0))
            if k % every == 1 and mem: o.append(mem.pop(0))
            o.append(x); k += 1
        return o + mem
    def fast_stores(stores):
        s, b = lab('slow'), lab('back')
        a(f's_cbranch_scc1 {s}')
        for x in stores: a.ins.append(x if isinstance(x, Ins) else Ins(x))
        a(f'{b}:')
        ool(f'{s}:')
        for x in stores: ool((x.text if isinstance(x, Ins) else x) + ' sc1')
        ool(f's_branch {b}')
    XO = lambda L: oXO + (0 if reuse else L * 0x10000)
    XX = lambda L: (0 if reuse else L * 0x10000)
    ST = lambda L: oST + (0 if reuse else L * 0x1000)

    def w_addr(E, O, R, t):
        o = lines(f'''v_lshrrev_b32 v{t}, 3, v0
        v_and_b32 v{t+1}, 7, v0
        v_lshrrev_b32 v{t+2}, 3, v0
        v_and_b32 v{t+2}, 2, v{t+2}
        v_xor_b32 v{t+1}, v{t+1}, v{t+2}
        v_mul_u32_u24 v{t}, 3072, v{t}
        v_lshl_add_u32 v{E}, v{t+1}, 4, v{t}
        v_xor_b32 v{O}, 64, v{E}
        v_add_u32 v{O}, 24576, v{O}''')
        o += lines(f'''v_lshrrev_b32 v{t}, 4, v0
        v_bfe_u32 v{t+1}, v0, 2, 2
        v_lshl_add_u32 v{t}, v{t}, 3, v{t+1}
        v_and_b32 v{t+1}, 3, v0
        v_lshlrev_b32 v{t+1}, 3, v{t+1}
        v_lshl_add_u32 v{t}, v{t}, 7, v{t+1}
        v_bfe_u32 v{t+1}, v0, 3, 2
        v_xor_b32 v{t+1}, {sW}, v{t+1}
        v_lshl_add_u32 v{R}, v{t+1}, 5, v{t}''')
        return o
    def w_dma(m, p, kq, slot, E, O, name):
        o = []
        for i in range(4):
            o.append(f's_add_u32 m0, {sW12}, {slot + i*1024}')
            if i % 2 == 0: o.append(f's_add_u32 s7, {sWsrc}, {(128*kq + 8*i)*3072 + PARTOFF[p]}')
            o.append(tok(f'buffer_load_dwordx4 v{E if i % 2 == 0 else O}, {WA if m == "a" else WB}, s7 offen lds', name))
        return o
    def w_read(m, p, kq, R, off):
        o = []
        for s2 in range(4):
            k, b = Wreg(m, p, 4*kq + s2)
            for hi in range(2): o.append(f'ds_read_b64_tr_b16 {vr(b+2*hi, 2, k)}, v{R} offset:{off + s2*4096 + hi*512}')
        return o
    def cs_mfma(m, p, d, lo=0, hi=16, one=ONES):
        return [M16(vr(d,4), vr(one,4), Wfrag(m,p,s), '0' if s == 0 else vr(d,4)) for s in range(lo, hi)]
    def cs_write(m, p, d): return f'ds_write_b32 {vCSb}, v{d} offset:{(0 if m == "a" else 768) + PARTI[p]*64}'
    def consts(): return [f'v_mov_b32 v{E6}, {f2u(1e-6)}', f'v_mov_b32 v{L2Er}, {f2u(L2E)}', f'v_mov_b32 v{NE}, {f2u(-1e-6*L2E)}'] + ones()
    def ones(b=ONES): return [f'v_mov_b32 v{b+i}, 0x3f803f80' for i in range(4)]
    def stats_fin(vs, vq, vaddr, t1):
        return lines(f'''v_mul_f32 v{vs}, {f2u(-1/512)}, v{vs}
        v_mul_f32 v{vq}, {f2u(1/512)}, v{vq}
        v_fma_f32 v{vq}, -v{vs}, v{vs}, v{vq}
        v_max_f32 v{vq}, 0, v{vq}
        v_add_f32 v{vq}, {f2u(1e-5)}, v{vq}
        v_rsq_f32 v{t1}, v{vq}
        v_mul_f32 v{vs}, v{vs}, v{t1}''') + [tok(f'ds_write2st64_b32 v{vaddr}, v{t1}, v{vs} offset0:0 offset1:1', 'stw')]

    a(f'.amdgcn_target "amdgcn-amd-amdhsa--gfx950"\n.text\n.globl {KNAME}\n.p2align 8\n.type {KNAME},@function\n{KNAME}:')
    if profile: a('s_memtime s[100:101]' if profile == 'cyc' else 's_memrealtime s[100:101]')
    a('s_cmp_ge_u32 s2, 256\ns_cbranch_scc1 L_end')
    a('s_load_dwordx16 s[64:79], s[0:1], 0\ns_load_dwordx2 s[80:81], s[0:1], 64')
    a('s_lshr_b32 s4, s2, 3')
    if opt.get('codepf', 1):
        a('s_getpc_b64 s[82:83]\nL_pc0:')
        a('v_lshrrev_b32 v1, 6, v0\nv_lshl_add_u32 v1, s4, 2, v1\nv_and_b32 v2, 3, v0\nv_lshl_add_u32 v1, v1, 2, v2\nv_lshlrev_b32 v1, 7, v1')
        a('v_min_u32 v1, L_codeend-L_pc0-4, v1')
        a('global_load_dword v127, v1, s[82:83]')
    a(f's_and_b32 s3, s2, 7\ns_lshr_b32 s5, s4, 3\ns_lshl_b32 s3, s3, 2\ns_add_u32 {sG}, s3, s5\ns_and_b32 {sJ}, s4, 7')
    a(f'v_lshrrev_b32 v2, 6, v0\nv_and_b32 v0, 63, v0\nv_readfirstlane_b32 {sW}, v2')
    if profile: a(f'v_mov_b32 {vStamp}, 0')
    a(f'v_lshlrev_b32 {vL16}, 4, v0')
    a('v_lshrrev_b32 v22, 2, v0\nv_and_b32 v23, 3, v0\nv_lshrrev_b32 v24, 4, v0\nv_and_b32 v24, 2, v24\nv_xor_b32 v23, v23, v24\nv_lshlrev_b32 v22, 10, v22\nv_lshl_add_u32 v118, v23, 4, v22')
    WE, WOd, WR = 124, 125, 126
    wa = w_addr(WE, WOd, WR, 24)
    a.extend(wa[:9])
    a(f's_lshl_b32 {sW14}, {sW}, 14\ns_lshl_b32 {sW12}, {sW}, 12\ns_lshl_b32 s6, {sJ}, 7')
    a(f's_mul_i32 {sWsrc}, {sW}, {32*3072}\ns_add_u32 {sWsrc}, {sWsrc}, s6')
    a(f's_lshl_b32 s3, {sG}, 16\ns_add_u32 s3, s3, {sW14}\ns_add_u32 {sRow}, s3, s6\ns_add_u32 s5, {sW14}, {T}')
    a(f's_lshl_b32 s84, s4, 2\ns_add_u32 s84, s84, {sW}\ns_lshl_b32 s85, s2, 2\ns_add_u32 s85, s85, {sW}')
    a(f'v_lshlrev_b32 v26, 7, v0\nv_subrev_u32 v27, 16, v0\nv_lshlrev_b32 v28, 10, v27\nv_mov_b32 v29, {OOB}')
    def pf_addr(d, n, cs, xs):
        return lines(f'''s_mul_i32 s86, s85, {cs}
        s_mul_i32 s87, s84, {xs}
        s_add_u32 s87, s87, 384
        v_add_u32 v30, s86, v26
        v_cmp_gt_u32 vcc, {n}, v0
        v_add_u32 v31, s87, v28
        s_nop 0
        v_cndmask_b32 v{d}, v29, v30, vcc
        v_cmp_gt_u32 vcc, {n}, v27
        s_nop 1
        v_cndmask_b32 v{d}, v{d}, v31, vcc''')
    a.extend(pf_addr(116, 12, 1536, 12288))
    a(f's_and_b32 s88, s2, 7\ns_lshl_b32 s88, s88, 18\ns_lshl_b32 s86, s84, 11\ns_add_u32 s88, s88, s86\nv_cmp_gt_u32 vcc, 16, v0\nv_cndmask_b32 v32, v29, v26, vcc')
    a('s_waitcnt lgkmcnt(0)')
    def srd(base, src, nb): a(f's_mov_b32 s{base}, s{src}\ns_mov_b32 s{base+1}, s{src+1}\ns_mov_b32 s{base+2}, {hex(nb)}\ns_mov_b32 s{base+3}, 0x20000')
    srd(8, 64, 0x200000)
    if opt.get('pf', 1): a(f'buffer_load_dword v127, v32, {X0}, s88 offen')
    srd(12, 66, 0x180000)
    if opt.get('pf', 1): a(f'buffer_load_dword v127, v116, {WA}, 0 offen')
    def x_dma(kq):
        o = []
        for s in range(4*kq, 4*kq+4):
            o += [f's_add_u32 m0, s5, {s*1024 - s*64}', tok(f'buffer_load_dwordx4 v118, {X0}, s3 offen offset:{s*64} lds', f'x{kq}')]
        return o
    ring = [('a','k',0),('a','v',0),('a','k',1),('a','v',1),('a','k',2),('a','v',2),('a','k',3),('a','v',3),('a','q',0),('a','q',1),('a','q',2),('a','q',3)]
    slot = lambda n: [0, 16384, 32768, 49152, S][n % 5]
    rd = lambda n: w_dma(*ring[n], slot(n), WE, WOd, f'r{n}')
    a.extend(x_dma(0)); a.extend(rd(0))
    a(f's_load_dword {sEp}, s[80:81], 0')
    srd(16, 68, 0x80000); srd(20, 72, 0x180000); srd(24, 74, 0x80000); srd(28, 76, 0x200000); srd(32, 80, WS_BYTES + (0x40000 if profile else 0))
    a.extend(rd(1))
    if profile: a(f'v_writelane_b32 {vStamp}, s100, 0')
    stamp(0, 1)
    a.extend(pf_addr(119, 4, 512, 4096))
    a('v_mov_b32 v255, v116\nv_mov_b32 v254, v119')
    a.extend(wa[9:])
    a(f'v_add_u32 v123, {S}, v{WR}')
    a('v_and_b32 v20, 15, v0\nv_lshrrev_b32 v21, 4, v0')
    a(f'v_lshlrev_b32 {vRSa}, 4, v21\nv_lshlrev_b32 {vRSb}, 2, v20')
    a(f's_mul_i32 s6, {sW}, 192\ns_add_u32 s6, s6, {CS}')
    a(f'v_add_u32 {vCSa}, s6, {vRSa}\nv_add_u32 {vCSb}, s6, {vRSb}\nv_add_u32 {vRSa}, {STAT}, {vRSa}\nv_add_u32 {vRSb}, {STAT}, {vRSb}')
    a(f'v_lshrrev_b32 v23, 2, v20\nv_and_b32 v23, 2, v23\nv_xor_b32 v24, v21, v23\nv_lshlrev_b32 v24, 4, v24\nv_lshl_add_u32 v24, v20, 6, v24\nv_add_u32 {vT}, {T}, v24')
    a(f'v_add_u32 v122, {sW14}, {vT}')
    a(f'v_and_b32 v25, 1, v21\nv_lshrrev_b32 v26, 1, v21\nv_lshl_add_u32 v27, v25, 1, v26\nv_lshlrev_b32 v28, 4, v20\nv_lshl_add_u32 {vXs}, v27, 8, v28')
    a(f'v_xor_b32 v27, v27, v23\nv_lshlrev_b32 v27, 4, v27\nv_lshl_add_u32 v27, v20, 6, v27\ns_lshl_b32 s6, {sJ}, 11\ns_add_u32 s7, s6, s5\nv_add_u32 v121, s7, v27')
    a(f's_lshl_b32 {sGb}, {sG}, 20\ns_add_u32 {sGb}, {sGb}, {G0}\ns_add_u32 {sXoLd}, {sGb}, {sW14}\ns_add_u32 {sXxSt}, {sXoLd}, s6\ns_add_u32 {sXxSt}, {sXxSt}, {oXX}')
    a(f's_lshl_b32 s6, {sJ}, 2\ns_add_u32 s6, s6, {sW}\ns_lshl_b32 s7, s6, 9')
    a(f'v_lshl_add_u32 v27, v25, 14, v28\nv_lshl_add_u32 v27, v26, 8, v27\nv_add_u32 {vXo}, s7, v27')
    a(f's_lshl_b32 {sH1}, s6, 15\ns_add_u32 {sH1}, {sH1}, {H1}\ns_lshl_b32 {sH2}, s6, 12\ns_add_u32 {sH2}, {sH2}, {H2}')
    a(f's_lshl_b32 {sKVB}, s6, 12\ns_add_u32 {sKVB}, {sKVB}, {sGb}\ns_add_u32 {sKVB}, {sKVB}, {oKVB}')
    a(f's_lshl_b32 {sFB}, s6, 7\ns_add_u32 {sFB}, {sFB}, {oFB}')
    a(f's_add_u32 {sFl}, {sGb}, {oFL}\ns_lshl_b32 s6, {sJ}, 2\ns_add_u32 {sFlOwn}, {sFl}, s6\ns_cmp_eq_u32 {sW}, 0\ns_cselect_b32 {sFlOwn}, {sFlOwn}, {OOB}')
    a(f's_lshl_b32 {sWoSrc}, {sW}, 17\ns_lshl_b32 s6, {sJ}, 7\ns_add_u32 {sWoSrc}, {sWoSrc}, s6')
    a(f's_mul_i32 {sKVN}, {sW}, {8*TS}\ns_add_u32 {sKVN}, {sKVN}, {KVN}\ns_mul_i32 {sOwn}, {sW}, {2*TS}\ns_add_u32 {sOwn}, {sOwn}, {OWN - 8*TS}')
    for i in range(4):
        a(f's_sub_u32 s6, {sKVB}, {(i+1) << 20}\ns_cmp_gt_u32 {sG}, {i}\ns_cselect_b32 {sNb[i]}, s6, {OOB}')
    a(f's_mov_b32 {sCnt}, 0\ns_mov_b32 {sL}, 0')
    a(f'v_and_b32 {vPG}, 7, v0\nv_lshlrev_b32 v27, 4, {vPG}\nv_lshlrev_b32 {vPG}, 2, {vPG}\nv_lshrrev_b32 v29, 3, v0\nv_lshl_add_u32 {vWoD}, v29, 12, v27')
    a(f'v_bfe_u32 v27, v0, 2, 2\nv_lshl_add_u32 v29, v26, 2, v25\nv_lshl_add_u32 v29, v27, 3, v29\nv_lshlrev_b32 v29, 7, v29\nv_lshl_add_u32 v29, v27, 5, v29\nv_and_b32 v27, 3, v0\nv_lshl_add_u32 {vWoR}, v27, 3, v29')
    a.extend(consts())
    a.extend(x_dma(1))
    a(f's_waitcnt lgkmcnt(0)\ns_add_u32 {sEp}, {sEp}, 1\ns_mul_i32 {sTag}, {sEp}, 0x9E3779B1\ns_cmp_eq_u32 {sTag}, 0x3f803f80\ns_addc_u32 {sEp}, {sEp}, 0\ns_mul_i32 {sTag}, {sEp}, 0x9E3779B1')
    a('v_and_b32 v28, 31, v0\nv_lshlrev_b32 v29, 2, v26\nv_sub_u32 v28, v28, v29')
    for i in range(16): a(f'v_cmp_le_i32 s[{MASK0+2*i}:{MASK0+2*i+1}], {8*(i>>2) + (i&3)}, v28')
    a(f's_getreg_b32 s6, hwreg(HW_REG_XCC_ID, 0, 4)\ns_add_u32 s6, s6, {sTag}\nv_mov_b32 v117, s6')
    a(f'v_mov_b32 v29, {OOB}\nv_cmp_eq_u32 vcc, 0, v0\nv_cndmask_b32 v120, v29, v0, vcc')
    xccst = [f'buffer_store_dword v117, v120, {WS}, {sFlOwn} offen offset:256 sc1']
    a.extend(rd(2)); a.extend(rd(3))
    rest = [f'buffer_load_dword v127, v255, {WB}, 0 offen', f'buffer_load_dword v127, v254, {WOA}, 0 offen', f'buffer_load_dword v127, v254, {WOB}, 0 offen'] if opt.get('pf', 1) else []
    pw = opt.get('pw', 1)
    if pw:
        m = '' if pw == 1 else ' sc1'
        j4 = vr(ONES, 4)
        xccst += [f's_add_u32 s6, {sGb}, {XO(0)}', f'buffer_store_dwordx4 {j4}, {vXo}, {WS}, s6 offen{m}', f's_add_u32 s6, s6, 32768', f'buffer_store_dwordx4 {j4}, {vXo}, {WS}, s6 offen{m}',
                  f'buffer_store_dwordx4 {j4}, {vXs}, {WS}, {sXxSt} offen{m}', f'buffer_store_dwordx4 {j4}, {vXs}, {WS}, {sXxSt} offen offset:1024{m}']
    if opt.get('pwh', 1):
        j4 = vr(ONES, 4)
        a(f'v_mov_b32 v29, {OOB}\nv_cmp_gt_u32 vcc, 8, v0\nv_cndmask_b32 v253, v29, {vL16}, vcc')
        xccst += [f's_lshl_b32 s6, {sG}, 10', f's_add_u32 s6, s6, {sH1}', f'buffer_store_dwordx4 {j4}, {vL16}, {WS}, s6 offen sc1', 's_add_u32 s6, s6, 0x100000', f'buffer_store_dwordx4 {j4}, {vL16}, {WS}, s6 offen sc1',
                  f's_lshl_b32 s6, {sG}, 7', f's_add_u32 s6, s6, {sH2}', f'buffer_store_dwordx4 {j4}, v253, {WS}, s6 offen sc1', 's_add_u32 s6, s6, 0x20000', f'buffer_store_dwordx4 {j4}, v253, {WS}, s6 offen sc1']
    acc0 = lambda p, t: 20 + 8*t + (0 if p == 'k' else 4)
    XR0 = 52
    GR, SM, CK, CV, OT = 84, 88, 92, 96, 100
    later = {0: (x_dma(2) + x_dma(3) + rd(4), rd(5)), 1: (rd(6), rd(7) + rd(8) + xccst), 2: ([], rd(9) + rd(10)), 3: ([], rd(11) + rest)}
    for kq in range(4):
        xs = {0: 'tok:x0', 1: 'tok:x1', 2: 'tok:x2 tok:x3', 3: ''}[kq]
        a(f'.waitfor {xs} tok:r{2*kq} tok:r{2*kq+1} tok:stw\ns_barrier')
        fstamp(0, f'step{kq}')
        if kq == 3: stamp(0, 2)
        for n in (2*kq, 2*kq+1):
            a.extend(w_read(*ring[n], WR if slot(n) < 65536 else 123, slot(n) if slot(n) < 65536 else 0))
        reads = [(t, s) for s in range(4*kq, 4*kq+4) for t in range(4)]
        rdx = lambda n: f'ds_read_b128 {vr(XR0 + 4*(n % 8), 4)}, {vT} offset:{(reads[n][0]*16 + reads[n][1])*1024}'
        own = {0: range(0, 4), 1: range(4, 8), 2: range(8, 16), 3: []}[kq]
        main = [rdx(n) for n in range(6)]
        main += cs_mfma('a', 'k', CK, 4*kq, 4*kq+4) + cs_mfma('a', 'v', CV, 4*kq, 4*kq+4)
        main += ['s_barrier']
        st = []
        for h in range(0, len(own), 4):
            st += [f'ds_read_b128 {vr(OT + 4*i, 4)}, v122 offset:{s*1024}' for i, s in enumerate(list(own)[h:h+4])]
            for i, s in enumerate(list(own)[h:h+4]):
                x = vr(OT + 4*i, 4)
                st += [M16(vr(GR,4), x, x, '0' if s == 0 else vr(GR,4)), M16(vr(SM,4), vr(ONES,4), x, '0' if s == 0 else vr(SM,4))]
        body = []
        for n, (t, s) in enumerate(reads):
            x = vr(XR0 + 4*(n % 8), 4)
            if n % 2 == 0: body.append(f'.waitfor {vr(XR0 + 4*((n+1) % 8), 4)}')
            for p in 'kv':
                d = vr(acc0(p, t), 4); body.append(M16(d, x, Wfrag('a', p, s), '0' if s == 0 else d))
            if n + 6 < 16: body.append(rdx(n + 6))
        a.extend(weave(main, later[kq][0][:14]))
        fill = later[kq][0][14:] + later[kq][1]
        if kq == 2:
            a.extend(weave(st, fill[:10])); fill = fill[10:]
            fin = lines(f'''v_and_b32 v116, 3, v0
            v_cmp_eq_u32 vcc, 1, v116
            v_cndmask_b32 v{GR}, v{GR}, v{GR+1}, vcc
            v_cmp_eq_u32 vcc, 2, v116
            v_cndmask_b32 v{GR}, v{GR}, v{GR+2}, vcc
            v_cmp_eq_u32 vcc, 3, v116
            v_cndmask_b32 v{GR}, v{GR}, v{GR+3}, vcc
            s_lshl_b32 s6, {sW}, 6
            v_add_u32 v117, s6, {vRSb}
            v_bfe_u32 v116, v0, 2, 2
            v_lshrrev_b32 v118, 4, v0
            v_cmp_eq_u32 vcc, v116, v118
            v_mov_b32 v116, {LDS_BYTES - 1024}
            v_cndmask_b32 v117, v116, v117, vcc''') + stats_fin(SM, GR, 117, 116)
            res = [f'ds_read_b128 v[100:103], v121', f'ds_read_b128 v[104:107], v121 offset:1024', f's_lshl_b32 s6, {sW}, 11', f's_add_u32 s6, s6, {RES}', f'v_add_u32 v119, s6, {vL16}',
                   'ds_write_b128 v119, v[100:103]', 'ds_write_b128 v119, v[104:107] offset:1024']
            a.extend(weave(body, fill + [('at', 6)] + res[:5] + fin + res[5:]))
        elif kq == 3:
            pre = [cs_write('a', 'k', CK), cs_write('a', 'v', CV)]
            for t in range(2): pre += [f'ds_read_b128 {vr(100+8*t,4)}, {vRSa} offset:{t*64}', f'ds_read_b128 {vr(104+8*t,4)}, {vRSa} offset:{256+t*64}']
            a.extend(weave(body, fill + pre))
        else:
            a.extend(weave(body + st, fill))
    PK, VV, KVr, Zr = 80, 88, 96, 100
    def epi_A_pk(K, V, RS, MR, B, csk, csv, t):
        o = []
        o += [pk('fma', B+i, MR+i, ('b', csk), ('b', E6)) for i in (0, 2)]
        o += [pk('mul', MR+i, MR+i, ('b', csv)) for i in (0, 2)]
        o2 = [pk('fma', K+i, K+i, RS+i, B+i) for i in (0, 2)]
        o2 += [pk('fma', V+i, V+i, RS+i, MR+i) for i in (0, 2)]
        o2 += [pk('fma', B+i, K+i, ('b', L2Er), ('b', NE)) for i in (0, 2)]
        o2 += [f'v_exp_f32_e64 v{B+i}, v{B+i} clamp' for i in range(4)]
        o2 += [f'v_max_f32 v{K+i}, v{K+i}, v{E6}' for i in range(4)]
        o2 += [cvt(VV+2*t, V), cvt(VV+2*t+1, V+2)]
        o2 += [pk('add', K+i, K+i, B+i) for i in (0, 2)]
        o2 += [cvt(PK+2*t, K), cvt(PK+2*t+1, K+2)]
        return o, o2
    a(f'v_mov_b32 v116, v{CK}\nv_mov_b32 v117, v{CV}')
    for t in range(2, 4): a(f'ds_read_b128 {vr(52+8*(t-2),4)}, {vRSa} offset:{t*64}\nds_read_b128 {vr(56+8*(t-2),4)}, {vRSa} offset:{256+t*64}')
    for t in range(4):
        rs = (100 + 8*t) if t < 2 else (52 + 8*(t-2))
        o, o2 = epi_A_pk(acc0('k', t), acc0('v', t), rs, rs+4, 68, 116, 117, t)
        a.extend(o + o2)
    def kv_mfma(h): return [M16(vr(KVr,4), vr(PK+4*h,4), vr(VV+4*h,4), '0' if h == 0 else vr(KVr,4)), M16(vr(Zr,4), vr(PK+4*h,4), vr(ONES,4), '0' if h == 0 else vr(Zr,4))]
    a.extend(kv_mfma(0) + kv_mfma(1))

    QA, XRq = 28, 44
    QF = [20, 24]; OA = [28, 44]
    def wo_xor(t): return [f'v_xor_b32 v{t+i}, {32*(i+1)}, {vWoD}' for i in range(3)]
    def wo_dma(srd, t, gs):
        o = []
        for g in gs:
            o += [f's_add_u32 m0, {sW14}, {WO + g*4096}', f's_add_u32 s7, {sWoSrc}, {g*32768}']
            for i in range(4): o.append(tok(f'buffer_load_dwordx4 {vWoD if i == 0 else "v%d" % (t+i-1)}, {srd}, s7 offen offset:{i*1024} lds', 'wo'))
        return o
    def q_pass(mat, ringb, fill, mem, mstart, forced):
        reads = [(t, s) for s in range(16) for t in range(4)]
        R = len(ringb); D = R - 1
        rdx = lambda n: f'ds_read_b128 {vr(ringb[n % R], 4)}, {vT} offset:{(reads[n][0]*16 + reads[n][1])*1024}'
        main = [rdx(n) for n in range(D)]
        for n, (t, s) in enumerate(reads):
            if n % 4 == 0 and n: main.append(f'.waitfor {vr(ringb[(n+3) % R], 4)}')
            d = vr(QA + 4*t, 4); main.append(M16(d, Wfrag(mat, 'q', s), vr(ringb[n % R], 4), '0' if s == 0 else d))
            if n + D < 64: main.append(rdx(n + D))
            main += forced.get(n, [])
        main, left = place(main, mem, mstart, 4)
        a.extend(weave(main, fill) + left)
    def flag_line(t):
        return [f'v_mov_b32 v{t+i}, {sTag}' for i in range(4)] + lines(f'''v_mov_b32 v{t+4}, {OOB}
        v_cmp_gt_u32 vcc, 8, v0
        v_cndmask_b32 v{t+4}, v{t+4}, {vL16}, vcc''')
    def passes(L, mat, fills, mems, shadow=[], extra0=[]):
        accp = lambda p, t: 20 + 8*(t & 1) + (0 if p == 'k' else 4)
        XR = 36
        dma = lambda n, name: [tok(f'buffer_load_dwordx4 {vL16}, {WS}, s3 offen offset:{i*1024} sc1 lds', name) for i in range(n)]
        a(f'buffer_load_dwordx2 v[112:113], v118, {WS}, s6 offen sc1\nbuffer_load_dwordx2 v[114:115], v118, {WS}, s6 offen offset:128 sc1')
        a.extend(dma(2, 't0a'))
        a('s_add_u32 m0, m0, 8192\ns_add_u32 s3, s3, 8192'); a.extend(dma(2, 't0b'))
        nxt = lambda t: [f's_add_u32 m0, s5, {t*16384}', f's_add_u32 s3, s4, {t*16384}'] + dma(4, f't{t}')
        a.extend(nxt(1))
        stat = lines(f'''v_add_f32 v112, v112, v114
        v_add_f32 v113, v113, v115
        {sw32(112,113)}
        v_add_f32 v112, v112, v113
        v_mov_b32 v113, v112
        {sw16(112,113)}
        v_add_f32 v112, v112, v113
        v_mov_b32 v113, v112
        {sw32(112,113)}''') + stats_fin(112, 113, 119, 114)
        a.extend(shadow)
        a.extend(stat[:9])
        a('.waitfor tok:t0a tok:shadow\ns_barrier')
        stamp(L, 1)
        rdx = lambda n: f'ds_read_b128 {vr(XR + 4*(n % 8), 4)}, {vT} offset:{n*1024}'
        D = 7
        a.extend([rdx(n) for n in range(D)])
        pend = []
        for t in range(4):
            main = []
            for s in range(16):
                n = 16*t + s; x = vr(XR + 4*(n % 8), 4)
                if n % 4 == 0 and n: main.append(f'.waitfor {vr(XR + 4*((n+3) % 8), 4)}')
                for p in 'kv':
                    d = vr(accp(p, t), 4); w = Wfrag(mat, p, s)
                    A, B = (w, x) if (mat == 'b' and p == 'k') else (x, w)
                    main.append(M16(d, A, B, '0' if s == 0 else d))
                m = n + D
                if m == 10: main += ['.waitfor tok:t0b', 's_barrier', rdx(8), rdx(9)]
                if m in (16, 32, 48): main += [f'.waitfor tok:t{m//16} tok:stw', 's_barrier']
                if m < 64 and m not in (8, 9): main.append(rdx(m))
            f = fills[t]
            if t == 0: f = stat[9:] + f; main = extra0 + main
            mem = pend + (nxt(2) + nxt(3) if t == 0 else []) + mems[t]
            main, pend = place(main, mem, 4 if t == 0 else 2, 4)
            a.extend(weave(main, f))
            fstamp(L, f'pass{t}')
        assert not pend
        return accp
    def entry_prep(L):
        return lines(f'''s_lshl_b32 s6, {sW}, 11
        s_add_u32 s4, {sGb}, {oXX + XX(L-1)}
        s_add_u32 s3, s4, s6
        s_add_u32 m0, s6, {T}
        s_add_u32 s4, s4, {sW12}
        s_add_u32 s5, {sW12}, {T}
        s_lshl_b32 s6, {sW}, 6
        v_add_u32 v119, s6, {vRSb}
        s_lshl_b32 s6, {sW}, 10
        s_add_u32 s6, s6, {sGb}
        s_add_u32 s6, s6, {ST(L-1)}
        v_and_b32 v118, 15, v0
        v_lshrrev_b32 v117, 4, v0
        v_lshlrev_b32 v118, 3, v118
        v_lshl_add_u32 v118, v117, 8, v118
        v_add_u32 {vT}, {T}, {vL16}''')

    def A_passes(L):
        RS, MR, B = 68, 72, 76
        def epi(t, accp):
            K, V = accp('k', t), accp('v', t)
            o = [f'ds_read_b128 {vr(RS,4)}, {vRSa} offset:{t*64}', f'ds_read_b128 {vr(MR,4)}, {vRSa} offset:{256+t*64}', ('at', 5), f'.waitfor {vr(MR,4)}']
            o += [f'v_fma_f32 v{B+i}, v{MR+i}, v104, v{E6}' for i in range(4)]
            o += [f'v_mul_f32 v{MR+i}, v{MR+i}, v105' for i in range(4)]
            o += [f'v_fma_f32 v{K+i}, v{K+i}, v{RS+i}, v{B+i}' for i in range(4)]
            o += [f'v_fma_f32 v{V+i}, v{V+i}, v{RS+i}, v{MR+i}' for i in range(4)]
            o += [f'v_fma_f32 v{B+i}, v{K+i}, v{L2Er}, v{NE}' for i in range(4)]
            o += [cvt(VV+2*t, V), cvt(VV+2*t+1, V+2)]
            for i in range(4): o += [f'v_exp_f32_e64 v{B+i}, v{B+i} clamp', f'v_max_f32 v{K+i}, v{K+i}, v{E6}']
            o += [f'v_add_f32 v{K+i}, v{K+i}, v{B+i}' for i in range(4)]
            o += [cvt(PK+2*t, K), cvt(PK+2*t+1, K+2)]
            return o
        accp = lambda p, t: 20 + 8*(t & 1) + (0 if p == 'k' else 4)
        last = [f'ds_read_b128 v[108:111], {vRSa} offset:{3*64}', f'ds_read_b128 v[112:115], {vRSa} offset:{256+3*64}']
        fills = [[f'ds_read2_b32 v[104:105], {vCSb} offset0:16 offset1:32'], epi(0, accp), epi(1, accp), last + kv_mfma(0) + epi(2, accp)]
        passes(L, 'a', fills, [[], [], [], []])
        stamp(L, 2)
        o, o2 = epi_A_pk(accp('k', 3), accp('v', 3), 108, 112, B, 104, 105, 3)
        a.extend(o + o2 + kv_mfma(1))
    def dppm(d, src, ctl, bank=0xf): return f'v_mov_b32_dpp v{d}, v{src} {ctl} row_mask:0xf bank_mask:{hex(bank)}'
    def ror(r, sh): return f'v_add_f32_dpp v{r}, v{r}, v{r} row_ror:{sh} row_mask:0xf bank_mask:0xf'
    def A_tail(L):
        it = L >> 1
        a(f's_lshl_b32 s3, {sG}, 10\ns_add_u32 s4, {sH1}, {it*0x100000}\ns_add_u32 s5, s4, s3\ns_lshl_b32 s3, {sG}, 5\ns_add_u32 s4, s4, s3')
        a(f's_add_u32 s6, {sH2}, {it*0x20000}\ns_lshl_b32 s3, {sG}, 7')
        dz = [dppm(Zr, Zr+i, 'quad_perm:[0,1,2,3]', 1 << i) for i in (1, 2, 3)]
        a.extend([dz[0], cvt(99, 98), cvt(98, 96), dz[1], f'v_mov_b32 v101, {sTag}', 's_add_u32 s3, s6, s3', dz[2]])
        a(f'buffer_store_dwordx4 v[98:101], {vL16}, {WS}, s5 offen sc1')
        stamp(L, 3)
        adr = lines(f'''v_lshrrev_b32 v112, 1, v0
        v_and_b32 v116, 1, v0
        v_lshlrev_b32 v116, 4, v116
        v_lshl_add_u32 v117, v112, 7, v116
        v_lshl_add_u32 v116, v112, 10, v116
        v_mov_b32 v112, {OOB}
        v_cmp_gt_u32 vcc, 8, v0''') + wo_xor(113) + [f'v_cndmask_b32 v112, v112, {vL16}, vcc']
        p1 = ('v116', 's4', 104, 0); p2 = ('v117', 's6', 96, 0)
        ringb = list(range(44, 92, 4))
        if L == 0:
            a('.waitfor tok:r11\ns_barrier')
            for n in range(8, 12): a.extend(w_read(*ring[n], WR if slot(n) < 65536 else 123, slot(n) if slot(n) < 65536 else 0))
            a.extend(weave(cs_mfma('a', 'q', 92), adr))
            a('s_barrier')
            w = wo_dma(WOA, 113, [0, 1])
            q_pass('a', ringb, [('at', 3), cs_write('a', 'q', 92)], w[:6] + [poll_start(*p1, n=4)] + w[6:], 2, {})
        else:
            a.extend(adr[7:10])
            q_pass('a', ringb, adr[:7] + adr[10:], wo_dma(WOA, 113, [0, 1]) + [poll_start(*p1, n=4)], 2, {})
        a(f'ds_read_b128 v[76:79], {vCSa}')
        a.extend([f'ds_read2_b32 {vr(80+2*t,2)}, {vRSb} offset0:{t*16} offset1:{64+t*16}' for t in range(4)])
        stamp(L, 4)
        poll_finish(*p1, n=4, drain=False)
        fstamp(L, 'hop1')
        a(f'''v_lshlrev_b32 v108, 16, v104
        v_and_b32 v109, 0xffff0000, v104
        v_lshlrev_b32 v110, 16, v105
        v_and_b32 v111, 0xffff0000, v105
        v_mov_b32 v104, v106
        {sw32(108, 109)}
        {sw32(110, 111)}
        {sw32(106, 104)}
        v_add_f32 v108, v108, v109
        v_add_f32 v110, v110, v111
        v_add_f32 v106, v106, v104
        v_mov_b32 v104, v106
        {sw16(108, 110)}
        v_add_f32 v108, v108, v110
        {sw16(106, 104)}
        v_add_f32 v106, v106, v104''')
        for sh in (8, 4, 2): a.extend([ror(108, sh), ror(106, sh)])
        a(f'v_mov_b32 v109, v108\n{sw32(108, 109)}\n{cvt(104, 108)}\nv_mov_b32 v105, v104\n{sw16(104, 105)}')
        a(f'buffer_store_dwordx4 v[104:107], v112, {WS}, s3 offen sc1')
        fstamp(L, 'reduce')
        e = []
        for t in range(4):
            q = QA + 4*t; B = 88
            e += [pk('fma', B+i, 76+i, ('b', 81+2*t), ('b', E6)) for i in (0, 2)]
            e += [pk('fma', q+i, q+i, ('b', 80+2*t), B+i) for i in (0, 2)]
            e += [pk('fma', B+i, q+i, ('b', L2Er), ('b', NE)) for i in (0, 2)]
            e += [f'v_exp_f32_e64 v{B+i}, v{B+i} clamp' for i in range(4)]
            e += [f'v_max_f32 v{q+i}, v{q+i}, v{E6}' for i in range(4)]
            e += [pk('add', q+i, q+i, B+i) for i in (0, 2)]
            e += [cvt(20+2*t, q), cvt(21+2*t, q+2)]
        e += [f's_add_u32 s4, {sGb}, {XO(L)}', sw16(20, 22), sw16(21, 23), f's_add_u32 s5, s4, 32768', sw16(24, 26), sw16(25, 27)]
        mem = wo_dma(WOA, 113, [2, 3])
        if L == 0:
            mem = [poll_start(vPG, sFl, 118, 256), poll_start(vPG, sFl, 119, 0), poll_start(vPG, sFl, 119, 128)] + mem
        a.extend(spread(e, mem, 7 if L == 0 else 10))
        a(poll_start(*p2, n=4))
        if L == 0:
            poll_finish(vPG, sFl, 118, 256, [f'v_subrev_u32 v120, {sTag}, v118', 'v_cmp_lt_u32 vcc, 15, v120'], drain=False)
            a(f'v_readfirstlane_b32 s3, v118\nv_cmp_ne_u32 vcc, s3, v118\ns_cmp_eq_u64 vcc, 0\ns_cselect_b32 {sFast}, {0 if opt.get("slow") else 1}, 0')
            a(f'v_add_u32 v122, {T}, v{WR}\ns_barrier')
        stamp(L, 5)
        poll_finish(*p2, n=4)
        stamp(L, 6)
        a.extend([dppm(108+r, 98, f'row_newbcast:{4*r}') for r in range(4)] + [cvt(98, 108), cvt(99, 110), sw16(96, 98), sw16(97, 99)])
        for u in range(2): a(M32(vr(OA[u],16), 'v[96:99]', vr(QF[u],4), '0'))
        for u in range(2): a(f'v_add_f32 v{OA[u]+8}, v{OA[u]+8}, v{E6}')

    CB, SB, KB, VB = 60, [96, 112], 76, 88
    vK, vVa, vVb, NM, NEG, TMP = 13, 14, 15, [16, 17], 18, 19
    mk = lambda i: f's[{MASK0+2*i}:{MASK0+2*i+1}]'
    def qk(u, sb, c, k=KB): return M32(vr(sb,16), vr(k,4), vr(QF[u],4), c)
    def pv(u, sb, h, init=False): return M32(vr(OA[u],16), vr(VB+4*h,4), vr(sb+8*h,4), '0' if init else vr(OA[u],16))
    def B_prep(L):
        o = lines(f'''v_mov_b32 v60, {sKVN}
        v_mov_b32 v61, {sOwn}
        v_cmp_gt_u32 vcc, 8, v0
        v_mul_u32_u24 v62, {TS}, v0
        s_lshl_b32 s7, {sG}, 1
        v_cndmask_b32 v60, v61, v60, vcc
        v_add_u32 v61, s7, v0
        v_cmp_le_u32 vcc, 8, v61
        v_add3_u32 v60, v60, v62, 64
        v_mov_b32 v62, 0x3f803f80
        v_cndmask_b32 v17, 0, v62, vcc
        v_cmp_gt_u32 vcc, 10, v0
        v_add_u32 v60, {2048-64}, v60
        v_mov_b32 v63, {LDS_BYTES - 2048}
        v_cndmask_b32 v16, v63, v60, vcc
        v_lshrrev_b32 v60, 5, v0
        v_and_b32 v61, 15, v0
        v_lshlrev_b32 v61, 4, v61
        v_lshl_add_u32 v60, v60, 8, v61
        v_and_b32 v63, 16, v0
        v_cmp_eq_u32 vcc, 0, v63
        v_add_u32 v60, 1024, v60
        v_add_u32 v61, 512, v60
        v_mov_b32 v62, 2048
        v_cndmask_b32 v60, v62, v60, vcc
        v_cndmask_b32 v61, v62, v61, vcc
        v_add_u32 v{vK}, {sKVN}, {vL16}
        v_add_u32 v{vVa}, {sOwn}, v60
        v_add_u32 v{vVb}, {sOwn}, v61
        v_and_b32 v60, 3, v0
        v_sub_u32 v60, {sG}, v60
        v_subrev_u32 v60, 1, v60
        v_cmp_gt_i32 vcc, 0, v60
        v_mov_b32 v61, {sG}
        v_mov_b32 v{NEG}, {f2u(-1e30)}
        v_cndmask_b32 v60, v60, v61, vcc
        v_lshlrev_b32 v{TMP}, 20, v60''')
        if L == 3: o += [f's_add_u32 {x}, {x}, 0x20000' for x in sNb + [sKVB]] + [f's_add_u32 {sFB}, {sFB}, 0x2000']
        return o
    def B_layer(L):
        it = L >> 1
        RS, MR, B = 68, 72, 76
        KK = PK
        accp = lambda p, t: 20 + 8*(t & 1) + (0 if p == 'k' else 4)
        def rds(t, RS, MR, rm): return [f'ds_read_b128 {vr(RS,4)}, {vRSa} offset:{t*64}', f'ds_read_b128 {vr(MR,4)}, {vRSa} offset:{256+t*64}', f'ds_read2_b32 {vr(rm,2)}, {vRSb} offset0:{t*16} offset1:{64+t*16}']
        def epi(t):
            K, V = accp('k', t), accp('v', t)
            o = rds(t, RS, MR, 110) + [('at', 5), '.waitfor v[110:111]']
            o += [f'v_mul_f32 v{B+i}, v111, v{104+i}' for i in range(4)]
            o += [f'v_mul_f32 v{MR+i}, v{MR+i}, v108' for i in range(4)]
            o += [f'v_fma_f32 v{K+i}, v{K+i}, v110, v{B+i}' for i in range(4)]
            o += [f'v_fma_f32 v{V+i}, v{V+i}, v{RS+i}, v{MR+i}' for i in range(4)]
            o += [cvt(KK+2*t, K), cvt(KK+2*t+1, K+2), cvt(VV+2*t, V), cvt(VV+2*t+1, V+2)]
            return o
        def out(u):
            k, v = KK + 4*u, VV + 4*u
            return [sw16(k, k+2), sw16(k+1, k+3), sw32(v, v+2), sw32(v+1, v+3),
                    tok(f'buffer_store_dwordx4 {vr(k,4)}, {vL16}, {WS}, {sKVB} offen offset:{u*2048} sc1', f'kv{u}'),
                    tok(f'buffer_store_dwordx4 {vr(v,4)}, {vL16}, {WS}, {sKVB} offen offset:{u*2048+1024} sc1', f'kv{u}'),
                    f'ds_write_b128 v109, {vr(v,4)} offset:{(8+u)*TS+1024}']
        f0 = [f'ds_read_b128 v[104:107], {vCSa} offset:{768+64}'] + ([f'ds_read_b32 v108, {vCSb} offset:{768+128}'] if L == 3 else [])
        f0 += [f'v_add_u32 v109, {sOwn}, {vL16}', f's_add_u32 s99, {sFB}, {sGb}', f's_add_u32 s98, s99, 0x1000'] + flag_line(96) + wo_xor(101)
        bq = [w_dma('b', 'q', kq, kq*16384, WE, WOd, 'bq') for kq in range(4)] if L == 1 else [[], [], [], []]
        last = rds(3, 112, 116, 120) + ['.waitfor v[120:121]'] + [f'v_mul_f32 v{116+i}, v{116+i}, v108' for i in range(4)]
        fills = [f0, epi(0), epi(1) + out(0), epi(2) + last]
        shadow = []; extra0 = []
        if L == 1:
            shadow = w_read('b', 'v', 1, 122, 2*16384) + w_read('b', 'v', 2, 122, 3*16384) + w_read('b', 'v', 3, 123, 0)
            shadow[-1] = tok(shadow[-1], 'shadow')
            extra0 = cs_mfma('b', 'v', 92, 4, 16, one=76)
            fills[0] = f0 + [('at', 20), cs_write('b', 'v', 92), 'v_mov_b32 v108, v92']
        passes(L, 'b', fills, [[], bq[0] + bq[1], bq[2] + bq[3], []], shadow, extra0)
        stamp(L, 2)
        K, V = accp('k', 3), accp('v', 3)
        a.extend([pk('mul', B+i, 104+i, ('b', 121)) for i in (0, 2)])
        a.extend([pk('fma', K+i, K+i, ('b', 120), B+i) for i in (0, 2)] + [pk('fma', V+i, V+i, 112+i, 116+i) for i in (0, 2)])
        a.extend([cvt(KK+6, K), cvt(KK+7, K+2), cvt(VV+6, V), cvt(VV+7, V+2)])
        o1 = out(1)
        fl = lambda e: [f'.waitfor tok:kv{e}', f'buffer_store_dwordx4 v[96:99], v100, {WS}, {"s99" if e == 0 else "s98"} offen sc1']
        a.extend(o1[:6] + fl(0) + o1[6:])
        a(f's_add_u32 s6, {sFB}, {G0}\ns_add_u32 s5, s6, 0x1000\ns_sub_u32 s4, {sKVN}, {sOwn}')
        stamp(L, 3)
        ringb = list(range(44, 76, 4)) + list(range(104, 120, 4))
        pe = (f'v{TMP}', 's6', 79, 0); pl = (f'v{TMP}', 's5', 84, 0)
        w = wo_dma(WOB, 101, range(4))
        qrd = [f'ds_read_b128 v[88:91], {vCSa} offset:768'] + [f'ds_read2_b32 {vr(120+2*t,2)}, {vRSb} offset0:{t*16} offset1:{64+t*16}' for t in range(4)]
        if L == 1:
            a.extend(ones(104))
            a('.waitfor tok:bq\ns_barrier')
            for kq in range(4): a.extend(w_read('b', 'q', kq, WR, kq*16384))
            a.extend(cs_mfma('b', 'q', 92, one=104))
            a('s_barrier')
            q_pass('b', ringb, [('at', 3), cs_write('b', 'q', 92), ('at', 54)] + qrd, w[:12] + [poll_start(*pe)] + w[12:], 1, {14: fl(1)})
        else:
            q_pass('b', ringb, [('at', 54)] + qrd, w[:15] + [poll_start(*pe)] + w[15:], 1, {50: fl(1)})
        stamp(L, 4)
        def nb_dma(e):
            o = []
            for i in range(4):
                kt = 6 - 2*i + e
                o += [f's_add_u32 m0, {sKVN}, {kt*TS - e*2048}']
                o += [tok(f'buffer_load_dwordx4 {vL16}, {WS}, {sNb[i]} offen offset:{e*2048 + h*1024} sc1 lds', f'n{kt}') for h in range(2)]
            return o
        rdK = lambda kt: f'ds_read_b128 {vr(KB,4)}, v{vK} offset:{kt*TS}'
        rdV = lambda kt, h: f'ds_read_b128 {vr(VB+4*h,4)}, v{vVa if h == 0 else vVb} offset:{kt*TS}'
        poll_finish(*pe, drain=False)
        a('s_barrier')
        stamp(L, 5)
        e = [f'v_mov_b32 v92, {f2u(0.25*L2E)}'] + [f'v_cndmask_b32 v{CB+i}, v{NEG}, 0, {mk(i)}' for i in range(16)]
        e += [pk('mul', 120+2*t, 120+2*t, ('b', 92)) for t in range(4)]
        for t in range(4):
            q = QA + 4*t
            e += [pk('mul', 92+i, 88+i, ('b', 121+2*t)) for i in (0, 2)] + [pk('fma', q+i, q+i, ('b', 120+2*t), 92+i) for i in (0, 2)]
            if t == 2: e += [sw16(20, 22), sw16(21, 23)]
            e += [cvt(20+2*t, q), cvt(21+2*t, q+2)]
        e += [f'ds_write2_b32 v16, v17, v17 offset0:0 offset1:1', qk(0, SB[0], vr(CB,16), KK), sw16(24, 26), sw16(25, 27),
              f'ds_write2_b32 v16, v17, v17 offset0:2 offset1:3', 's_nop 0', qk(1, SB[1], vr(CB,16), KK+4)]
        a.extend(spread(e, nb_dma(0), 7))
        a(poll_start(*pl))
        for u in range(2):
            a(f'v_max3_f32 v{NM[u]}, v{SB[u]}, v{SB[u]+1}, v{SB[u]+2}\nv_max3_f32 v{76+u}, v{SB[u]+3}, v{SB[u]+4}, v{SB[u]+5}')
            for i in range(6, 14, 4):
                a(f'v_max3_f32 v{NM[u]}, v{NM[u]}, v{SB[u]+i}, v{SB[u]+i+1}\nv_max3_f32 v{76+u}, v{76+u}, v{SB[u]+i+2}, v{SB[u]+i+3}')
            a(f'v_max3_f32 v{NM[u]}, v{NM[u]}, v{SB[u]+14}, v{SB[u]+15}\nv_max_f32 v{NM[u]}, v{NM[u]}, v{76+u}\nv_mov_b32 v{76+u}, v{NM[u]}')
        a(f'{sw32(NM[0], 76)}\n{sw32(NM[1], 77)}')
        for u in range(2): a(f'v_min_f32_e64 v{NM[u]}, -v{NM[u]}, -v{76+u}')
        if opt.get('fb'):
            for u in range(2): a(f'v_add_f32 v{NM[u]}, {f2u(200.0)}, v{NM[u]}')
        a.extend([pk('add', SB[u]+i, SB[u]+i, ('b', NM[u])) for u in range(2) for i in range(0, 16, 2)])
        a.extend([f'v_pk_mov_b32 {vr(CB+i,2)}, v[16:17], v[16:17] op_sel:[1,1]' for i in range(0, 16, 2)])
        stamp(L, 6)
        ops = [(0, 8), (1, 9), (1, 8), (1, 6), (1, 4), (1, 2), (0, 6), (0, 4), (0, 2), (0, 0), (0, 7), (0, 5), (0, 3), (0, 1), (1, 7), (1, 5), (1, 3), (1, 1)]
        N = len(ops); seen = set()
        for n in range(N + 1):
            sb, pb = SB[n % 2], SB[1 - n % 2]
            far = n < N and ops[n][1] == ops[n][0]
            def E(i):
                if n == N: return []
                o = [f'v_exp_f32 v{sb+i}, v{sb+i}', f'v_exp_f32 v{sb+i+1}, v{sb+i+1}']
                return o
            def Cv(h, i, b=None, isfar=far):
                b = sb if b is None else b
                o = []
                if isfar: o += [f'v_cndmask_b32 v{b+8*h+2*i+k}, v{b+8*h+2*i+k}, 0, {mk(8*h+2*i+k)}' for k in range(2)]
                return o + [f'v_cvt_pk_bf16_f32 v{b+8*h+i}, v{b+8*h+2*i}, v{b+8*h+2*i+1}']
            C = (lambda h, i: Cv(h, i)) if n < N else (lambda h, i: [])
            lateK = n + 1 < N and n + 1 in (3, 10)
            toks = []
            for m in ([n] if n < N else []) + ([n+1] if lateK else []) + ([n+2] if n + 2 < N and n + 2 not in (3, 10) else []):
                kt = ops[m][1]
                if kt < 8 and kt not in seen: seen.add(kt); toks.append(f'tok:n{kt}')
            s = E(0)
            if n > 0: s += Cv(1, 3, pb, ops[n-1][1] == ops[n-1][0])
            s += [f'.waitfor {" ".join(toks)} {vr(KB,4)} {vr(VB,8)}']
            if n == 3: s += [f'v_add_u32 v{vVa}, s4, v{vVa}', f'v_add_u32 v{vVb}, s4, v{vVb}']
            if lateK: s += [rdK(ops[n+1][1])]
            if n > 0: s += [pv(ops[n-1][0], pb, 0, init=(n-1 < 2))]
            if n < N: s += [rdV(ops[n][1], 0)]
            s += E(2) + C(0, 0) + E(4)
            if n > 0: s += [pv(ops[n-1][0], pb, 1)]
            if n < N: s += [rdV(ops[n][1], 1)]
            s += C(0, 1) + E(6) + C(0, 2)
            if 2 <= n + 1 < N:
                s += [qk(ops[n+1][0], pb, vr(CB,16), KK if n + 1 == 2 else KB)]
            if n + 2 < N and n + 2 > 2 and n + 2 not in (3, 10): s += [rdK(ops[n+2][1])]
            s += E(8) + C(0, 3) + E(10) + C(1, 0) + E(12)
            if n + 2 < N and n + 1 >= 2 and ops[n+2][0] != ops[n+1][0]:
                s += [f'v_mov_b32 v{CB+i}, v{NM[ops[n+2][0]]}' for i in range(16)]
            s += C(1, 1) + E(14) + C(1, 2)
            LP = opt.get('lp', 3)
            if n in (LP + 1, LP + 2):
                d = nb_dma(1); s = spread(s, d[:6] if n == LP + 1 else d[6:], 8)
            a.extend(s)
            fstamp(L, f'op{n}')
            if n == LP:
                poll_finish(*pl)
                fstamp(L, 'latepoll')
        a(f's_add_u32 s4, {sGb}, {XO(L)}\ns_add_u32 s5, s4, 32768\ns_mov_b32 {sL}, {L}')
        o = OA[0]
        a(f'v_maximum3_f32 v76, abs(v{o}), abs(v{o+1}), v{o+8}')
        for i in range(2, 8, 2): a(f'v_maximum3_f32 v76, abs(v{o+i}), abs(v{o+i+1}), v76')
        o = OA[1]
        for i in range(0, 8, 2): a(f'v_maximum3_f32 v76, abs(v{o+i}), abs(v{o+i+1}), v76')
        a(f'v_maximum3_f32 v76, v{o+8}, v76, v76')
        a(f'v_cmp_nlt_f32 vcc, v76, abs(v{NEG})\ns_cbranch_vccnz L_fallback\nL_fbdone{L}:')

    def common(L):
        stamp(L, 7)
        for u in range(2): a(f'v_rcp_f32 v{OA[u]+8}, v{OA[u]+8}')
        a(f's_cmp_eq_u32 {sFast}, 0')
        for u in range(2):
            o = OA[u]
            a.extend([pk('mul', o+i, o+i, ('b', o+8)) for i in range(0, 8, 2)] + [cvt(o+10+i, o+2*i) for i in range(4)])
        fast_stores([tok(f'buffer_store_dwordx4 {vr(OA[u]+10,4)}, {vXo}, {WS}, {"s4" if u == 0 else "s5"} offen', 'ost') for u in range(2)])
        if L == 0:
            for kq in range(3): a.extend(w_dma('b', 'k', kq, T + kq*16384, WE, WOd, 'b3'))
            a(f'v_mov_b32 v13, v122\nv_mov_b32 v254, v{WE}\nv_mov_b32 v255, v{WOd}')
        a(f's_lshl_b32 s6, {sW}, 11\ns_add_u32 s6, s6, {RES}\nv_add_u32 v14, s6, {vL16}')
        a('ds_read_b128 v[60:63], v14\nds_read_b128 v[64:67], v14 offset:1024')
        a(f'v_mov_b32 v68, {sTag}\nv_mov_b32 v69, {OOB}\nv_cmp_eq_u32 vcc, 0, v0')
        a.extend([f'v_xor_b32 v{124+i}, {32*(i+1)}, {vWoR}' for i in range(3)])
        a(f'v_cndmask_b32 v15, v69, v0, vcc\ns_add_u32 s5, {sXoLd}, {XO(L)}')
        a.extend(ones())
        a.extend([sw16(60, 62), sw16(61, 63), sw16(64, 66), sw16(65, 67)])
        for i in range(8): a(f'v_lshlrev_b32 v{20+2*i}, 16, v{60+i}\nv_and_b32 v{21+2*i}, 0xffff0000, v{60+i}')
        a(f's_cmp_eq_u32 {sFast}, 0\n.waitfor tok:ost\ns_barrier')
        fast_stores([f'buffer_store_dword v68, v15, {WS}, {sFlOwn} offen offset:{64*L}'])
        stamp(L, 8)
        NW, NO, Wr, Or = 12, 10, 76, 36
        def rdw(n):
            s, t = n >> 2, n & 3
            ad = vWoR if t == 0 else f'v{123+t}'
            return [f'ds_read_b64_tr_b16 {vr(Wr + 4*(n % NW) + 2*hi, 2)}, {ad} offset:{WO + s*4096 + hi*256}' for hi in range(2)]
        def ldo(s):
            o = [f's_add_u32 s5, s5, 4096'] if s % 4 == 0 and s else []
            return o + [f'buffer_load_dwordx4 {vr(Or + 4*(s % NO), 4)}, {vL16}, {WS}, s5 offen offset:{(s%4)*1024} sc1']
        for n in range(NW): a.extend(rdw(n))
        a(poll_start(vPG, sFl, 127, 64*L))
        poll_finish(vPG, sFl, 127, 64*L)
        stamp(L, 9)
        for s in range(NO): a.extend(ldo(s))
        fstamp(L, 'oissue')
        if L == 0:
            a('s_barrier')
            for kq in range(3): a.extend(w_read('b', 'k', kq, 13, kq*16384))
            st0 = w_dma('b', 'k', 3, T, 254, 255, 'b4') + w_dma('b', 'v', 0, T + 16384, 254, 255, 'b4')
        for n in range(64):
            s, t = n >> 2, n & 3
            if t == 0: a(f'.waitfor {vr(Or + 4*(s % NO), 4)} {vr(Wr + 4*((n+3) % NW), 4)}')
            d = vr(20+4*t, 4)
            a(M16(d, vr(Wr + 4*(n % NW), 4), vr(Or + 4*(s % NO), 4), d))
            if n + NW < 64: a.extend(rdw(n + NW))
            if t == 3 and s + NO < 16: a.extend(ldo(s + NO))
            if L == 0 and n == 15: a('s_barrier')
            if L == 0 and s >= 6 and t == 1:
                while st0:
                    y = st0.pop(0); a.extend([y])
                    if isinstance(y, Ins): break
            if t == 3 and s in (0, 3, 7, 11, 15): fstamp(L, f'wo{s}')
            if n == 56 and L < 3:
                a(f's_add_u32 s4, {sXxSt}, {XX(L)}')
            if n == 57 and L < 3: a(f's_lshl_b32 s3, {sJ}, 7\ns_lshl_b32 s5, {sW}, 10')
            if n == 58 and L < 3: a(f's_add_u32 s3, s3, s5\ns_add_u32 s3, s3, {sGb}')
            if n == 59 and L < 3: a(f's_add_u32 s3, s3, {ST(L)}\nv_mov_b32 v70, 0')
            if n == 60 and L < 3: a('v_mov_b32 v71, 0\nv_mov_b32 v72, 0')
            if n == 61 and L < 3: a(f'v_mov_b32 v73, 0\ns_cmp_eq_u32 {sFast}, 0')
            if n == 56 and L == 3: a(f'v_and_b32 v70, 15, v0\nv_lshlrev_b32 v70, 10, v70')
            if n == 57 and L == 3: a(f'v_lshrrev_b32 v71, 8, {vXs}\nv_lshl_add_u32 v70, v71, 4, v70')
        a.extend([cvt(36+i, 20+2*i) for i in range(8)])
        a.extend([sw16(36, 38), sw16(37, 39), sw16(40, 42), sw16(41, 43)])
        if L == 3:
            a(f'buffer_store_dwordx4 v[36:39], v70, {OUT}, {sRow} offen\nbuffer_store_dwordx4 v[40:43], v70, {OUT}, {sRow} offen offset:64')
            stamp(L, 10)
            return
        fast_stores([f'buffer_store_dwordx4 {vr(36+4*i,4)}, {vXs}, {WS}, s4 offen offset:{i*1024}' for i in range(2)])
        for r in range(8):
            a(f'v_dot2c_f32_bf16 v{70 + (r&1)}, v{36+r}, v{ONES}\nv_dot2c_f32_bf16 v{72 + (r&1)}, v{36+r}, v{36+r}')
        a(f'v_and_b32 v48, 15, v0\nv_lshlrev_b32 v48, 3, v48\nv_lshrrev_b32 v49, 5, v0')
        a(f'v_add_f32 v70, v70, v71\nv_add_f32 v72, v72, v73\nv_lshl_add_u32 v48, v49, 2, v48\nv_and_b32 v49, 16, v0')
        a(f'{sw32(70, 72)}\nv_add_f32 v70, v70, v72\nv_mov_b32 v71, v70\nv_lshl_add_u32 v48, v49, 22, v48\nv_mov_b32 v68, {sTag}\n{sw16(70, 71)}\nv_add_f32 v70, v70, v71')
        fast_stores([tok(f'buffer_store_dword v70, v48, {WS}, s3 offen', 'xst')])
        stamp(L, 10)
        if L == 0:
            a.extend(w_dma('b', 'v', 1, T + 2*16384, 254, 255, 'b5') + w_dma('b', 'v', 2, T + 3*16384, 254, 255, 'b5') + w_dma('b', 'v', 3, S, 254, 255, 'b5'))
        a('ds_write_b128 v14, v[36:39]\nds_write_b128 v14, v[40:43] offset:1024')
        a.extend(entry_prep(L + 1))
        a(f's_cmp_eq_u32 {sFast}, 0\n.waitfor tok:xst\ns_barrier')
        fast_stores([f'buffer_store_dword v68, v15, {WS}, {sFlOwn} offen offset:{64*L+32}'])
        stamp(L, 11)
        px = (vPG, sFl, 127, 64*L+32)
        if L == 0:
            a.extend(w_read('b', 'k', 3, 13, 0) + w_read('b', 'v', 0, 13, 16384))
            a(poll_start(*px))
            a.extend(ones(76) + w_addr(WE, WOd, WR, 100) + [f'v_add_u32 v122, {T}, v{WR}', f'v_add_u32 v123, {S}, v{WR}'])
            a.extend(weave(cs_mfma('b', 'k', 88, one=76) + cs_mfma('b', 'v', 92, 0, 4, one=76), B_prep(1)))
            a(cs_write('b', 'k', 88))
        else:
            pre = consts() if L == 1 else B_prep(3)
            a.extend(pre[:opt.get('pd', 24)]); a(poll_start(*px)); a.extend(pre[opt.get('pd', 24):])
        poll_finish(*px)
        if L == 0: a('s_barrier')
        stamp(L, 12)

    A_tail(0); common(0)
    B_layer(1); common(1)
    A_passes(2); A_tail(2); common(2)
    B_layer(3); common(3)
    a(f's_or_b32 s3, s2, {sW}\ns_cmp_eq_u32 s3, 0\ns_cselect_b32 s3, 0, {OOB}\nv_mov_b32 v44, {sEp}\nbuffer_store_dword v44, v15, {WS}, s3 offen')
    if profile:
        a('s_waitcnt vmcnt(0)')
        stamp(3, 11)
        a(f's_lshl_b32 s3, s2, 2\ns_add_u32 s3, s3, {sW}\ns_lshl_b32 s3, s3, 8\ns_add_u32 s3, s3, {STAMP0}\nv_lshlrev_b32 v45, 2, v0')
        a(f'buffer_store_dword {vStamp}, v45, {WS}, s3 offen')
        if opt.get('amp'):
            i0, i1, wg = opt['amp']
            a(f's_cmp_lg_u32 s2, {wg}\ns_cbranch_scc1 L_end\ns_cmp_lg_u32 {sW}, 0\ns_cbranch_scc1 L_end')
            a(f'v_readlane_b32 s4, {vStamp}, {i0}\nv_readlane_b32 s5, {vStamp}, {i1}\nv_readlane_b32 s6, {vStamp}, 59\ns_nop 3\ns_sub_u32 s5, s5, s4\ns_lshl_b32 s5, s5, 3\ns_min_u32 s5, s5, 100000')
            a('L_amp:\ns_memrealtime s[96:97]\ns_waitcnt lgkmcnt(0)\ns_sub_u32 s7, s96, s6\ns_cmp_lt_u32 s7, s5\ns_cbranch_scc1 L_amp')
    a('L_end:\ns_endpgm\nL_codeend:')
    a('.resetwait')
    a.extend(ool.ins)

    a('L_fallback:\n.resetwait\ns_nop 15')
    for u in range(2):
        a(f's_add_u32 m0, {sOwn}, {(8+u)*TS - u*2048}\ns_nop 0\nbuffer_load_dwordx4 {vL16}, {WS}, {sKVB} offen offset:{u*2048} sc1 lds')
    a('s_waitcnt vmcnt(0)')
    a(f's_lshl_b32 s3, {sG}, 1\ns_sub_i32 s96, 8, s3\ns_max_i32 s96, s96, 0\ns_sub_u32 s97, {sOwn}, {sKVN}')
    for u in range(2):
        sb = SB[0]
        def tile_addr():
            a(f's_mul_i32 s3, s98, {TS}\ns_cmp_ge_u32 s98, 8\ns_cselect_b32 s7, s97, 0\ns_add_u32 s3, s3, s7')
            a(f'v_add_u32 v112, s3, v{vK}\nv_add_u32 v113, s3, v{vVa}\nv_add_u32 v114, s3, v{vVb}')
        def scores():
            l1, l2 = lab('m'), lab('m')
            a(f'ds_read_b128 {vr(KB,4)}, v112\ns_waitcnt lgkmcnt(0)')
            a(qk(u, sb, '0'))
            a('s_nop 15')
            a(f's_cmp_lg_u32 s98, {8+u}\ns_cbranch_scc1 {l1}')
            for i in range(16): a(f'v_cndmask_b32 v{sb+i}, v{NEG}, v{sb+i}, {mk(i)}')
            a(f'{l1}:\ns_cmp_lg_u32 s98, {u}\ns_cbranch_scc1 {l2}')
            for i in range(16): a(f'v_cndmask_b32 v{sb+i}, v{sb+i}, v{NEG}, {mk(i)}')
            a(f'{l2}:')
        lp = lab('fb1')
        a(f's_max_i32 s98, s96, {u}\nv_mov_b32 v{NM[u]}, v{NEG}')
        a(f'{lp}:')
        tile_addr(); scores()
        for i in range(8): a(f'v_max3_f32 v{NM[u]}, v{NM[u]}, v{sb+2*i}, v{sb+1+2*i}')
        a(f's_add_u32 s98, s98, 1\ns_cmp_le_u32 s98, {8+u}\ns_cbranch_scc1 {lp}')
        a(f'v_mov_b32 v115, v{NM[u]}\n{sw32(NM[u], 115)}\nv_max_f32 v{NM[u]}, v{NM[u]}, v115')
        for i in range(16): a(f'v_mov_b32 v{OA[u]+i}, 0')
        lp = lab('fb2')
        a(f's_max_i32 s98, s96, {u}')
        a(f'{lp}:')
        tile_addr(); scores()
        a(f'ds_read_b128 {vr(VB,4)}, v113\nds_read_b128 {vr(VB+4,4)}, v114')
        for i in range(16): a(f'v_sub_f32 v{sb+i}, v{sb+i}, v{NM[u]}')
        a('s_waitcnt lgkmcnt(0)')
        for h in range(2):
            for i in range(8): a(f'v_exp_f32 v{sb+8*h+i}, v{sb+8*h+i}')
            for i in range(4): a(f'v_cvt_pk_bf16_f32 v{sb+8*h+i}, v{sb+8*h+2*i}, v{sb+8*h+2*i+1}')
            a(pv(u, sb, h))
        a('s_nop 15')
        a(f's_add_u32 s98, s98, 1\ns_cmp_le_u32 s98, {8+u}\ns_cbranch_scc1 {lp}')
    a(f's_cmp_eq_u32 {sL}, 1\ns_cbranch_scc1 L_fbdone1\ns_branch L_fbdone3')

    a.auto_wait()
    nn = a.fix_hazards()
    for b in a.check_branch_hazards(): print('BRANCH HAZARD', b, file=sys.stderr)
    hdr = f'; fused persistent kernel: 256 workgroups (one per CU), generated by a script\n; @launch grid=(256,1,1) block=(256,1,1) lds={LDS_BYTES}\n'
    tail = f'''.section .rodata,"a"
.p2align 6
.amdhsa_kernel {KNAME}
  .amdhsa_next_free_vgpr 512
  .amdhsa_next_free_sgpr 102
  .amdhsa_accum_offset 256
  .amdhsa_group_segment_fixed_size 0
  .amdhsa_kernarg_size 72
  .amdhsa_user_sgpr_count 2
  .amdhsa_user_sgpr_kernarg_segment_ptr 1
  .amdhsa_system_sgpr_workgroup_id_x 1
.end_amdhsa_kernel
'''
    print('instructions', sum(1 for I in a.ins if I.kind not in ('label', 'dir')), 'nop states added', nn, file=sys.stderr)
    if focus is not None: hdr += '; names ' + ' '.join(names) + '\n'
    return hdr + a.text() + tail

if __name__ == '__main__':
    opt = {}
    for x in sys.argv[2:]:
        k, _, v = x.partition('=')
        opt[k] = eval(v) if v else 1
    open(sys.argv[1], 'w').write(gen(opt))
```

```python
import sys, struct
from asmlib import Asm, Ins, vr, weave, place

KNAME = 'interleave_layers__linear_attn_block__sliding_block__prompt_kernel'
WO = 0; T = 65536; S = 131072
TS = 2064
KVN = T
OWN = S + 512
STAT = S + 17024
CS = S + 17536
RES = S + 19072
LDS_BYTES = 163840
H2 = 0x10000; H1 = 0x100000
G0 = 0x300000
oXO = 0; oXX = 0x40000; oST = 0x70000; oFL = 0x78000; oFB = 0x7a000; oKVB = 0x80000
WS_BYTES = 0x2300000
STAMP0 = 0x2300000
OOB = 0x4000000
X0, WA, WOA, WB, WOB, OUT, WS = 's[8:11]', 's[12:15]', 's[16:19]', 's[20:23]', 's[24:27]', 's[28:31]', 's[32:35]'
sG, sJ, sW, sTag, sL, sGb, sEp, sCnt = ['s%d' % i for i in range(36, 44)]
sW14, sWsrc, sW12, sWoSrc, sXoLd, sXxSt, sRow, sFl, sFlOwn, sFast, sH1, sH2, sKVB, sFB, sKVN, sOwn = ['s%d' % i for i in range(44, 60)]
sNb = ['s60', 's61', 's62', 's63']
sSt = 's1'
MASK0 = 64
vLane, vL16, vT, vRSa, vRSb, vCSa, vCSb, vXo, vPG, vWoD, vWoR, vXs, vStamp = ['v%d' % i for i in range(13)]
NE, E6, L2Er, ONES = 13, 14, 15, 16
L2E = 1.4426950408889634
def Wreg(mat, part, s):
    base = {('a', 'k'): ('a', 0), ('a', 'v'): ('a', 64), ('a', 'q'): ('a', 128), ('b', 'q'): ('a', 192), ('b', 'k'): ('v', 128), ('b', 'v'): ('v', 192)}[(mat, part)]
    return base[0], base[1] + 4 * s
def Wfrag(mat, part, s):
    k, b = Wreg(mat, part, s); return vr(b, 4, k)
PARTOFF = {'q': 0, 'k': 1024, 'v': 2048}
PARTI = {'q': 0, 'k': 1, 'v': 2}
def f2u(x): return '0x%08x' % struct.unpack('<I', struct.pack('<f', x))[0]
def M16(d, A, B, C): return f'v_mfma_f32_16x16x32_bf16 {d}, {A}, {B}, {C}'
def M32(d, A, B, C): return f'v_mfma_f32_32x32x16_bf16 {d}, {A}, {B}, {C}'
def pk(op, dst, *srcs):
    ops = []; lo = []; hi = []
    for s in srcs:
        if isinstance(s, tuple):
            n = s[1]; ops.append(vr(n & ~1, 2)); lo.append(n & 1); hi.append(n & 1)
        else:
            assert s % 2 == 0; ops.append(vr(s, 2)); lo.append(0); hi.append(1)
    assert dst % 2 == 0
    f = lambda l: '[' + ','.join(map(str, l)) + ']'
    return f'v_pk_{op}_f32 {vr(dst,2)}, ' + ', '.join(ops) + f' op_sel:{f(lo)} op_sel_hi:{f(hi)}'
def cvt(d, s): return f'v_cvt_pk_bf16_f32 v{d}, v{s}, v{s+1}'
def sw16(x, y): return f'v_permlane16_swap_b32 v{x}, v{y}'
def sw32(x, y): return f'v_permlane32_swap_b32 v{x}, v{y}'
def tok(text, name): return Ins(text, 'tok:' + name)
def lines(s): return [x.strip() for x in s.split('\n') if x.strip()]

def gen(opt):
    profile = opt.get('profile'); reuse = opt.get('reuse', 1)
    a = Asm(); ool = Asm()
    uid = [0]
    def lab(n):
        uid[0] += 1; return f'L_{n}_{uid[0]}'
    focus = opt.get('focus'); names = ['start']
    def stamp(L, i):
        if not profile: return
        if focus is not None:
            if L == focus or i == 12 or (L, i) == (3, 11) or (focus == 9 and i in (3, 7)): fstamp(focus, f'S{L}.{i}')
            return
        a('s_memtime s[96:97]' if profile == 'cyc' else 's_memrealtime s[96:97]')
        a('s_waitcnt lgkmcnt(0)')
        a(f'v_writelane_b32 {vStamp}, s96, {16*L+i}')
    def fstamp(L, name):
        if focus != L: return
        a('s_memtime s[96:97]' if profile == 'cyc' else 's_memrealtime s[96:97]')
        a('s_waitcnt lgkmcnt(0)')
        a(f'v_writelane_b32 {vStamp}, s96, {len(names)}')
        names.append(name)
        assert len(names) <= 64
    def poll_start(vaddr, sbase, vtmp, off=0, n=1):
        return f'buffer_load_dword{"" if n == 1 else "x4"} {vr(vtmp, n)}, {vaddr}, {WS}, {sbase} offen offset:{off} sc1'
    def poll_finish(vaddr, sbase, vtmp, off=0, cmp=None, n=1, drain=True):
        r, c = lab('retry'), lab('chk')
        a(f's_branch {c}\n{r}:')
        a(poll_start(vaddr, sbase, vtmp, off, n), 'nocount')
        a(f's_add_u32 {sCnt}, {sCnt}, 1\ns_cmp_ge_u32 {sCnt}, 0x20000\ns_cbranch_scc1 L_end')
        if drain: a(f'{c}:\ns_waitcnt vmcnt(0)')
        else:
            a('s_waitcnt vmcnt(0)', 'nocount')
            a(f'{c}:\n.waitfor {vr(vtmp, n)}')
        a.extend(cmp or [f'v_cmp_ne_u32 vcc, {sTag}, v{vtmp + n - 1}'])
        a(f's_cbranch_vccnz {r}')
    def poll_masked(vaddr, sbase, vtmp, off=0, n=1, drain=False):
        r, c = lab('retry'), lab('chk')
        a(f's_branch {c}\n{r}:')
        a(poll_start(vaddr, sbase, vtmp, off, n), 'nocount')
        a(f's_add_u32 {sCnt}, {sCnt}, 1\ns_cmp_ge_u32 {sCnt}, 0x20000\ns_cbranch_scc1 L_end')
        if drain: a(f'{c}:\ns_waitcnt vmcnt(0)')
        else:
            a('s_waitcnt vmcnt(0)', 'nocount')
            a(f'{c}:\n.waitfor {vr(vtmp, n)}')
        a(f'v_cmp_ne_u32 vcc, {sTag}, v{vtmp + n - 1}\ns_and_b64 exec, exec, vcc\ns_cbranch_scc1 {r}\ns_mov_b64 exec, -1')
    def spread(alu, mem, every):
        o = []; mem = list(mem); k = 0
        isv = lambda y: (y.text if isinstance(y, Ins) else y).startswith('buffer_')
        for x in alu:
            if k % every == 0:
                while mem and not isv(mem[0]): o.append(mem.pop(0))
            if k % every == 1 and mem: o.append(mem.pop(0))
            o.append(x); k += 1
        return o + mem
    def fast_stores(stores, wt=False):
        if wt:
            for x in stores: a.ins.append(Ins(x.text + ' sc1', x.tag) if isinstance(x, Ins) else Ins(x + ' sc1'))
            return
        s, b = lab('slow'), lab('back')
        a(f's_cbranch_scc1 {s}')
        for x in stores: a.ins.append(x if isinstance(x, Ins) else Ins(x))
        a(f'{b}:')
        ool(f'{s}:')
        for x in stores: ool((x.text if isinstance(x, Ins) else x) + ' sc1')
        ool(f's_branch {b}')
    XO = lambda L: oXO + (0 if reuse else L * 0x10000)
    XX = lambda L: (0 if reuse else L * 0x10000)
    ST = lambda L: oST + (0 if reuse else L * 0x1000)

    def w_addr(E, O, R, t):
        o = lines(f'''v_lshrrev_b32 v{t}, 3, v0
        v_and_b32 v{t+1}, 7, v0
        v_lshrrev_b32 v{t+2}, 3, v0
        v_and_b32 v{t+2}, 2, v{t+2}
        v_xor_b32 v{t+1}, v{t+1}, v{t+2}
        v_mul_u32_u24 v{t}, 3072, v{t}
        v_lshl_add_u32 v{E}, v{t+1}, 4, v{t}
        v_xor_b32 v{O}, 64, v{E}
        v_add_u32 v{O}, 24576, v{O}''')
        o += lines(f'''v_lshrrev_b32 v{t}, 4, v0
        v_bfe_u32 v{t+1}, v0, 2, 2
        v_lshl_add_u32 v{t}, v{t}, 3, v{t+1}
        v_and_b32 v{t+1}, 3, v0
        v_lshlrev_b32 v{t+1}, 3, v{t+1}
        v_lshl_add_u32 v{t}, v{t}, 7, v{t+1}
        v_bfe_u32 v{t+1}, v0, 3, 2
        v_xor_b32 v{t+1}, {sW}, v{t+1}
        v_lshl_add_u32 v{R}, v{t+1}, 5, v{t}''')
        return o
    def w_dma(m, p, kq, slot, E, O, name):
        o = []
        for i in range(4):
            o.append(f's_add_u32 m0, {sW12}, {slot + i*1024}')
            if i % 2 == 0: o.append(f's_add_u32 s7, {sWsrc}, {(128*kq + 8*i)*3072 + PARTOFF[p]}')
            o.append(tok(f'buffer_load_dwordx4 v{E if i % 2 == 0 else O}, {WA if m == "a" else WB}, s7 offen lds', name))
        return o
    def w_read(m, p, kq, R, off):
        o = []
        for s2 in range(4):
            k, b = Wreg(m, p, 4*kq + s2)
            for hi in range(2): o.append(f'ds_read_b64_tr_b16 {vr(b+2*hi, 2, k)}, v{R} offset:{off + s2*4096 + hi*512}')
        return o
    def cs_mfma(m, p, d, lo=0, hi=16, one=ONES):
        return [M16(vr(d,4), vr(one,4), Wfrag(m,p,s), '0' if s == 0 else vr(d,4)) for s in range(lo, hi)]
    def cs_write(m, p, d): return f'ds_write_b32 {vCSb}, v{d} offset:{(0 if m == "a" else 768) + PARTI[p]*64}'
    def consts(): return [f'v_mov_b32 v{E6}, {f2u(1e-6)}', f'v_mov_b32 v{L2Er}, {f2u(L2E)}', f'v_mov_b32 v{NE}, {f2u(-1e-6*L2E)}'] + ones()
    def ones(b=ONES): return [f'v_mov_b32 v{b+i}, 0x3f803f80' for i in range(4)]
    def stats_fin(vs, vq, vaddr, t1):
        return lines(f'''v_mul_f32 v{vs}, {f2u(-1/512)}, v{vs}
        v_mul_f32 v{vq}, {f2u(1/512)}, v{vq}
        v_fma_f32 v{vq}, -v{vs}, v{vs}, v{vq}
        v_max_f32 v{vq}, 0, v{vq}
        v_add_f32 v{vq}, {f2u(1e-5)}, v{vq}
        v_rsq_f32 v{t1}, v{vq}
        v_mul_f32 v{vs}, v{vs}, v{t1}''') + [tok(f'ds_write2st64_b32 v{vaddr}, v{t1}, v{vs} offset0:0 offset1:1', 'stw')]

    a(f'.amdgcn_target "amdgcn-amd-amdhsa--gfx950"\n.text\n.globl {KNAME}\n.p2align 8\n.type {KNAME},@function\n{KNAME}:')
    if profile: a('s_memtime s[100:101]' if profile == 'cyc' else 's_memrealtime s[100:101]')
    a('s_cmp_ge_u32 s2, 256\ns_cbranch_scc1 L_end')
    srds = ((8, 0, 0x200000), (12, 8, 0x180000), (32, 64, WS_BYTES + (0x40000 if profile else 0)), (16, 16, 0x80000), (20, 32, 0x180000), (24, 40, 0x80000), (28, 48, 0x200000))
    for b_, o_, n_ in srds: a(f's_load_dwordx2 s[{b_}:{b_+1}], s[0:1], {o_}')
    a('s_lshr_b32 s4, s2, 3')
    if opt.get('codepf', 1):
        a('s_getpc_b64 s[82:83]\nL_pc0:')
        a('v_lshrrev_b32 v1, 6, v0\nv_lshl_add_u32 v1, s4, 2, v1\nv_and_b32 v2, 3, v0\nv_lshl_add_u32 v1, v1, 2, v2\nv_lshlrev_b32 v1, 7, v1')
        a('v_min_u32 v1, L_codeend-L_pc0-4, v1')
        a('global_load_dword v127, v1, s[82:83]')
    a(f's_and_b32 s3, s2, 7\ns_lshr_b32 s5, s4, 3\ns_lshl_b32 s3, s3, 2\ns_add_u32 {sG}, s3, s5\ns_and_b32 {sJ}, s4, 7')
    a(f'v_lshrrev_b32 v2, 6, v0\nv_and_b32 v0, 63, v0\nv_readfirstlane_b32 {sW}, v2')
    if profile: a(f'v_mov_b32 {vStamp}, 0')
    a(f's_lshl_b32 s84, s4, 2\ns_add_u32 s84, s84, {sW}\ns_lshl_b32 s85, s2, 2\ns_add_u32 s85, s85, {sW}')
    a(f'v_lshlrev_b32 v26, 7, v0\nv_subrev_u32 v27, 16, v0\nv_lshlrev_b32 v28, 10, v27\nv_mov_b32 v29, {OOB}')
    def pf_addr(d, n, cs, xs):
        return lines(f'''s_mul_i32 s86, s85, {cs}
        s_mul_i32 s87, s84, {xs}
        s_add_u32 s87, s87, 384
        v_add_u32 v30, s86, v26
        v_cmp_gt_u32 vcc, {n}, v0
        v_add_u32 v31, s87, v28
        s_nop 0
        v_cndmask_b32 v{d}, v29, v30, vcc
        v_cmp_gt_u32 vcc, {n}, v27
        s_nop 1
        v_cndmask_b32 v{d}, v{d}, v31, vcc''')
    a.extend(pf_addr(255, 12, 1536, 12288))
    a(f's_and_b32 s88, s2, 7\ns_lshl_b32 s88, s88, 18\ns_lshl_b32 s86, s84, 11\ns_add_u32 s88, s88, s86\nv_cmp_gt_u32 vcc, 16, v0\nv_cndmask_b32 v32, v29, v26, vcc')
    for b_, o_, n_ in srds: a(f's_mov_b32 s{b_+2}, {hex(n_)}\ns_mov_b32 s{b_+3}, 0x20000')
    a.extend(pf_addr(254, 4, 512, 4096))
    if opt.get('noj3'):
        a('v_cmp_gt_u32 vcc, 16, v0\nv_cndmask_b32 v250, v29, v255, vcc\nv_cndmask_b32 v254, v29, v254, vcc')
    if opt.get('tlb', 0):
        a(f'v_add_u32 v33, {sG}, v0\nv_subrev_u32 v33, 4, v33\nv_max_i32 v33, 3, v33\nv_writelane_b32 v33, 0, 0\nv_writelane_b32 v33, 3, 1\nv_writelane_b32 v33, 3, 2\nv_lshlrev_b32 v33, 20, v33\nv_add_u32 v33, 0xfff80, v33')
        a(f'v_cmp_gt_u32 vcc, 8, v0\nv_cndmask_b32 v33, v29, v33, vcc\nv_cmp_eq_u32 vcc, 0, v0\nv_cndmask_b32 v34, v29, v0, vcc')
    a('s_waitcnt lgkmcnt(0)')
    if opt.get('pf', 1): a(f'buffer_load_dword v127, v32, {X0}, s88 offen\nbuffer_load_dword v127, v255, {WA}, 0 offen')
    if opt.get('tlb', 0):
        for r_ in (WB, WOA, WOB): a(f'buffer_load_dword v127, v34, {r_}, 0 offen')
        if opt['tlb'] > 1: a(f'buffer_load_dword v127, v33, {WS}, 0 offen')
    if profile: a(f'v_writelane_b32 {vStamp}, s100, 0')
    stamp(0, 1)
    a(f's_load_dword {sEp}, s[32:33], 0')
    a(f'v_lshlrev_b32 {vL16}, 4, v0')
    a('v_lshrrev_b32 v22, 2, v0\nv_and_b32 v23, 3, v0\nv_lshrrev_b32 v24, 4, v0\nv_and_b32 v24, 2, v24\nv_xor_b32 v23, v23, v24\nv_lshlrev_b32 v22, 10, v22\nv_lshl_add_u32 v118, v23, 4, v22')
    WE, WOd, WR = 124, 125, 126
    wa = w_addr(WE, WOd, WR, 24)
    a.extend(wa[:9])
    a(f's_lshl_b32 {sW14}, {sW}, 14\ns_lshl_b32 {sW12}, {sW}, 12\ns_lshl_b32 s6, {sJ}, 7')
    a(f's_mul_i32 {sWsrc}, {sW}, {32*3072}\ns_add_u32 {sWsrc}, {sWsrc}, s6')
    a(f's_lshl_b32 s3, {sG}, 16\ns_add_u32 s3, s3, {sW14}\ns_add_u32 {sRow}, s3, s6\ns_add_u32 s5, {sW14}, {T}')
    def x_dma(kq):
        o = []
        for s in range(4*kq, 4*kq+4):
            o += [f's_add_u32 m0, s5, {s*1024 - s*64}', tok(f'buffer_load_dwordx4 v118, {X0}, s3 offen offset:{s*64} lds', f'x{kq}')]
        return o
    ring = [('a','k',0),('a','v',0),('a','k',1),('a','v',1),('a','k',2),('a','v',2),('a','k',3),('a','v',3),('a','q',0),('a','q',1),('a','q',2),('a','q',3)]
    slot = lambda n: [0, 16384, 32768, 49152, S][n % 5]
    rd = lambda n: w_dma(*ring[n], slot(n), WE, WOd, f'r{n}')
    up = [x_dma(0), rd(0), rd(1), x_dma(1), rd(2), rd(3)]
    nf = opt.get('nf', 1)
    for c in up[:nf]: a.extend(c)
    a.extend(wa[9:])
    a(f'v_add_u32 v123, {S}, v{WR}')
    a('v_and_b32 v20, 15, v0\nv_lshrrev_b32 v21, 4, v0')
    a(f'v_lshlrev_b32 {vRSa}, 4, v21\nv_lshlrev_b32 {vRSb}, 2, v20')
    a(f's_mul_i32 s6, {sW}, 192\ns_add_u32 s6, s6, {CS}')
    a(f'v_add_u32 {vCSa}, s6, {vRSa}\nv_add_u32 {vCSb}, s6, {vRSb}\nv_add_u32 {vRSa}, {STAT}, {vRSa}\nv_add_u32 {vRSb}, {STAT}, {vRSb}')
    a(f'v_lshrrev_b32 v23, 2, v20\nv_and_b32 v23, 2, v23\nv_xor_b32 v24, v21, v23\nv_lshlrev_b32 v24, 4, v24\nv_lshl_add_u32 v24, v20, 6, v24\nv_add_u32 {vT}, {T}, v24')
    a(f'v_add_u32 v122, {sW14}, {vT}')
    a(f'v_and_b32 v25, 1, v21\nv_lshrrev_b32 v26, 1, v21\nv_lshl_add_u32 v27, v25, 1, v26\nv_lshlrev_b32 v28, 4, v20\nv_lshl_add_u32 {vXs}, v27, 8, v28')
    a(f'v_xor_b32 v27, v27, v23\nv_lshlrev_b32 v27, 4, v27\nv_lshl_add_u32 v27, v20, 6, v27\ns_lshl_b32 s6, {sJ}, 11\ns_add_u32 s7, s6, s5\nv_add_u32 v121, s7, v27')
    a(f's_lshl_b32 {sGb}, {sG}, 20\ns_add_u32 {sGb}, {sGb}, {G0}\ns_add_u32 {sXoLd}, {sGb}, {sW14}\ns_add_u32 {sXxSt}, {sXoLd}, s6\ns_add_u32 {sXxSt}, {sXxSt}, {oXX}')
    a(f's_lshl_b32 s6, {sJ}, 2\ns_add_u32 s6, s6, {sW}\ns_lshl_b32 s7, s6, 9')
    a(f'v_lshl_add_u32 v27, v25, 14, v28\nv_lshl_add_u32 v27, v26, 8, v27\nv_add_u32 {vXo}, s7, v27')
    a(f's_lshl_b32 {sH1}, s6, 15\ns_add_u32 {sH1}, {sH1}, {H1}\ns_lshl_b32 {sH2}, s6, 12\ns_add_u32 {sH2}, {sH2}, {H2}')
    a(f's_lshl_b32 {sKVB}, s6, 12\ns_add_u32 {sKVB}, {sKVB}, {sGb}\ns_add_u32 {sKVB}, {sKVB}, {oKVB}')
    a(f's_lshl_b32 {sFB}, s6, 7\ns_add_u32 {sFB}, {sFB}, {oFB}')
    a(f's_add_u32 {sFl}, {sGb}, {oFL}\ns_lshl_b32 s6, {sJ}, 2\ns_add_u32 {sFlOwn}, {sFl}, s6\ns_cmp_eq_u32 {sW}, 0\ns_cselect_b32 {sFlOwn}, {sFlOwn}, {OOB}')
    a(f's_lshl_b32 {sWoSrc}, {sW}, 17\ns_lshl_b32 s6, {sJ}, 7\ns_add_u32 {sWoSrc}, {sWoSrc}, s6')
    a(f's_mul_i32 {sKVN}, {sW}, {8*TS}\ns_add_u32 {sKVN}, {sKVN}, {KVN}\ns_mul_i32 {sOwn}, {sW}, {2*TS}\ns_add_u32 {sOwn}, {sOwn}, {OWN - 8*TS}')
    for i in range(4):
        a(f's_sub_u32 s6, {sKVB}, {(i+1) << 20}\ns_cmp_gt_u32 {sG}, {i}\ns_cselect_b32 {sNb[i]}, s6, {OOB}')
    a(f's_mov_b32 {sCnt}, 0\ns_mov_b32 {sL}, 0')
    a(f's_lshr_b32 s6, {sJ}, 1\ns_lshl_b32 s6, s6, 8\ns_and_b32 s7, {sJ}, 1\ns_lshl_b32 s7, s7, 3\ns_add_u32 s6, s6, s7\ns_lshl_b32 s7, {sW}, 10\ns_add_u32 s6, s6, s7\ns_add_u32 {sSt}, s6, {sGb}')
    a(f'v_and_b32 {vPG}, 7, v0\nv_lshlrev_b32 v27, 4, {vPG}\nv_lshlrev_b32 {vPG}, 2, {vPG}\nv_lshrrev_b32 v29, 3, v0\nv_lshl_add_u32 {vWoD}, v29, 12, v27')
    a(f'v_bfe_u32 v27, v0, 2, 2\nv_lshl_add_u32 v29, v26, 2, v25\nv_lshl_add_u32 v29, v27, 3, v29\nv_lshlrev_b32 v29, 7, v29\nv_lshl_add_u32 v29, v27, 5, v29\nv_and_b32 v27, 3, v0\nv_lshl_add_u32 {vWoR}, v27, 3, v29')
    a.extend(consts())
    a('v_and_b32 v28, 31, v0\nv_lshlrev_b32 v29, 2, v26\nv_sub_u32 v28, v28, v29')
    for i in range(16): a(f'v_cmp_le_i32 s[{MASK0+2*i}:{MASK0+2*i+1}], {8*(i>>2) + (i&3)}, v28')
    a(f'v_mov_b32 v29, {OOB}\nv_cmp_eq_u32 vcc, 0, v0\nv_cndmask_b32 v120, v29, v0, vcc')
    xccst = [f'buffer_store_dword v117, v120, {WS}, {sFlOwn} offen offset:256 sc1']
    rest = [f'buffer_load_dword v127, {"v250" if opt.get("noj3") else "v255"}, {WB}, 0 offen', f'buffer_load_dword v127, v254, {WOA}, 0 offen', f'buffer_load_dword v127, v254, {WOB}, 0 offen'] if opt.get('pf', 1) else []
    tx = opt.get('tx', 0)
    a(f's_lshl_b32 s6, {sJ}, 2\ns_add_u32 s6, s6, {sW}\ns_lshl_b32 s7, s6, 11\ns_add_u32 s7, s7, {sGb}')
    a(f'v_lshlrev_b32 v30, 7, v20\nv_lshl_add_u32 v30, v25, 18, v30\nv_add_u32 v30, s7, v30\nv_cmp_gt_u32 vcc, {32 if tx else 0}, v0\ns_lshl_b32 s6, s6, 7\ns_add_u32 s6, s6, {sGb}\nv_cndmask_b32 v251, v29, v30, vcc')
    a(f's_add_u32 s7, s6, {oST}\nv_writelane_b32 v251, s7, 32\nv_writelane_b32 v251, {sFl}, 33\ns_add_u32 s7, {sFl}, 128\nv_writelane_b32 v251, s7, 34')
    if opt.get('th', 1):
        a(f's_lshl_b32 s7, {sG}, 7\ns_add_u32 s7, s7, {sH2}\nv_writelane_b32 v251, s7, 35\ns_add_u32 s7, s6, {oFB}\nv_writelane_b32 v251, s7, 36\ns_add_u32 s7, s7, 0x1000\nv_writelane_b32 v251, s7, 37')
    def touch2(t):
        if not opt.get('th2', 1): return []
        return lines(f'''s_lshl_b32 s7, {sG}, 10
        s_add_u32 s7, s7, {sH1}
        s_add_u32 s7, s7, 0x100000
        v_and_b32 v{t}, 7, v0
        v_lshl_add_u32 v{t}, v{t}, 7, s7
        s_lshl_b32 s7, {sG}, 7
        s_add_u32 s7, s7, {sH2}
        s_add_u32 s7, s7, 0x20000
        v_writelane_b32 v{t}, s7, 8
        s_add_u32 s7, s99, 0x2000
        v_writelane_b32 v{t}, s7, 9
        s_add_u32 s7, s99, 0x3000
        v_writelane_b32 v{t}, s7, 10
        buffer_load_dword v{t+1}, v{t}, {WS}, 0 offen sc1''')
    a(f'''v_and_b32 v116, 3, v0
    s_lshl_b32 s6, {sW}, 6
    v_add_u32 v253, s6, {vRSb}
    v_bfe_u32 v31, v0, 2, 2
    v_cmp_eq_u32 vcc, v31, v21
    v_mov_b32 v31, {LDS_BYTES - 1024}
    s_lshl_b32 s6, {sW}, 11
    v_cndmask_b32 v253, v31, v253, vcc
    s_add_u32 s6, s6, {RES}
    v_add_u32 v119, s6, {vL16}
    v_cmp_eq_u32 s[98:99], 1, v116
    v_cmp_eq_u32 s[100:101], 2, v116''')
    fstamp(0, 'setup') if opt.get('ss') else None
    for i, c in enumerate(up[nf:]):
        a.extend(c)
        if nf + i in (0, 2): a('s_barrier')
    a(f's_waitcnt lgkmcnt(0)\ns_add_u32 {sEp}, {sEp}, 1\ns_mul_i32 {sTag}, {sEp}, 0x9E3779B1\ns_cmp_eq_u32 {sTag}, 0x3f803f80\ns_addc_u32 {sEp}, {sEp}, 0\ns_mul_i32 {sTag}, {sEp}, 0x9E3779B1')
    a(f's_getreg_b32 s6, hwreg(HW_REG_XCC_ID, 0, 4)\ns_add_u32 s6, s6, {sTag}\nv_mov_b32 v117, s6')
    fstamp(0, 'issued')
    acc0 = lambda p, t: 20 + 8*t + (0 if p == 'k' else 4)
    XR0 = 52
    GR, SM, CK, CV, OT = 84, 88, 92, 96, 100
    touch = [f'buffer_load_dword v127, v251, {WS}, 0 offen sc1', poll_start(vPG, sFl, 252, 256)]
    later = {0: x_dma(2) + rd(4) + rd(5) + xccst, 1: x_dma(3) + rd(6) + rd(7), 2: rd(8) + rd(9) + rd(10), 3: rd(11) + rest + touch}
    rp = opt.get('rp', 0); st3 = 17; post = []
    if rp == 1:
        later[2] = rest + touch[:1]; later[3] = rd(8) + rd(9) + rd(10); post = rd(11) + touch[1:]; st3 = 1
    if rp == 2:
        later[2] = rd(8) + rest + touch[:1]; later[3] = rd(9) + rd(10) + rd(11); post = touch[1:]; st3 = 1
    RS0 = lambda t: 128 + 8*t
    B0 = lambda t: 160 + 4*t
    wr = lambda n: w_read(*ring[n], WR if slot(n) < 65536 else 123, slot(n) if slot(n) < 65536 else 0)
    rdx = lambda N: f'ds_read_b128 {vr(XR0 + 4*(N % 8), 4)}, {vT} offset:{((N & 3)*16 + (N >> 2))*1024}'
    ord_ = lambda kq: [f'ds_read_b128 {vr(OT + 4*i, 4)}, v122 offset:{(4*kq+i)*1024}' for i in range(4)]
    a('.waitfor tok:x0 tok:r0 tok:r1\ns_barrier')
    fstamp(0, 'step0')
    a.extend(ord_(0) + wr(0))
    for kq in range(4):
        main = []
        for i in range(4):
            x = vr(OT + 4*i, 4); z = kq == 0 and i == 0
            main += [M16(vr(GR,4), x, x, '0' if z else vr(GR,4)), M16(vr(SM,4), vr(ONES,4), x, '0' if z else vr(SM,4))]
        main += cs_mfma('a', 'k', CK, 4*kq, 4*kq+4) + cs_mfma('a', 'v', CV, 4*kq, 4*kq+4)
        main += ['s_barrier']
        for n in range(16):
            N = 16*kq + n; t, s = N & 3, N >> 2
            x = vr(XR0 + 4*(N % 8), 4)
            if n % 4 == 0: main.append(f'.waitfor {vr(XR0 + 4*((N+3) % 8), 4)}')
            for p in 'kv':
                d = vr(acc0(p, t), 4); main.append(M16(d, x, Wfrag('a', p, s), '0' if s == 0 else d))
            if n == 9 and kq < 3: main += [f'.waitfor tok:x{kq+1} tok:r{2*kq+2} tok:r{2*kq+3}', 's_barrier']
            if n == 5 and kq == 3: main += ['.waitfor tok:stw', 's_barrier']
            if N + 7 < 64: main.append(rdx(N + 7))
        main, left = place(main, later[kq], st3 if kq == 3 else 1, 4)
        fill = wr(2*kq + 1) + ([rdx(N) for N in range(7)] if kq == 0 else [])
        if kq < 3: fill += [('at', 37)] + ord_(kq + 1) + wr(2*kq + 2)
        else:
            fill += ['v_cmp_eq_u32 vcc, 3, v116', ('at', 12), f'v_cndmask_b32 v{GR}, v{GR}, v{GR+1}, s[98:99]', f'v_cndmask_b32 v{GR}, v{GR}, v{GR+2}, s[100:101]', f'v_cndmask_b32 v{GR}, v{GR}, v{GR+3}, vcc']
            fill += stats_fin(SM, GR, 253, 116) + [('at', 22), cs_write('a', 'k', CK), cs_write('a', 'v', CV), ('at', 29)]
            for t in range(4): fill += [f'ds_read_b128 {vr(RS0(t)+4,4)}, {vRSa} offset:{256+t*64}']
            for t in range(4): fill += [f'ds_read_b128 {vr(RS0(t),4)}, {vRSa} offset:{t*64}']
            for t in range(3):
                fill += [f'v_fma_f32 v{B0(t)+i}, v{RS0(t)+4+i}, v{CK}, v{E6}' for i in range(4)] + [f'v_mul_f32 v{RS0(t)+4+i}, v{RS0(t)+4+i}, v{CV}' for i in range(4)]
        a.extend(weave(main, fill) + left)
        fstamp(0, f'step{kq+1}')
    stamp(0, 2)
    PK, VV, KVr, Zr = 80, 88, 96, 100
    def epi_A_pk(K, V, RS, MR, B, csk, csv, t):
        o = []
        o += [pk('fma', B+i, MR+i, ('b', csk), ('b', E6)) for i in (0, 2)]
        o += [pk('mul', MR+i, MR+i, ('b', csv)) for i in (0, 2)]
        o2 = [pk('fma', K+i, K+i, RS+i, B+i) for i in (0, 2)]
        o2 += [pk('fma', V+i, V+i, RS+i, MR+i) for i in (0, 2)]
        o2 += [pk('fma', B+i, K+i, ('b', L2Er), ('b', NE)) for i in (0, 2)]
        o2 += [f'v_exp_f32_e64 v{B+i}, v{B+i} clamp' for i in range(4)]
        o2 += [f'v_max_f32 v{K+i}, v{K+i}, v{E6}' for i in range(4)]
        o2 += [cvt(VV+2*t, V), cvt(VV+2*t+1, V+2)]
        o2 += [pk('add', K+i, K+i, B+i) for i in (0, 2)]
        o2 += [cvt(PK+2*t, K), cvt(PK+2*t+1, K+2)]
        return o, o2
    a.extend(epi_A_pk(0, 0, RS0(3), RS0(3)+4, B0(3), CK, CV, 3)[0])
    for t in range(4): a.extend(epi_A_pk(acc0('k', t), acc0('v', t), RS0(t), RS0(t)+4, B0(t), CK, CV, t)[1])
    def kv_mfma(h): return [M16(vr(KVr,4), vr(PK+4*h,4), vr(VV+4*h,4), '0' if h == 0 else vr(KVr,4)), M16(vr(Zr,4), vr(PK+4*h,4), vr(ONES,4), '0' if h == 0 else vr(Zr,4))]
    a.extend(kv_mfma(0) + kv_mfma(1))

    QA, XRq = 28, 44
    QF = [20, 24]; OA = [28, 44]
    def wo_xor(t): return [f'v_xor_b32 v{t+i}, {32*(i+1)}, {vWoD}' for i in range(3)]
    def wo_dma(srd, t, gs):
        o = []
        for g in gs:
            o += [f's_add_u32 m0, {sW14}, {WO + g*4096}', f's_add_u32 s7, {sWoSrc}, {g*32768}']
            for i in range(4): o.append(tok(f'buffer_load_dwordx4 {vWoD if i == 0 else "v%d" % (t+i-1)}, {srd}, s7 offen offset:{i*1024} lds', 'wo'))
        return o
    def q_pass(mat, ringb, fill, mem, mstart, forced):
        reads = [(t, s) for s in range(16) for t in range(4)]
        R = len(ringb); D = R - 1
        rdx = lambda n: f'ds_read_b128 {vr(ringb[n % R], 4)}, {vT} offset:{(reads[n][0]*16 + reads[n][1])*1024}'
        main = [rdx(n) for n in range(D)]
        for n, (t, s) in enumerate(reads):
            if n % 4 == 0 and n: main.append(f'.waitfor {vr(ringb[(n+3) % R], 4)}')
            d = vr(QA + 4*t, 4); main.append(M16(d, Wfrag(mat, 'q', s), vr(ringb[n % R], 4), '0' if s == 0 else d))
            if n + D < 64: main.append(rdx(n + D))
            main += forced.get(n, [])
        main, left = place(main, mem, mstart, 4)
        a.extend(weave(main, fill) + left)
    def flag_line(t):
        return [f'v_mov_b32 v{t+i}, {sTag}' for i in range(4)] + lines(f'''v_mov_b32 v{t+4}, {OOB}
        v_cmp_gt_u32 vcc, 8, v0
        v_cndmask_b32 v{t+4}, v{t+4}, {vL16}, vcc''')
    def passes(L, mat, fills, mems, shadow=[], extra0=[], forced={}):
        accp = lambda p, t: 20 + 8*(t & 1) + (0 if p == 'k' else 4)
        XR = 36
        dma = lambda n, name: [tok(f'buffer_load_dwordx4 {vL16}, {WS}, s3 offen offset:{i*1024} sc1 lds', name) for i in range(n)]
        fair = ['s_barrier'] if opt.get('fair', 1) else []
        a.extend(dma(2, 't0a'))
        a('s_add_u32 m0, m0, 8192\ns_add_u32 s3, s3, 8192')
        a.extend(fair + dma(2, 't0b'))
        a(f'buffer_load_dwordx4 v[112:115], {vL16}, {WS}, s6 offen sc1')
        nxt = lambda t: [f's_add_u32 m0, s5, {t*16384}', f's_add_u32 s3, s4, {t*16384}'] + dma(4, f't{t}')
        n1_ = nxt(1); a.extend(n1_[:2] + fair + n1_[2:2 + opt.get('t1n', 2)])
        stat = lines(f'''v_add_f32 v112, v112, v114
        v_add_f32 v113, v113, v115
        {sw32(112,113)}
        v_add_f32 v112, v112, v113
        v_mov_b32 v113, v112
        {sw16(112,113)}
        v_add_f32 v112, v112, v113
        v_mov_b32 v113, v112
        {sw32(112,113)}''') + stats_fin(112, 113, 119, 114)
        a.extend(shadow)
        a('.waitfor tok:t0a tok:shadow\ns_barrier')
        stamp(L, 1)
        rdx = lambda n: f'ds_read_b128 {vr(XR + 4*(n % 8), 4)}, {vT} offset:{n*1024}'
        D = 7
        a.extend([rdx(n) for n in range(D)])
        pend = n1_[2 + opt.get('t1n', 2):]
        for t in range(4):
            main = []
            for s in range(16):
                n = 16*t + s; x = vr(XR + 4*(n % 8), 4)
                if n % 4 == 0 and n: main.append(f'.waitfor {vr(XR + 4*((n+3) % 8), 4)}')
                for p in 'kv':
                    d = vr(accp(p, t), 4); w = Wfrag(mat, p, s)
                    A, B = (w, x) if (mat == 'b' and p == 'k') else (x, w)
                    main.append(M16(d, A, B, '0' if s == 0 else d))
                m = n + D
                if m == 10: main += ['.waitfor tok:t0b', 's_barrier', rdx(8), rdx(9)]
                if m == 18: main += ['.waitfor tok:t1 tok:stw', 's_barrier', rdx(16), rdx(17)]
                if m in (32, 48): main += [f'.waitfor tok:t{m//16}', 's_barrier']
                if m < 64 and m not in (8, 9, 16, 17): main.append(rdx(m))
                main += forced.get(n, [])
                if opt.get('fine') and focus == L and t == 0 and n in (0, 2, 3, 7, 10, 11, 13):
                    main += ['s_memtime s[96:97]' if profile == 'cyc' else 's_memrealtime s[96:97]', 's_waitcnt lgkmcnt(0)', f'v_writelane_b32 {vStamp}, s96, {len(names)}']; names.append(f'p0n{n}')
            f = fills[t]
            if t == 0: f = [('at', 5)] + stat + f; main = extra0 + main
            mem = pend + (nxt(2) + nxt(3) if t == 0 else []) + mems[t]
            main, pend = place(main, mem, 1, 4)
            a.extend(weave(main, f))
            fstamp(L, f'pass{t}')
        assert not pend
        return accp
    def entry_prep(L):
        return lines(f'''s_lshl_b32 s6, {sW}, 11
        s_add_u32 s4, {sGb}, {oXX + XX(L-1)}
        s_add_u32 s3, s4, s6
        s_add_u32 m0, s6, {T}
        s_add_u32 s4, s4, {sW12}
        s_add_u32 s5, {sW12}, {T}
        s_lshl_b32 s6, {sW}, 6
        v_add_u32 v119, s6, {vRSb}
        s_lshl_b32 s6, {sW}, 10
        s_add_u32 s6, s6, {sGb}
        s_add_u32 s6, s6, {ST(L-1)}
        v_add_u32 {vT}, {T}, {vL16}''')

    def A_passes(L):
        RS, MR, B = 68, 72, 76
        accp = lambda p, t: 20 + 8*(t & 1) + (0 if p == 'k' else 4)
        def prep(t):
            o = [f'ds_read_b128 {vr(MR,4)}, {vRSa} offset:{256+t*64}', f'ds_read_b128 {vr(RS,4)}, {vRSa} offset:{t*64}']
            o2 = [f'.waitfor {vr(RS,4)}'] + [f'v_fma_f32 v{108+i}, v{MR+i}, v104, v{E6}' for i in range(4)]
            o2 += [f'v_mul_f32 v{MR+i}, v{MR+i}, v105' for i in range(4)]
            return o, o2
        def fin(t):
            K, V = accp('k', t), accp('v', t)
            r, p2 = prep(t + 1)
            o = [('at', 3)] + [f'v_fma_f32 v{K+i}, v{K+i}, v{RS+i}, v{108+i}' for i in range(4)]
            o += [f'v_fma_f32 v{V+i}, v{V+i}, v{RS+i}, v{MR+i}' for i in range(4)]
            o += r
            o += [f'v_fma_f32 v{B+i}, v{K+i}, v{L2Er}, v{NE}' for i in range(4)]
            o += [cvt(VV+2*t, V), cvt(VV+2*t+1, V+2)]
            for i in range(4): o += [f'v_exp_f32_e64 v{B+i}, v{B+i} clamp', f'v_max_f32 v{K+i}, v{K+i}, v{E6}']
            o += [f'v_add_f32 v{K+i}, v{K+i}, v{B+i}' for i in range(4)]
            o += [cvt(PK+2*t, K), cvt(PK+2*t+1, K+2)]
            return o + p2
        r0, p0 = prep(0)
        fills = [[f'ds_read2_b32 v[104:105], {vCSb} offset0:16 offset1:32', ('at', 25)] + r0 + [('at', 28)] + p0, fin(0), fin(1), kv_mfma(0) + fin(2)]
        passes(L, 'a', fills, [[], [], [], []])
        stamp(L, 2)
        o, o2 = epi_A_pk(accp('k', 3), accp('v', 3), RS, MR, 108, 104, 105, 3)
        a.extend(o2 + kv_mfma(1))
    def dppm(d, src, ctl, bank=0xf): return f'v_mov_b32_dpp v{d}, v{src} {ctl} row_mask:0xf bank_mask:{hex(bank)}'
    def ror(r, sh): return f'v_add_f32_dpp v{r}, v{r}, v{r} row_ror:{sh} row_mask:0xf bank_mask:0xf'
    B2 = [(0, 'k', 1), (1, 'k', 2), (2, 'k', 3), (3, 'v', 0)]; W2 = opt.get('w2', 1)
    def A_tail(L):
        it = L >> 1
        a(f's_lshl_b32 s3, {sG}, 10\ns_add_u32 s4, {sH1}, {it*0x100000}\ns_add_u32 s5, s4, s3\ns_lshl_b32 s3, {sG}, 5\ns_add_u32 s4, s4, s3')
        a(f's_add_u32 s6, {sH2}, {it*0x20000}\ns_lshl_b32 s3, {sG}, 7')
        dz = [dppm(Zr, Zr+i, 'quad_perm:[0,1,2,3]', 1 << i) for i in (1, 2, 3)]
        a.extend([dz[0], cvt(99, 98), cvt(98, 96), dz[1], f'v_mov_b32 v101, {sTag}', 's_add_u32 s3, s6, s3', dz[2]])
        a.ins.append(tok(f'buffer_store_dwordx4 v[98:101], {vL16}, {WS}, s5 offen sc1', 'h1'))
        stamp(L, 3)
        adr = lines(f'''v_lshrrev_b32 v112, 1, v0
        v_and_b32 v116, 1, v0
        v_lshlrev_b32 v116, 4, v116
        v_lshl_add_u32 v117, v112, 7, v116
        v_lshl_add_u32 v116, v112, 10, v116
        v_mov_b32 v112, {OOB}
        v_cmp_gt_u32 vcc, 8, v0''') + wo_xor(113) + [f'v_cndmask_b32 v112, v112, {vL16}, vcc']
        p1 = ('v116', 's4', 104, 0); p2 = ('v117', 's6', 96, 0)
        ringb = list(range(44, 92, 4))
        n1 = opt.get('n1', 2)
        if L == 0:
            a.extend(post)
            a('ds_read_b128 v[44:47], v121\nds_read_b128 v[48:51], v121 offset:1024')
            a.extend(adr)
            a('ds_write_b128 v119, v[44:47]\nds_write_b128 v119, v[48:51] offset:1024')
            a('.waitfor tok:r11\ns_barrier')
            for n in range(8, 12): a.extend(wr(n))
            P1 = opt.get('p1a', 24); n1 = 2
            q_pass('a', ringb, [], wo_dma(WOA, 113, range(n1)), P1 + 5, {8: ['s_barrier'], P1: ['.waitfor tok:h1', poll_start(*p1, n=4)]})
        else:
            a.extend(adr[7:10])
            q_pass('a', ringb, adr[:7] + adr[10:], wo_dma(WOA, 113, range(n1)), 2, {opt.get('p1b', 46): ['.waitfor tok:h1', poll_start(*p1, n=4)]})
        if L: a(f'ds_read_b128 v[76:79], {vCSa}')
        a.extend([f'ds_read2_b32 {vr(80+2*t,2)}, {vRSb} offset0:{t*16} offset1:{64+t*16}' for t in range(4)])
        stamp(L, 4)
        poll_masked(*p1, n=4)
        fstamp(L, 'hop1')
        a(f'''v_lshlrev_b32 v108, 16, v104
        v_and_b32 v109, 0xffff0000, v104
        v_lshlrev_b32 v110, 16, v105
        v_and_b32 v111, 0xffff0000, v105
        v_mov_b32 v104, v106
        {sw32(108, 109)}
        {sw32(110, 111)}
        {sw32(106, 104)}
        v_add_f32 v108, v108, v109
        v_add_f32 v110, v110, v111
        v_add_f32 v106, v106, v104
        v_mov_b32 v104, v106
        {sw16(108, 110)}
        v_add_f32 v108, v108, v110
        {sw16(106, 104)}
        v_add_f32 v106, v106, v104''')
        for sh in (8, 4, 2): a.extend([ror(108, sh), ror(106, sh)])
        a(f'v_mov_b32 v109, v108\n{sw32(108, 109)}\n{cvt(104, 108)}\nv_mov_b32 v105, v104\n{sw16(104, 105)}')
        a.ins.append(tok(f'buffer_store_dwordx4 v[104:107], v112, {WS}, s3 offen sc1', 'h2'))
        fstamp(L, 'reduce')
        e = []
        for t in range(4):
            q = QA + 4*t; B = 88
            e += [pk('fma', B+i, 76+i, ('b', 81+2*t), ('b', E6)) for i in (0, 2)]
            e += [pk('fma', q+i, q+i, ('b', 80+2*t), B+i) for i in (0, 2)]
            e += [pk('fma', B+i, q+i, ('b', L2Er), ('b', NE)) for i in (0, 2)]
            e += [f'v_exp_f32_e64 v{B+i}, v{B+i} clamp' for i in range(4)]
            e += [f'v_max_f32 v{q+i}, v{q+i}, v{E6}' for i in range(4)]
            e += [pk('add', q+i, q+i, B+i) for i in (0, 2)]
            e += [cvt(20+2*t, q), cvt(21+2*t, q+2)]
        e += [f's_add_u32 s4, {sGb}, {XO(L)}', sw16(20, 22), sw16(21, 23), f's_add_u32 s5, s4, 32768', sw16(24, 26), sw16(25, 27)]
        mem = wo_dma(WOA, 113, range(n1, 4))
        if L == 0:
            mem += w_dma('b', 'k', 0, S, WE, WOd, 'b2')
            cq, mem = place(cs_mfma('a', 'q', 92), mem, 2, 4)
            a.extend(cq)
            poll_finish(vPG, sFl, 252, 256, [f'v_subrev_u32 v120, {sTag}, v252', 'v_cmp_lt_u32 vcc, 15, v120'], drain=False)
            a(f'v_readfirstlane_b32 s7, v252\nv_cmp_ne_u32 vcc, s7, v252\ns_cmp_eq_u64 vcc, 0\ns_cselect_b32 {sFast}, {0 if opt.get("slow") else 1}, 0\n{cs_write("a", "q", 92)}\nds_read_b128 v[76:79], {vCSa}')
        a.extend(spread(e, mem, 10))
        a('.waitfor tok:h2')
        a(poll_start(*p2, n=4))
        if L == 0:
            a(f'v_add_u32 v122, {T}, v{WR}\ns_barrier')
            for i, p, kq in B2[:W2]: a.extend(w_dma('b', p, kq, T + i*16384, WE, WOd, 'b2'))
        stamp(L, 5)
        poll_masked(*p2, n=4)
        stamp(L, 6)
        a.extend([dppm(108+r, 98, f'row_newbcast:{4*r}') for r in range(4)] + [cvt(98, 108), cvt(99, 110), sw16(96, 98), sw16(97, 99)])
        for u in range(2): a(M32(vr(OA[u],16), 'v[96:99]', vr(QF[u],4), '0'))
        for u in range(2): a(f'v_add_f32 v{OA[u]+8}, v{OA[u]+8}, v{E6}')

    CB, SB, KB, VB = 60, [96, 112], 76, 88
    vK, vVa, vVb, NM, NEG, TMP = 13, 14, 15, [16, 17], 18, 19
    mk = lambda i: f's[{MASK0+2*i}:{MASK0+2*i+1}]'
    def qk(u, sb, c, k=KB): return M32(vr(sb,16), vr(k,4), vr(QF[u],4), c)
    def pv(u, sb, h, init=False): return M32(vr(OA[u],16), vr(VB+4*h,4), vr(sb+8*h,4), '0' if init else vr(OA[u],16))
    def B_prep(L):
        o = lines(f'''v_mov_b32 v60, {sKVN}
        v_mov_b32 v61, {sOwn}
        v_cmp_gt_u32 vcc, 8, v0
        v_mul_u32_u24 v62, {TS}, v0
        s_lshl_b32 s7, {sG}, 1
        v_cndmask_b32 v60, v61, v60, vcc
        v_add_u32 v61, s7, v0
        v_cmp_le_u32 vcc, 8, v61
        v_add3_u32 v60, v60, v62, 64
        v_mov_b32 v62, 0x3f803f80
        v_cndmask_b32 v17, 0, v62, vcc
        v_cmp_gt_u32 vcc, 10, v0
        v_add_u32 v60, {2048-64}, v60
        v_mov_b32 v63, {LDS_BYTES - 2048}
        v_cndmask_b32 v16, v63, v60, vcc
        v_lshrrev_b32 v60, 5, v0
        v_and_b32 v61, 15, v0
        v_lshlrev_b32 v61, 4, v61
        v_lshl_add_u32 v60, v60, 8, v61
        v_and_b32 v63, 16, v0
        v_cmp_eq_u32 vcc, 0, v63
        v_add_u32 v60, 1024, v60
        v_add_u32 v61, 512, v60
        v_mov_b32 v62, 2048
        v_cndmask_b32 v60, v62, v60, vcc
        v_cndmask_b32 v61, v62, v61, vcc
        v_add_u32 v{vK}, {sKVN}, {vL16}
        v_add_u32 v{vVa}, {sOwn}, v60
        v_add_u32 v{vVb}, {sOwn}, v61
        v_and_b32 v60, 3, v0
        v_sub_u32 v60, {sG}, v60
        v_subrev_u32 v60, 1, v60
        v_cmp_gt_i32 vcc, 0, v60
        v_mov_b32 v61, {sG}
        v_mov_b32 v{NEG}, {f2u(-1e30)}
        v_cndmask_b32 v60, v60, v61, vcc
        v_lshlrev_b32 v{TMP}, 20, v60''')
        if L == 3: o += [f's_add_u32 {x}, {x}, 0x20000' for x in sNb + [sKVB]] + [f's_add_u32 {sFB}, {sFB}, 0x2000']
        return o
    def B_layer(L):
        it = L >> 1
        RS, MR, B = 68, 72, 76
        KK = PK
        accp = lambda p, t: 20 + 8*(t & 1) + (0 if p == 'k' else 4)
        def rds(t, RS, MR, rm): return [f'ds_read_b128 {vr(RS,4)}, {vRSa} offset:{t*64}', f'ds_read_b128 {vr(MR,4)}, {vRSa} offset:{256+t*64}', f'ds_read2_b32 {vr(rm,2)}, {vRSb} offset0:{t*16} offset1:{64+t*16}']
        def prep(t):
            o2 = ['.waitfor v[110:111]'] + [f'v_mul_f32 v{B+i}, v111, v{104+i}' for i in range(4)] + [f'v_mul_f32 v{MR+i}, v{MR+i}, v108' for i in range(4)]
            return rds(t, RS, MR, 110), o2
        def fin(t, mid=[]):
            K, V = accp('k', t), accp('v', t)
            r, p2 = prep(t + 1)
            o = [('at', 3)] + [f'v_fma_f32 v{K+i}, v{K+i}, v110, v{B+i}' for i in range(4)]
            o += [f'v_fma_f32 v{V+i}, v{V+i}, v{RS+i}, v{MR+i}' for i in range(4)]
            o += [cvt(KK+2*t, K), cvt(KK+2*t+1, K+2), cvt(VV+2*t, V), cvt(VV+2*t+1, V+2)]
            return o + mid + r + [('at', 24)] + p2
        def out(u):
            k, v = KK + 4*u, VV + 4*u
            return [sw16(k, k+2), sw16(k+1, k+3), sw32(v, v+2), sw32(v+1, v+3),
                    tok(f'buffer_store_dwordx4 {vr(k,4)}, {vL16}, {WS}, {sKVB} offen offset:{u*2048} sc1', f'kv{u}'),
                    tok(f'buffer_store_dwordx4 {vr(v,4)}, {vL16}, {WS}, {sKVB} offen offset:{u*2048+1024} sc1', f'kv{u}'),
                    f'ds_write_b128 v109, {vr(v,4)} offset:{(8+u)*TS+1024}']
        f0 = [f'ds_read_b128 v[104:107], {vCSa} offset:{768+64}'] + ([f'ds_read_b32 v108, {vCSb} offset:{768+128}'] if L == 3 else [])
        f0 += [f'v_add_u32 v109, {sOwn}, {vL16}', f's_add_u32 s99, {sFB}, {sGb}', f's_add_u32 s98, s99, 0x1000'] + flag_line(96) + wo_xor(101)
        bq = [w_dma('b', 'q', kq, kq*16384, WE, WOd, 'bq') for kq in range(4)] if L == 1 else [[], [], [], []]
        r0, p0 = prep(0)
        x0 = 0
        fl = lambda e: [f'.waitfor tok:kv{e}', tok(f'buffer_store_dwordx4 v[96:99], v100, {WS}, {"s99" if e == 0 else "s98"} offen sc1', f'fl{e}')]
        shadow = []; extra0 = []
        if L == 1:
            shadow = w_read('b', 'v', 3, 123, 0) + cs_mfma('b', 'v', 92, 12, 16, one=76)
            f0 = f0 + [cs_write('b', 'v', 92), 'v_mov_b32 v108, v92']
        fills = [f0 + [('at', 25 + x0)] + r0 + [('at', 28 + x0)] + p0, fin(0), fin(1, out(0)), fin(2)]
        w = wo_dma(WOB, 101, range(4))
        mems = [[], bq[0] + bq[1] + bq[2] + bq[3], [], []] if L == 1 else [[], w[:12], [], w[12:]]
        passes(L, 'b', fills, mems, shadow, extra0)
        stamp(L, 2)
        K, V = accp('k', 3), accp('v', 3)
        a.extend(fl(0))
        a(f's_add_u32 s6, {sFB}, {G0}\ns_add_u32 s5, s6, 0x1000\ns_sub_u32 s4, {sKVN}, {sOwn}')
        a.extend([pk('fma', K+i, K+i, ('b', 110), B+i) for i in (0, 2)] + [pk('fma', V+i, V+i, RS+i, MR+i) for i in (0, 2)])
        a.extend([cvt(KK+6, K), cvt(KK+7, K+2), cvt(VV+6, V), cvt(VV+7, V+2)])
        a.extend(out(1))
        stamp(L, 3)
        ringb = list(range(44, 76, 4)) + list(range(104, 120, 4))
        pe = (f'v{TMP}', 's6', 79, 0); pl = (f'v{TMP}', 's5', 84, 0)
        qrd = [f'ds_read_b128 v[88:91], {vCSa} offset:768'] + [f'ds_read2_b32 {vr(120+2*t,2)}, {vRSb} offset0:{t*16} offset1:{64+t*16}' for t in range(4)]
        if L == 1:
            a.extend(ones(104))
            a('.waitfor tok:bq\ns_barrier')
            for kq in range(4): a.extend(w_read('b', 'q', kq, WR, kq*16384))
            a.extend(cs_mfma('b', 'q', 92, one=104))
            a('s_barrier')
            q_pass('b', ringb, [('at', 3), cs_write('b', 'q', 92), ('at', 54)] + qrd, w, 1, {14: fl(1), 30: [poll_start(*pe)]})
        else:
            q_pass('b', ringb, [('at', 54)] + qrd, [], 1, {opt.get('pe', 42): [poll_start(*pe)], opt.get('fl1', 52): fl(1)})
        stamp(L, 4)
        def nb_dma(e):
            o = []
            for i in range(4):
                kt = 6 - 2*i + e
                o += [f's_add_u32 m0, {sKVN}, {kt*TS - e*2048}']
                o += [tok(f'buffer_load_dwordx4 {vL16}, {WS}, {sNb[i]} offen offset:{e*2048 + h*1024} sc1 lds', f'n{kt}') for h in range(2)]
            return o
        rdK = lambda kt: f'ds_read_b128 {vr(KB,4)}, v{vK} offset:{kt*TS}'
        rdV = lambda kt, h: f'ds_read_b128 {vr(VB+4*h,4)}, v{vVa if h == 0 else vVb} offset:{kt*TS}'
        a('s_barrier')
        e = [f'v_mov_b32 v92, {f2u(0.25*L2E)}'] + [f'v_cndmask_b32 v{CB+i}, v{NEG}, 0, {mk(i)}' for i in range(16)]
        e += [pk('mul', 120+2*t, 120+2*t, ('b', 92)) for t in range(4)]
        for t in range(4):
            q = QA + 4*t
            e += [pk('mul', 92+i, 88+i, ('b', 121+2*t)) for i in (0, 2)] + [pk('fma', q+i, q+i, ('b', 120+2*t), 92+i) for i in (0, 2)]
            if t == 2: e += [sw16(20, 22), sw16(21, 23)]
            e += [cvt(20+2*t, q), cvt(21+2*t, q+2)]
        e += [f'ds_write2_b32 v16, v17, v17 offset0:0 offset1:1', qk(0, SB[0], vr(CB,16), KK), sw16(24, 26), sw16(25, 27),
              f'ds_write2_b32 v16, v17, v17 offset0:2 offset1:3', 's_nop 0', qk(1, SB[1], vr(CB,16), KK+4)]
        ce = opt.get('ce', 40)
        a.extend(e[:ce])
        fstamp(L, 'qepi')
        poll_masked(*pe)
        stamp(L, 5)
        main_a = a; a2 = Asm(); a2.extend(e[ce:])
        diag(a2)
        a.extend(spread(a2.ins, nb_dma(0) + [poll_start(*pl)], 6))
        stamp(L, 6)
        attention(L, pl, nb_dma, rdK, rdV, KK)
    def diag(a):
        for u in range(2):
            a(f'v_max3_f32 v{NM[u]}, v{SB[u]}, v{SB[u]+1}, v{SB[u]+2}\nv_max3_f32 v{76+u}, v{SB[u]+3}, v{SB[u]+4}, v{SB[u]+5}')
            for i in range(6, 14, 4):
                a(f'v_max3_f32 v{NM[u]}, v{NM[u]}, v{SB[u]+i}, v{SB[u]+i+1}\nv_max3_f32 v{76+u}, v{76+u}, v{SB[u]+i+2}, v{SB[u]+i+3}')
            a(f'v_max3_f32 v{NM[u]}, v{NM[u]}, v{SB[u]+14}, v{SB[u]+15}\nv_max_f32 v{NM[u]}, v{NM[u]}, v{76+u}\nv_mov_b32 v{76+u}, v{NM[u]}')
        a(f'{sw32(NM[0], 76)}\n{sw32(NM[1], 77)}')
        for u in range(2): a(f'v_min_f32_e64 v{NM[u]}, -v{NM[u]}, -v{76+u}')
        if opt.get('fb'):
            for u in range(2): a(f'v_add_f32 v{NM[u]}, {f2u(200.0)}, v{NM[u]}')
        a.extend([pk('add', SB[u]+i, SB[u]+i, ('b', NM[u])) for u in range(2) for i in range(0, 16, 2)])
        a.extend([f'v_pk_mov_b32 {vr(CB+i,2)}, v[16:17], v[16:17] op_sel:[1,1]' for i in range(0, 16, 2)])
    def attention(L, pl, nb_dma, rdK, rdV, KK):
        ops = [(0, 8), (1, 9), (1, 8), (1, 6), (1, 4), (1, 2), (0, 6), (0, 4), (0, 2), (0, 0), (0, 7), (0, 5), (0, 3), (0, 1), (1, 7), (1, 5), (1, 3), (1, 1)]
        N = len(ops); seen = set()
        for n in range(N + 1):
            sb, pb = SB[n % 2], SB[1 - n % 2]
            far = n < N and ops[n][1] == ops[n][0]
            def E(i):
                if n == N: return []
                o = [f'v_exp_f32 v{sb+i}, v{sb+i}', f'v_exp_f32 v{sb+i+1}, v{sb+i+1}']
                return o
            def Cv(h, i, b=None, isfar=far):
                b = sb if b is None else b
                o = []
                if isfar: o += [f'v_cndmask_b32 v{b+8*h+2*i+k}, v{b+8*h+2*i+k}, 0, {mk(8*h+2*i+k)}' for k in range(2)]
                return o + [f'v_cvt_pk_bf16_f32 v{b+8*h+i}, v{b+8*h+2*i}, v{b+8*h+2*i+1}']
            C = (lambda h, i: Cv(h, i)) if n < N else (lambda h, i: [])
            lateK = n + 1 < N and n + 1 in (3, 10)
            toks = []
            for m in ([n] if n < N else []) + ([n+1] if lateK else []) + ([n+2] if n + 2 < N and n + 2 not in (3, 10) else []):
                kt = ops[m][1]
                if kt < 8 and kt not in seen: seen.add(kt); toks.append(f'tok:n{kt}')
            s = E(0)
            if n > 0: s += Cv(1, 3, pb, ops[n-1][1] == ops[n-1][0])
            s += [f'.waitfor {" ".join(toks)} {vr(KB,4)} {vr(VB,8)}']
            if n == 3: s += [f'v_add_u32 v{vVa}, s4, v{vVa}', f'v_add_u32 v{vVb}, s4, v{vVb}']
            if lateK: s += [rdK(ops[n+1][1])]
            if n > 0: s += [pv(ops[n-1][0], pb, 0, init=(n-1 < 2))]
            if n < N: s += [rdV(ops[n][1], 0)]
            s += E(2) + C(0, 0) + E(4)
            if n > 0: s += [pv(ops[n-1][0], pb, 1)]
            if n < N: s += [rdV(ops[n][1], 1)]
            s += C(0, 1) + E(6) + C(0, 2)
            if 2 <= n + 1 < N:
                s += [qk(ops[n+1][0], pb, vr(CB,16), KK if n + 1 == 2 else KB)]
            if n + 2 < N and n + 2 > 2 and n + 2 not in (3, 10): s += [rdK(ops[n+2][1])]
            s += E(8) + C(0, 3) + E(10) + C(1, 0) + E(12)
            if n + 2 < N and n + 1 >= 2 and ops[n+2][0] != ops[n+1][0]:
                s += [f'v_mov_b32 v{CB+i}, v{NM[ops[n+2][0]]}' for i in range(16)]
            s += C(1, 1) + E(14) + C(1, 2)
            LP = opt.get('lp', 3)
            if n in (LP + 1, LP + 2):
                d = nb_dma(1); s = spread(s, d[:6] if n == LP + 1 else d[6:], 8)
            if L == 1 and n == 12: s = s + touch2(85)
            if L == 3 and 6 <= n < 6 + opt.get('dirty', 0): s = s + [f's_add_u32 s7, {sKVB}, {0x20000 + 0x20000*((n-6)>>2)}', f'buffer_store_dwordx4 v[20:23], {vL16}, {WS}, s7 offen offset:{((n-6)&3)*1024} {opt.get("dm", "")}']
            a.extend(s)
            fstamp(L, f'op{n}')
            if n == LP:
                poll_masked(*pl, drain=True)
                fstamp(L, 'latepoll')
        a(f's_add_u32 s4, {sGb}, {XO(L)}\ns_add_u32 s5, s4, 32768\ns_mov_b32 {sL}, {L}')
        o = OA[0]
        a(f'v_maximum3_f32 v76, abs(v{o}), abs(v{o+1}), v{o+8}')
        for i in range(2, 8, 2): a(f'v_maximum3_f32 v76, abs(v{o+i}), abs(v{o+i+1}), v76')
        o = OA[1]
        for i in range(0, 8, 2): a(f'v_maximum3_f32 v76, abs(v{o+i}), abs(v{o+i+1}), v76')
        a(f'v_maximum3_f32 v76, v{o+8}, v76, v76')
        a(f'v_cmp_nlt_f32 vcc, v76, abs(v{NEG})\ns_cbranch_vccnz L_fallback\nL_fbdone{L}:')

    def common(L):
        stamp(L, 7)
        for u in range(2): a(f'v_rcp_f32 v{OA[u]+8}, v{OA[u]+8}')
        a(f's_cmp_eq_u32 {sFast}, 0')
        for u in range(2):
            o = OA[u]
            a.extend([pk('mul', o+i, o+i, ('b', o+8)) for i in range(0, 8, 2)] + [cvt(o+10+i, o+2*i) for i in range(4)])
        fast_stores([tok(f'buffer_store_dwordx4 {vr(OA[u]+10,4)}, {vXo}, {WS}, {"s4" if u == 0 else "s5"} offen', 'ost') for u in range(2)], wt=(L == 0 or not reuse) and opt.get('wt', 1))
        if L == 0:
            a(f'v_mov_b32 v13, v122\nv_mov_b32 v253, v123\nv_mov_b32 v254, v{WE}\nv_mov_b32 v255, v{WOd}')
            for i, p, kq in B2[W2:]: a.extend(w_dma('b', p, kq, T + i*16384, 254, 255, 'b3'))
        a(f's_lshl_b32 s6, {sW}, 11\ns_add_u32 s6, s6, {RES}\nv_add_u32 v14, s6, {vL16}')
        a('ds_read_b128 v[60:63], v14\nds_read_b128 v[64:67], v14 offset:1024')
        a(f'v_mov_b32 v68, {sTag}\nv_mov_b32 v69, {OOB}\nv_cmp_eq_u32 vcc, 0, v0')
        a.extend([f'v_xor_b32 v{124+i}, {32*(i+1)}, {vWoR}' for i in range(3)])
        a(f'v_cndmask_b32 v15, v69, v0, vcc\ns_add_u32 s5, {sXoLd}, {XO(L)}')
        a.extend(ones())
        a.extend([sw16(60, 62), sw16(61, 63), sw16(64, 66), sw16(65, 67)])
        for i in range(8): a(f'v_lshlrev_b32 v{20+2*i}, 16, v{60+i}\nv_and_b32 v{21+2*i}, 0xffff0000, v{60+i}')
        a(f's_cmp_eq_u32 {sFast}, 0\n.waitfor tok:ost\ns_barrier')
        fast_stores([f'buffer_store_dword v68, v15, {WS}, {sFlOwn} offen offset:{64*L}'])
        stamp(L, 8)
        NW, NO, Wr, Or = 12, 10, 76, 36
        def rdw(n):
            s, t = n >> 2, n & 3
            ad = vWoR if t == 0 else f'v{123+t}'
            return [f'ds_read_b64_tr_b16 {vr(Wr + 4*(n % NW) + 2*hi, 2)}, {ad} offset:{WO + s*4096 + hi*256}' for hi in range(2)]
        def ldo(s):
            o = [f's_add_u32 s5, s5, 4096'] if s % 4 == 0 and s else []
            return o + [f'buffer_load_dwordx4 {vr(Or + 4*(s % NO), 4)}, {vL16}, {WS}, s5 offen offset:{(s%4)*1024} sc1']
        pre = [x for n in range(NW) for x in rdw(n)]
        a.extend(pre)
        a(poll_start(vPG, sFl, 127, 64*L))
        if L == 0:
            a.extend(w_read('b', 'k', 0, 253, 0))
            for i, p, kq in B2[:W2]: a.extend(w_read('b', p, kq, 13, i*16384))
        poll_finish(vPG, sFl, 127, 64*L)
        stamp(L, 9)
        NU = opt.get('nu', 8)
        for s in range(NU):
            a.extend(ldo(s))
            if opt.get('fair', 1) and s % 2 == 1 and s < NU - 1: a('s_barrier')
        fstamp(L, 'oissue')
        if L == 0:
            assert opt.get('fair', 1)
            for i, p, kq in B2[W2:]: a.extend(w_read('b', p, kq, 13, i*16384))
        if L == 0: st0 = w_dma('b', 'v', 1, T, 254, 255, 'b4') + w_dma('b', 'v', 2, T + 16384, 254, 255, 'b4')
        for n in range(64):
            s, t = n >> 2, n & 3
            if t == 0: a(f'.waitfor {vr(Or + 4*(s % NO), 4)} {vr(Wr + 4*((n+3) % NW), 4)}')
            d = vr(20+4*t, 4)
            a(M16(d, vr(Wr + 4*(n % NW), 4), vr(Or + 4*(s % NO), 4), d))
            if n + NW < 64: a.extend(rdw(n + NW))
            if t == 3 and s + NU < 16: a.extend(ldo(s + NU))
            if L == 0 and n == 15: a('s_barrier')
            if L == 0 and s >= 16 - NU and t == 1:
                while st0:
                    y = st0.pop(0); a.extend([y])
                    if isinstance(y, Ins): break
            if t == 3 and s in (0, 3, 7, 11, 15): fstamp(L, f'wo{s}')
            if n == 56 and L < 3:
                a(f's_add_u32 s4, {sXxSt}, {XX(L)}')
            if n == 59 and L < 3: a(f's_add_u32 s3, {sSt}, {ST(L)}\nv_mov_b32 v70, 0')
            if n == 60 and L < 3: a('v_mov_b32 v71, 0\nv_mov_b32 v72, 0')
            if n == 62 and L < 3: a(f'v_mov_b32 v73, 0\ns_cmp_eq_u32 {sFast}, 0')
            if n == 56 and L == 3: a(f'v_and_b32 v70, 15, v0\nv_lshlrev_b32 v70, 10, v70')
            if n == 57 and L == 3: a(f'v_lshrrev_b32 v71, 8, {vXs}\nv_lshl_add_u32 v70, v71, 4, v70')
        assert L or not st0
        a.extend([cvt(36+i, 20+2*i) for i in range(8)])
        a.extend([sw16(36, 38), sw16(37, 39), sw16(40, 42), sw16(41, 43)])
        if L == 3:
            om = opt.get('om', ''); a(f'buffer_store_dwordx4 v[36:39], v70, {OUT}, {sRow} offen {om}\nbuffer_store_dwordx4 v[40:43], v70, {OUT}, {sRow} offen offset:64 {om}')
            stamp(L, 10)
            return
        fast_stores([f'buffer_store_dwordx4 {vr(36+4*i,4)}, {vXs}, {WS}, s4 offen offset:{i*1024}' for i in range(2)], wt=(L == 0 or not reuse) and opt.get('wt', 1))
        for r in range(8):
            a(f'v_dot2c_f32_bf16 v{70 + (r&1)}, v{36+r}, v{ONES}\nv_dot2c_f32_bf16 v{72 + (r&1)}, v{36+r}, v{36+r}')
        a(f'v_and_b32 v48, 15, v0\nv_lshlrev_b32 v48, 4, v48\nv_lshrrev_b32 v49, 5, v0')
        a(f'v_add_f32 v70, v70, v71\nv_add_f32 v72, v72, v73\nv_lshl_add_u32 v48, v49, 2, v48\nv_and_b32 v49, 16, v0')
        a(f'{sw32(70, 72)}\nv_add_f32 v70, v70, v72\nv_mov_b32 v71, v70\nv_lshl_add_u32 v48, v49, 22, v48\nv_mov_b32 v68, {sTag}\n{sw16(70, 71)}\nv_add_f32 v70, v70, v71')
        fast_stores([tok(f'buffer_store_dword v70, v48, {WS}, s3 offen', 'xst')])
        stamp(L, 10)
        if L == 0:
            a.extend(w_dma('b', 'v', 3, S, 254, 255, 'b5'))
        a('ds_write_b128 v14, v[36:39]\nds_write_b128 v14, v[40:43] offset:1024')
        a.extend(entry_prep(L + 1))
        a(f's_cmp_eq_u32 {sFast}, 0\n.waitfor tok:xst\ns_barrier')
        fast_stores([f'buffer_store_dword v68, v15, {WS}, {sFlOwn} offen offset:{64*L+32}'])
        stamp(L, 11)
        px = (vPG, sFl, 127, 64*L+32)
        if L == 0:
            a.extend(w_read('b', 'v', 1, 13, 0) + w_read('b', 'v', 2, 13, 16384) + ones(76))
            c1, _ = place(cs_mfma('b', 'k', 88, one=76) + cs_mfma('b', 'v', 92, 0, 12, one=76), [poll_start(*px)], 10, 4)
            a.extend(weave(c1, w_addr(WE, WOd, WR, 100) + [f'v_add_u32 v123, {S}, v{WR}'] + B_prep(1)))
            a(cs_write('b', 'k', 88))
        else:
            pre = consts() if L == 1 else B_prep(3)
            a.extend(pre[:opt.get('pd', 24)]); a(poll_start(*px)); a.extend(pre[opt.get('pd', 24):])
        poll_finish(*px)
        if L == 0: a('s_barrier')
        stamp(L, 12)

    A_tail(0); common(0)
    B_layer(1); common(1)
    A_passes(2); A_tail(2); common(2)
    B_layer(3); common(3)
    a(f's_or_b32 s3, s2, {sW}\ns_cmp_eq_u32 s3, 0\ns_cselect_b32 s3, 0, {OOB}\nv_mov_b32 v44, {sEp}\nbuffer_store_dword v44, v15, {WS}, s3 offen')
    if profile:
        a('s_waitcnt vmcnt(0)')
        stamp(3, 11)
        a(f's_lshl_b32 s3, s2, 2\ns_add_u32 s3, s3, {sW}\ns_lshl_b32 s3, s3, 8\ns_add_u32 s3, s3, {STAMP0}\nv_lshlrev_b32 v45, 2, v0')
        a(f'buffer_store_dword {vStamp}, v45, {WS}, s3 offen')
        if opt.get('amp'):
            i0, i1, wg = opt['amp']
            a(f's_cmp_lg_u32 s2, {wg}\ns_cbranch_scc1 L_end\ns_cmp_lg_u32 {sW}, 0\ns_cbranch_scc1 L_end')
            a(f'v_readlane_b32 s4, {vStamp}, {i0}\nv_readlane_b32 s5, {vStamp}, {i1}\nv_readlane_b32 s6, {vStamp}, {59 if focus is None else len(names)-1}\ns_nop 3\ns_sub_u32 s5, s5, s4\ns_lshl_b32 s5, s5, 3\ns_min_u32 s5, s5, 100000')
            a('L_amp:\ns_memrealtime s[96:97]\ns_waitcnt lgkmcnt(0)\ns_sub_u32 s7, s96, s6\ns_cmp_lt_u32 s7, s5\ns_cbranch_scc1 L_amp')
    a('L_end:\ns_endpgm\nL_codeend:')
    a('.resetwait')
    a.extend(ool.ins)

    a('L_fallback:\n.resetwait\ns_nop 15')
    for u in range(2):
        a(f's_add_u32 m0, {sOwn}, {(8+u)*TS - u*2048}\ns_nop 0\nbuffer_load_dwordx4 {vL16}, {WS}, {sKVB} offen offset:{u*2048} sc1 lds')
    a('s_waitcnt vmcnt(0)')
    a(f's_lshl_b32 s3, {sG}, 1\ns_sub_i32 s96, 8, s3\ns_max_i32 s96, s96, 0\ns_sub_u32 s97, {sOwn}, {sKVN}')
    for u in range(2):
        sb = SB[0]
        def tile_addr():
            a(f's_mul_i32 s3, s98, {TS}\ns_cmp_ge_u32 s98, 8\ns_cselect_b32 s7, s97, 0\ns_add_u32 s3, s3, s7')
            a(f'v_add_u32 v112, s3, v{vK}\nv_add_u32 v113, s3, v{vVa}\nv_add_u32 v114, s3, v{vVb}')
        def scores():
            l1, l2 = lab('m'), lab('m')
            a(f'ds_read_b128 {vr(KB,4)}, v112\ns_waitcnt lgkmcnt(0)')
            a(qk(u, sb, '0'))
            a('s_nop 15')
            a(f's_cmp_lg_u32 s98, {8+u}\ns_cbranch_scc1 {l1}')
            for i in range(16): a(f'v_cndmask_b32 v{sb+i}, v{NEG}, v{sb+i}, {mk(i)}')
            a(f'{l1}:\ns_cmp_lg_u32 s98, {u}\ns_cbranch_scc1 {l2}')
            for i in range(16): a(f'v_cndmask_b32 v{sb+i}, v{sb+i}, v{NEG}, {mk(i)}')
            a(f'{l2}:')
        lp = lab('fb1')
        a(f's_max_i32 s98, s96, {u}\nv_mov_b32 v{NM[u]}, v{NEG}')
        a(f'{lp}:')
        tile_addr(); scores()
        for i in range(8): a(f'v_max3_f32 v{NM[u]}, v{NM[u]}, v{sb+2*i}, v{sb+1+2*i}')
        a(f's_add_u32 s98, s98, 1\ns_cmp_le_u32 s98, {8+u}\ns_cbranch_scc1 {lp}')
        a(f'v_mov_b32 v115, v{NM[u]}\n{sw32(NM[u], 115)}\nv_max_f32 v{NM[u]}, v{NM[u]}, v115')
        for i in range(16): a(f'v_mov_b32 v{OA[u]+i}, 0')
        lp = lab('fb2')
        a(f's_max_i32 s98, s96, {u}')
        a(f'{lp}:')
        tile_addr(); scores()
        a(f'ds_read_b128 {vr(VB,4)}, v113\nds_read_b128 {vr(VB+4,4)}, v114')
        for i in range(16): a(f'v_sub_f32 v{sb+i}, v{sb+i}, v{NM[u]}')
        a('s_waitcnt lgkmcnt(0)')
        for h in range(2):
            for i in range(8): a(f'v_exp_f32 v{sb+8*h+i}, v{sb+8*h+i}')
            for i in range(4): a(f'v_cvt_pk_bf16_f32 v{sb+8*h+i}, v{sb+8*h+2*i}, v{sb+8*h+2*i+1}')
            a(pv(u, sb, h))
        a('s_nop 15')
        a(f's_add_u32 s98, s98, 1\ns_cmp_le_u32 s98, {8+u}\ns_cbranch_scc1 {lp}')
    a(f's_cmp_eq_u32 {sL}, 1\ns_cbranch_scc1 L_fbdone1\ns_branch L_fbdone3')

    a.auto_wait()
    nn = a.fix_hazards()
    for b in a.check_branch_hazards(): print('BRANCH HAZARD', b, file=sys.stderr)
    hdr = f'; fused persistent kernel: 256 workgroups (one per CU), generated by a script\n; @launch grid=(256,1,1) block=(256,1,1) lds={LDS_BYTES}\n'
    tail = f'''.section .rodata,"a"
.p2align 6
.amdhsa_kernel {KNAME}
  .amdhsa_next_free_vgpr 512
  .amdhsa_next_free_sgpr 102
  .amdhsa_accum_offset 256
  .amdhsa_group_segment_fixed_size 0
  .amdhsa_kernarg_size 72
  .amdhsa_user_sgpr_count 2
  .amdhsa_user_sgpr_kernarg_segment_ptr 1
  .amdhsa_system_sgpr_workgroup_id_x 1
.end_amdhsa_kernel
'''
    print('instructions', sum(1 for I in a.ins if I.kind not in ('label', 'dir')), 'nop states added', nn, file=sys.stderr)
    if focus is not None: hdr += '; names ' + ' '.join(names) + '\n'
    return hdr + a.text() + tail

if __name__ == '__main__':
    opt = {}
    for x in sys.argv[2:]:
        k, _, v = x.partition('=')
        opt[k] = eval(v) if v else 1
    open(sys.argv[1], 'w').write(gen(opt))
```

```python
import sys, struct
from asmlib import Asm, Ins, vr, weave, place

KNAME = 'interleave_layers__linear_attn_block__sliding_block__prompt_kernel'
WO = 0; T = 65536; S = 131072
TS = 2064
KVN = T
OWN = S + 512
STAT = S + 17024
CS = S + 17536
RES = S + 19072
LDS_BYTES = 163840
H2 = 0x10000; H1 = 0x100000
G0 = 0x300000
oXO = 0; oXX = 0x40000; oST = 0x70000; oFL = 0x78000; oFB = 0x7a000; oKVB = 0x80000
WS_BYTES = 0x2300000
STAMP0 = 0x2300000
OOB = 0x4000000
X0, WA, WOA, WB, WOB, OUT, WS = 's[8:11]', 's[12:15]', 's[16:19]', 's[20:23]', 's[24:27]', 's[28:31]', 's[32:35]'
sG, sJ, sW, sTag, sL, sGb, sEp, sCnt = ['s%d' % i for i in range(36, 44)]
sW14, sWsrc, sW12, sWoSrc, sXoLd, sXxSt, sRow, sFl, sFlOwn, sFast, sH1, sH2, sKVB, sFB, sKVN, sOwn = ['s%d' % i for i in range(44, 60)]
sNb = ['s60', 's61', 's62', 's63']
sSt = 's1'
MASK0 = 64
vLane, vL16, vT, vRSa, vRSb, vCSa, vCSb, vXo, vPG, vWoD, vWoR, vXs, vStamp = ['v%d' % i for i in range(13)]
NE, E6, L2Er, ONES = 13, 14, 15, 16
L2E = 1.4426950408889634
def Wreg(mat, part, s):
    base = {('a', 'k'): ('a', 0), ('a', 'v'): ('a', 64), ('a', 'q'): ('a', 128), ('b', 'q'): ('a', 192), ('b', 'k'): ('v', 128), ('b', 'v'): ('v', 192)}[(mat, part)]
    return base[0], base[1] + 4 * s
def Wfrag(mat, part, s):
    k, b = Wreg(mat, part, s); return vr(b, 4, k)
PARTOFF = {'q': 0, 'k': 1024, 'v': 2048}
PARTI = {'q': 0, 'k': 1, 'v': 2}
def f2u(x): return '0x%08x' % struct.unpack('<I', struct.pack('<f', x))[0]
def M16(d, A, B, C): return f'v_mfma_f32_16x16x32_bf16 {d}, {A}, {B}, {C}'
def M32(d, A, B, C): return f'v_mfma_f32_32x32x16_bf16 {d}, {A}, {B}, {C}'
def pk(op, dst, *srcs):
    ops = []; lo = []; hi = []
    for s in srcs:
        if isinstance(s, tuple):
            n = s[1]; ops.append(vr(n & ~1, 2)); lo.append(n & 1); hi.append(n & 1)
        else:
            assert s % 2 == 0; ops.append(vr(s, 2)); lo.append(0); hi.append(1)
    assert dst % 2 == 0
    f = lambda l: '[' + ','.join(map(str, l)) + ']'
    return f'v_pk_{op}_f32 {vr(dst,2)}, ' + ', '.join(ops) + f' op_sel:{f(lo)} op_sel_hi:{f(hi)}'
def cvt(d, s): return f'v_cvt_pk_bf16_f32 v{d}, v{s}, v{s+1}'
def sw16(x, y): return f'v_permlane16_swap_b32 v{x}, v{y}'
def sw32(x, y): return f'v_permlane32_swap_b32 v{x}, v{y}'
def tok(text, name): return Ins(text, 'tok:' + name)
def lines(s): return [x.strip() for x in s.split('\n') if x.strip()]

def gen(opt):
    profile = opt.get('profile'); reuse = opt.get('reuse', 1)
    a = Asm(); ool = Asm()
    uid = [0]
    def lab(n):
        uid[0] += 1; return f'L_{n}_{uid[0]}'
    focus = opt.get('focus'); names = ['start']
    def stamp(L, i):
        if not profile: return
        if focus is not None:
            if L == focus or i == 12 or (L, i) == (3, 11) or (focus == 9 and i in (3, 7)): fstamp(focus, f'S{L}.{i}')
            return
        a('s_memtime s[96:97]' if profile == 'cyc' else 's_memrealtime s[96:97]')
        a('s_waitcnt lgkmcnt(0)')
        a(f'v_writelane_b32 {vStamp}, s96, {16*L+i}')
    def fstamp(L, name):
        if focus != L: return
        a('s_memtime s[96:97]' if profile == 'cyc' else 's_memrealtime s[96:97]')
        a('s_waitcnt lgkmcnt(0)')
        a(f'v_writelane_b32 {vStamp}, s96, {len(names)}')
        names.append(name)
        assert len(names) <= 64
    def poll_start(vaddr, sbase, vtmp, off=0, n=1):
        return f'buffer_load_dword{"" if n == 1 else "x4"} {vr(vtmp, n)}, {vaddr}, {WS}, {sbase} offen offset:{off} sc1'
    def poll_finish(vaddr, sbase, vtmp, off=0, cmp=None, n=1, drain=True):
        r, c = lab('retry'), lab('chk')
        a(f's_branch {c}\n{r}:')
        a(poll_start(vaddr, sbase, vtmp, off, n), 'nocount')
        a(f's_add_u32 {sCnt}, {sCnt}, 1\ns_cmp_ge_u32 {sCnt}, 0x20000\ns_cbranch_scc1 L_end')
        if drain: a(f'{c}:\ns_waitcnt vmcnt(0)')
        else:
            a('s_waitcnt vmcnt(0)', 'nocount')
            a(f'{c}:\n.waitfor {vr(vtmp, n)}')
        a.extend(cmp or [f'v_cmp_ne_u32 vcc, {sTag}, v{vtmp + n - 1}'])
        a(f's_cbranch_vccnz {r}')
    def poll_masked(vaddr, sbase, vtmp, off=0, n=1, drain=False):
        r, c = lab('retry'), lab('chk')
        a(f's_branch {c}\n{r}:')
        a(poll_start(vaddr, sbase, vtmp, off, n), 'nocount')
        a(f's_add_u32 {sCnt}, {sCnt}, 1\ns_cmp_ge_u32 {sCnt}, 0x20000\ns_cbranch_scc1 L_end')
        if drain: a(f'{c}:\ns_waitcnt vmcnt(0)')
        else:
            a('s_waitcnt vmcnt(0)', 'nocount')
            a(f'{c}:\n.waitfor {vr(vtmp, n)}')
        a(f'v_cmp_ne_u32 vcc, {sTag}, v{vtmp + n - 1}\ns_and_b64 exec, exec, vcc\ns_cbranch_scc1 {r}\ns_mov_b64 exec, -1')
    def spread(alu, mem, every):
        o = []; mem = list(mem); k = 0
        isv = lambda y: (y.text if isinstance(y, Ins) else y).startswith('buffer_')
        for x in alu:
            if k % every == 0:
                while mem and not isv(mem[0]): o.append(mem.pop(0))
            if k % every == 1 and mem: o.append(mem.pop(0))
            o.append(x); k += 1
        return o + mem
    def fast_stores(stores, wt=False):
        if wt:
            for x in stores: a.ins.append(Ins(x.text + ' sc1', x.tag) if isinstance(x, Ins) else Ins(x + ' sc1'))
            return
        s, b = lab('slow'), lab('back')
        a(f's_cbranch_scc1 {s}')
        for x in stores: a.ins.append(x if isinstance(x, Ins) else Ins(x))
        a(f'{b}:')
        ool(f'{s}:')
        for x in stores: ool((x.text if isinstance(x, Ins) else x) + ' sc1')
        ool(f's_branch {b}')
    XO = lambda L: oXO + (0 if reuse else L * 0x10000)
    XX = lambda L: (0 if reuse else L * 0x10000)
    ST = lambda L: oST + (0 if reuse else L * 0x1000)

    def w_addr(E, O, R, t):
        o = lines(f'''v_lshrrev_b32 v{t}, 3, v0
        v_and_b32 v{t+1}, 7, v0
        v_lshrrev_b32 v{t+2}, 3, v0
        v_and_b32 v{t+2}, 2, v{t+2}
        v_xor_b32 v{t+1}, v{t+1}, v{t+2}
        v_mul_u32_u24 v{t}, 3072, v{t}
        v_lshl_add_u32 v{E}, v{t+1}, 4, v{t}
        v_xor_b32 v{O}, 64, v{E}
        v_add_u32 v{O}, 24576, v{O}''')
        o += lines(f'''v_lshrrev_b32 v{t}, 4, v0
        v_bfe_u32 v{t+1}, v0, 2, 2
        v_lshl_add_u32 v{t}, v{t}, 3, v{t+1}
        v_and_b32 v{t+1}, 3, v0
        v_lshlrev_b32 v{t+1}, 3, v{t+1}
        v_lshl_add_u32 v{t}, v{t}, 7, v{t+1}
        v_bfe_u32 v{t+1}, v0, 3, 2
        v_xor_b32 v{t+1}, {sW}, v{t+1}
        v_lshl_add_u32 v{R}, v{t+1}, 5, v{t}''')
        return o
    def w_dma(m, p, kq, slot, E, O, name):
        o = []
        for i in range(4):
            o.append(f's_add_u32 m0, {sW12}, {slot + i*1024}')
            if i % 2 == 0: o.append(f's_add_u32 s7, {sWsrc}, {(128*kq + 8*i)*3072 + PARTOFF[p]}')
            o.append(tok(f'buffer_load_dwordx4 v{E if i % 2 == 0 else O}, {WA if m == "a" else WB}, s7 offen lds', name))
        return o
    def w_read(m, p, kq, R, off):
        o = []
        for s2 in range(4):
            k, b = Wreg(m, p, 4*kq + s2)
            for hi in range(2): o.append(f'ds_read_b64_tr_b16 {vr(b+2*hi, 2, k)}, v{R} offset:{off + s2*4096 + hi*512}')
        return o
    def cs_mfma(m, p, d, lo=0, hi=16, one=ONES):
        return [M16(vr(d,4), vr(one,4), Wfrag(m,p,s), '0' if s == 0 else vr(d,4)) for s in range(lo, hi)]
    def cs_write(m, p, d): return f'ds_write_b32 {vCSb}, v{d} offset:{(0 if m == "a" else 768) + PARTI[p]*64}'
    def consts(): return [f'v_mov_b32 v{E6}, {f2u(1e-6)}', f'v_mov_b32 v{L2Er}, {f2u(L2E)}', f'v_mov_b32 v{NE}, {f2u(-1e-6*L2E)}'] + ones()
    def ones(b=ONES): return [f'v_mov_b32 v{b+i}, 0x3f803f80' for i in range(4)]
    def stats_fin(vs, vq, vaddr, t1):
        return lines(f'''v_mul_f32 v{vs}, {f2u(-1/512)}, v{vs}
        v_mul_f32 v{vq}, {f2u(1/512)}, v{vq}
        v_fma_f32 v{vq}, -v{vs}, v{vs}, v{vq}
        v_max_f32 v{vq}, 0, v{vq}
        v_add_f32 v{vq}, {f2u(1e-5)}, v{vq}
        v_rsq_f32 v{t1}, v{vq}
        v_mul_f32 v{vs}, v{vs}, v{t1}''') + [tok(f'ds_write2st64_b32 v{vaddr}, v{t1}, v{vs} offset0:0 offset1:1', 'stw')]

    a(f'.amdgcn_target "amdgcn-amd-amdhsa--gfx950"\n.text\n.globl {KNAME}\n.p2align 8\n.type {KNAME},@function\n{KNAME}:')
    if profile: a('s_memtime s[100:101]' if profile == 'cyc' else 's_memrealtime s[100:101]')
    a('s_cmp_ge_u32 s2, 256\ns_cbranch_scc1 L_end')
    srds = ((8, 0, 0x200000), (12, 8, 0x180000), (32, 64, WS_BYTES + (0x40000 if profile else 0)), (16, 16, 0x80000), (20, 32, 0x180000), (24, 40, 0x80000), (28, 48, 0x200000))
    for b_, o_, n_ in srds: a(f's_load_dwordx2 s[{b_}:{b_+1}], s[0:1], {o_}')
    a('s_lshr_b32 s4, s2, 3')
    if opt.get('codepf', 1):
        a('s_getpc_b64 s[82:83]\nL_pc0:')
        a('v_lshrrev_b32 v1, 6, v0\nv_lshl_add_u32 v1, s4, 2, v1\nv_and_b32 v2, 3, v0\nv_lshl_add_u32 v1, v1, 2, v2\nv_lshlrev_b32 v1, 7, v1')
        a('v_min_u32 v1, L_codeend-L_pc0-4, v1')
        a('global_load_dword v127, v1, s[82:83]')
    a(f's_and_b32 s3, s2, 7\ns_lshr_b32 s5, s4, 3\ns_lshl_b32 s3, s3, 2\ns_add_u32 {sG}, s3, s5\ns_and_b32 {sJ}, s4, 7')
    a(f'v_lshrrev_b32 v2, 6, v0\nv_and_b32 v0, 63, v0\nv_readfirstlane_b32 {sW}, v2')
    if profile: a(f'v_mov_b32 {vStamp}, 0')
    a(f's_lshl_b32 s84, s4, 2\ns_add_u32 s84, s84, {sW}\ns_lshl_b32 s85, s2, 2\ns_add_u32 s85, s85, {sW}')
    a(f'v_lshlrev_b32 v26, 7, v0\nv_subrev_u32 v27, 16, v0\nv_lshlrev_b32 v28, 10, v27\nv_mov_b32 v29, {OOB}')
    def pf_addr(d, n, cs, xs):
        return lines(f'''s_mul_i32 s86, s85, {cs}
        s_mul_i32 s87, s84, {xs}
        s_add_u32 s87, s87, 384
        v_add_u32 v30, s86, v26
        v_cmp_gt_u32 vcc, {n}, v0
        v_add_u32 v31, s87, v28
        s_nop 0
        v_cndmask_b32 v{d}, v29, v30, vcc
        v_cmp_gt_u32 vcc, {n}, v27
        s_nop 1
        v_cndmask_b32 v{d}, v{d}, v31, vcc''')
    a.extend(pf_addr(255, 12, 1536, 12288))
    a(f's_and_b32 s88, s2, 7\ns_lshl_b32 s88, s88, 18\ns_lshl_b32 s86, s84, 11\ns_add_u32 s88, s88, s86\nv_cmp_gt_u32 vcc, 16, v0\nv_cndmask_b32 v32, v29, v26, vcc')
    for b_, o_, n_ in srds: a(f's_mov_b32 s{b_+2}, {hex(n_)}\ns_mov_b32 s{b_+3}, 0x20000')
    a.extend(pf_addr(254, 4, 512, 4096))
    if opt.get('noj3'):
        a('v_cmp_gt_u32 vcc, 16, v0\nv_cndmask_b32 v250, v29, v255, vcc\nv_cndmask_b32 v254, v29, v254, vcc')
    if opt.get('tlb', 0):
        a(f'v_add_u32 v33, {sG}, v0\nv_subrev_u32 v33, 4, v33\nv_max_i32 v33, 3, v33\nv_writelane_b32 v33, 0, 0\nv_writelane_b32 v33, 3, 1\nv_writelane_b32 v33, 3, 2\nv_lshlrev_b32 v33, 20, v33\nv_add_u32 v33, 0xfff80, v33')
        a(f'v_cmp_gt_u32 vcc, 8, v0\nv_cndmask_b32 v33, v29, v33, vcc\nv_cmp_eq_u32 vcc, 0, v0\nv_cndmask_b32 v34, v29, v0, vcc')
    a('s_waitcnt lgkmcnt(0)')
    if opt.get('pf', 1): a(f'buffer_load_dword v127, v32, {X0}, s88 offen\nbuffer_load_dword v127, v255, {WA}, 0 offen')
    if opt.get('tlb', 0):
        for r_ in (WB, WOA, WOB): a(f'buffer_load_dword v127, v34, {r_}, 0 offen')
        if opt['tlb'] > 1: a(f'buffer_load_dword v127, v33, {WS}, 0 offen')
    if profile: a(f'v_writelane_b32 {vStamp}, s100, 0')
    stamp(0, 1)
    a(f's_load_dword {sEp}, s[32:33], 0')
    a(f'v_lshlrev_b32 {vL16}, 4, v0')
    a('v_lshrrev_b32 v22, 2, v0\nv_and_b32 v23, 3, v0\nv_lshrrev_b32 v24, 4, v0\nv_and_b32 v24, 2, v24\nv_xor_b32 v23, v23, v24\nv_lshlrev_b32 v22, 10, v22\nv_lshl_add_u32 v118, v23, 4, v22')
    WE, WOd, WR = 124, 125, 126
    wa = w_addr(WE, WOd, WR, 24)
    a.extend(wa[:9])
    a(f's_lshl_b32 {sW14}, {sW}, 14\ns_lshl_b32 {sW12}, {sW}, 12\ns_lshl_b32 s6, {sJ}, 7')
    a(f's_mul_i32 {sWsrc}, {sW}, {32*3072}\ns_add_u32 {sWsrc}, {sWsrc}, s6')
    a(f's_lshl_b32 s3, {sG}, 16\ns_add_u32 s3, s3, {sW14}\ns_add_u32 {sRow}, s3, s6\ns_add_u32 s5, {sW14}, {T}')
    def x_dma(kq):
        o = []
        for s in range(4*kq, 4*kq+4):
            o += [f's_add_u32 m0, s5, {s*1024 - s*64}', tok(f'buffer_load_dwordx4 v118, {X0}, s3 offen offset:{s*64} lds', f'x{kq}')]
        return o
    ring = [('a','k',0),('a','v',0),('a','k',1),('a','v',1),('a','k',2),('a','v',2),('a','k',3),('a','v',3),('a','q',0),('a','q',1),('a','q',2),('a','q',3)]
    slot = lambda n: [0, 16384, 32768, 49152, S][n % 5]
    rd = lambda n: w_dma(*ring[n], slot(n), WE, WOd, f'r{n}')
    up = [x_dma(0), rd(0), rd(1), x_dma(1), rd(2), rd(3)]
    nf = opt.get('nf', 1)
    for c in up[:nf]: a.extend(c)
    a.extend(wa[9:])
    a(f'v_add_u32 v123, {S}, v{WR}')
    a('v_and_b32 v20, 15, v0\nv_lshrrev_b32 v21, 4, v0')
    a(f'v_lshlrev_b32 {vRSa}, 4, v21\nv_lshlrev_b32 {vRSb}, 2, v20')
    a(f's_mul_i32 s6, {sW}, 192\ns_add_u32 s6, s6, {CS}')
    a(f'v_add_u32 {vCSa}, s6, {vRSa}\nv_add_u32 {vCSb}, s6, {vRSb}\nv_add_u32 {vRSa}, {STAT}, {vRSa}\nv_add_u32 {vRSb}, {STAT}, {vRSb}')
    a(f'v_lshrrev_b32 v23, 2, v20\nv_and_b32 v23, 2, v23\nv_xor_b32 v24, v21, v23\nv_lshlrev_b32 v24, 4, v24\nv_lshl_add_u32 v24, v20, 6, v24\nv_add_u32 {vT}, {T}, v24')
    a(f'v_add_u32 v122, {sW14}, {vT}')
    a(f'v_and_b32 v25, 1, v21\nv_lshrrev_b32 v26, 1, v21\nv_lshl_add_u32 v27, v25, 1, v26\nv_lshlrev_b32 v28, 4, v20\nv_lshl_add_u32 {vXs}, v27, 8, v28')
    a(f'v_xor_b32 v27, v27, v23\nv_lshlrev_b32 v27, 4, v27\nv_lshl_add_u32 v27, v20, 6, v27\ns_lshl_b32 s6, {sJ}, 11\ns_add_u32 s7, s6, s5\nv_add_u32 v121, s7, v27')
    a(f's_lshl_b32 {sGb}, {sG}, 20\ns_add_u32 {sGb}, {sGb}, {G0}\ns_add_u32 {sXoLd}, {sGb}, {sW14}\ns_add_u32 {sXxSt}, {sXoLd}, s6\ns_add_u32 {sXxSt}, {sXxSt}, {oXX}')
    a(f's_lshl_b32 s6, {sJ}, 2\ns_add_u32 s6, s6, {sW}\ns_lshl_b32 s7, s6, 9')
    a(f'v_lshl_add_u32 v27, v25, 14, v28\nv_lshl_add_u32 v27, v26, 8, v27\nv_add_u32 {vXo}, s7, v27')
    a(f's_lshl_b32 {sH1}, s6, 15\ns_add_u32 {sH1}, {sH1}, {H1}\ns_lshl_b32 {sH2}, s6, 12\ns_add_u32 {sH2}, {sH2}, {H2}')
    a(f's_lshl_b32 {sKVB}, s6, 12\ns_add_u32 {sKVB}, {sKVB}, {sGb}\ns_add_u32 {sKVB}, {sKVB}, {oKVB}')
    a(f's_lshl_b32 {sFB}, s6, 7\ns_add_u32 {sFB}, {sFB}, {oFB}')
    a(f's_add_u32 {sFl}, {sGb}, {oFL}\ns_lshl_b32 s6, {sJ}, 2\ns_add_u32 {sFlOwn}, {sFl}, s6\ns_cmp_eq_u32 {sW}, 0\ns_cselect_b32 {sFlOwn}, {sFlOwn}, {OOB}')
    a(f's_lshl_b32 {sWoSrc}, {sW}, 17\ns_lshl_b32 s6, {sJ}, 7\ns_add_u32 {sWoSrc}, {sWoSrc}, s6')
    a(f's_mul_i32 {sKVN}, {sW}, {8*TS}\ns_add_u32 {sKVN}, {sKVN}, {KVN}\ns_mul_i32 {sOwn}, {sW}, {2*TS}\ns_add_u32 {sOwn}, {sOwn}, {OWN - 8*TS}')
    for i in range(4):
        a(f's_sub_u32 s6, {sKVB}, {(i+1) << 20}\ns_cmp_gt_u32 {sG}, {i}\ns_cselect_b32 {sNb[i]}, s6, {OOB}')
    a(f's_mov_b32 {sCnt}, 0\ns_mov_b32 {sL}, 0')
    a(f's_lshr_b32 s6, {sJ}, 1\ns_lshl_b32 s6, s6, 8\ns_and_b32 s7, {sJ}, 1\ns_lshl_b32 s7, s7, 3\ns_add_u32 s6, s6, s7\ns_lshl_b32 s7, {sW}, 10\ns_add_u32 s6, s6, s7\ns_add_u32 {sSt}, s6, {sGb}')
    a(f'v_and_b32 {vPG}, 7, v0\nv_lshlrev_b32 v27, 4, {vPG}\nv_lshlrev_b32 {vPG}, 2, {vPG}\nv_lshrrev_b32 v29, 3, v0\nv_lshl_add_u32 {vWoD}, v29, 12, v27')
    a(f'v_bfe_u32 v27, v0, 2, 2\nv_lshl_add_u32 v29, v26, 2, v25\nv_lshl_add_u32 v29, v27, 3, v29\nv_lshlrev_b32 v29, 7, v29\nv_lshl_add_u32 v29, v27, 5, v29\nv_and_b32 v27, 3, v0\nv_lshl_add_u32 {vWoR}, v27, 3, v29')
    a.extend(consts())
    a('v_and_b32 v28, 31, v0\nv_lshlrev_b32 v29, 2, v26\nv_sub_u32 v28, v28, v29')
    for i in range(16): a(f'v_cmp_le_i32 s[{MASK0+2*i}:{MASK0+2*i+1}], {8*(i>>2) + (i&3)}, v28')
    a(f'v_mov_b32 v29, {OOB}\nv_cmp_eq_u32 vcc, 0, v0\nv_cndmask_b32 v120, v29, v0, vcc')
    xccst = [f'buffer_store_dword v117, v120, {WS}, {sFlOwn} offen offset:256 sc1']
    rest = [f'buffer_load_dword v127, {"v250" if opt.get("noj3") else "v255"}, {WB}, 0 offen', f'buffer_load_dword v127, v254, {WOA}, 0 offen', f'buffer_load_dword v127, v254, {WOB}, 0 offen'] if opt.get('pf', 1) else []
    tx = opt.get('tx', 0)
    a(f's_lshl_b32 s6, {sJ}, 2\ns_add_u32 s6, s6, {sW}\ns_lshl_b32 s7, s6, 11\ns_add_u32 s7, s7, {sGb}')
    a(f'v_lshlrev_b32 v30, 7, v20\nv_lshl_add_u32 v30, v25, 18, v30\nv_add_u32 v30, s7, v30\nv_cmp_gt_u32 vcc, {32 if tx else 0}, v0\ns_lshl_b32 s6, s6, 7\ns_add_u32 s6, s6, {sGb}\nv_cndmask_b32 v251, v29, v30, vcc')
    a(f's_add_u32 s7, s6, {oST}\nv_writelane_b32 v251, s7, 32\nv_writelane_b32 v251, {sFl}, 33\ns_add_u32 s7, {sFl}, 128\nv_writelane_b32 v251, s7, 34')
    if opt.get('th', 1):
        a(f's_lshl_b32 s7, {sG}, 7\ns_add_u32 s7, s7, {sH2}\nv_writelane_b32 v251, s7, 35\ns_add_u32 s7, s6, {oFB}\nv_writelane_b32 v251, s7, 36\ns_add_u32 s7, s7, 0x1000\nv_writelane_b32 v251, s7, 37')
    def touch2(t):
        if not opt.get('th2', 1): return []
        return lines(f'''s_lshl_b32 s7, {sG}, 10
        s_add_u32 s7, s7, {sH1}
        s_add_u32 s7, s7, 0x100000
        v_and_b32 v{t}, 7, v0
        v_lshl_add_u32 v{t}, v{t}, 7, s7
        s_lshl_b32 s7, {sG}, 7
        s_add_u32 s7, s7, {sH2}
        s_add_u32 s7, s7, 0x20000
        v_writelane_b32 v{t}, s7, 8
        s_add_u32 s7, s99, 0x2000
        v_writelane_b32 v{t}, s7, 9
        s_add_u32 s7, s99, 0x3000
        v_writelane_b32 v{t}, s7, 10
        buffer_load_dword v{t+1}, v{t}, {WS}, 0 offen sc1''')
    a(f'''v_and_b32 v116, 3, v0
    s_lshl_b32 s6, {sW}, 6
    v_add_u32 v253, s6, {vRSb}
    v_bfe_u32 v31, v0, 2, 2
    v_cmp_eq_u32 vcc, v31, v21
    v_mov_b32 v31, {LDS_BYTES - 1024}
    s_lshl_b32 s6, {sW}, 11
    v_cndmask_b32 v253, v31, v253, vcc
    s_add_u32 s6, s6, {RES}
    v_add_u32 v119, s6, {vL16}
    v_cmp_eq_u32 s[98:99], 1, v116
    v_cmp_eq_u32 s[100:101], 2, v116''')
    fstamp(0, 'setup') if opt.get('ss') else None
    for i, c in enumerate(up[nf:]):
        a.extend(c)
        if nf + i in (0, 2): a('s_barrier')
    a(f's_waitcnt lgkmcnt(0)\ns_add_u32 {sEp}, {sEp}, 1\ns_mul_i32 {sTag}, {sEp}, 0x9E3779B1\ns_cmp_eq_u32 {sTag}, 0x3f803f80\ns_addc_u32 {sEp}, {sEp}, 0\ns_mul_i32 {sTag}, {sEp}, 0x9E3779B1')
    a(f's_getreg_b32 s6, hwreg(HW_REG_XCC_ID, 0, 4)\ns_add_u32 s6, s6, {sTag}\nv_mov_b32 v117, s6')
    fstamp(0, 'issued')
    acc0 = lambda p, t: 20 + 8*t + (0 if p == 'k' else 4)
    XR0 = 52
    GR, SM, CK, CV, OT = 84, 88, 92, 96, 100
    touch = [f'buffer_load_dword v127, v251, {WS}, 0 offen sc1', poll_start(vPG, sFl, 252, 256)]
    later = {0: x_dma(2) + rd(4) + rd(5) + xccst, 1: x_dma(3) + rd(6) + rd(7), 2: rd(8) + rd(9) + rd(10), 3: rd(11) + rest + touch}
    rp = opt.get('rp', 0); st3 = 17; post = []
    if rp == 1:
        later[2] = rest + touch[:1]; later[3] = rd(8) + rd(9) + rd(10); post = rd(11) + touch[1:]; st3 = 1
    if rp == 2:
        later[2] = rd(8) + rest + touch[:1]; later[3] = rd(9) + rd(10) + rd(11); post = touch[1:]; st3 = 1
    RS0 = lambda t: 128 + 8*t
    B0 = lambda t: 160 + 4*t
    wr = lambda n: w_read(*ring[n], WR if slot(n) < 65536 else 123, slot(n) if slot(n) < 65536 else 0)
    rdx = lambda N: f'ds_read_b128 {vr(XR0 + 4*(N % 8), 4)}, {vT} offset:{((N & 3)*16 + (N >> 2))*1024}'
    ord_ = lambda kq: [f'ds_read_b128 {vr(OT + 4*i, 4)}, v122 offset:{(4*kq+i)*1024}' for i in range(4)]
    a('.waitfor tok:x0 tok:r0 tok:r1\ns_barrier')
    fstamp(0, 'step0')
    a.extend(ord_(0) + wr(0))
    for kq in range(4):
        main = []
        for i in range(4):
            x = vr(OT + 4*i, 4); z = kq == 0 and i == 0
            main += [M16(vr(GR,4), x, x, '0' if z else vr(GR,4)), M16(vr(SM,4), vr(ONES,4), x, '0' if z else vr(SM,4))]
        main += cs_mfma('a', 'k', CK, 4*kq, 4*kq+4) + cs_mfma('a', 'v', CV, 4*kq, 4*kq+4)
        main += ['s_barrier']
        for n in range(16):
            N = 16*kq + n; t, s = N & 3, N >> 2
            x = vr(XR0 + 4*(N % 8), 4)
            if n % 4 == 0: main.append(f'.waitfor {vr(XR0 + 4*((N+3) % 8), 4)}')
            for p in 'kv':
                d = vr(acc0(p, t), 4); main.append(M16(d, x, Wfrag('a', p, s), '0' if s == 0 else d))
            if n == 9 and kq < 3: main += [f'.waitfor tok:x{kq+1} tok:r{2*kq+2} tok:r{2*kq+3}', 's_barrier']
            if n == 5 and kq == 3: main += ['.waitfor tok:stw', 's_barrier']
            if N + 7 < 64: main.append(rdx(N + 7))
        main, left = place(main, later[kq], st3 if kq == 3 else 1, 4)
        fill = wr(2*kq + 1) + ([rdx(N) for N in range(7)] if kq == 0 else [])
        if kq < 3: fill += [('at', 37)] + ord_(kq + 1) + wr(2*kq + 2)
        else:
            fill += ['v_cmp_eq_u32 vcc, 3, v116', ('at', 12), f'v_cndmask_b32 v{GR}, v{GR}, v{GR+1}, s[98:99]', f'v_cndmask_b32 v{GR}, v{GR}, v{GR+2}, s[100:101]', f'v_cndmask_b32 v{GR}, v{GR}, v{GR+3}, vcc']
            fill += stats_fin(SM, GR, 253, 116) + [('at', 22), cs_write('a', 'k', CK), cs_write('a', 'v', CV), ('at', 29)]
            for t in range(4): fill += [f'ds_read_b128 {vr(RS0(t)+4,4)}, {vRSa} offset:{256+t*64}']
            for t in range(4): fill += [f'ds_read_b128 {vr(RS0(t),4)}, {vRSa} offset:{t*64}']
            for t in range(3):
                fill += [f'v_fma_f32 v{B0(t)+i}, v{RS0(t)+4+i}, v{CK}, v{E6}' for i in range(4)] + [f'v_mul_f32 v{RS0(t)+4+i}, v{RS0(t)+4+i}, v{CV}' for i in range(4)]
        a.extend(weave(main, fill) + left)
        fstamp(0, f'step{kq+1}')
    stamp(0, 2)
    PK, VV, KVr, Zr = 80, 88, 96, 100
    def epi_A_pk(K, V, RS, MR, B, csk, csv, t):
        o = []
        o += [pk('fma', B+i, MR+i, ('b', csk), ('b', E6)) for i in (0, 2)]
        o += [pk('mul', MR+i, MR+i, ('b', csv)) for i in (0, 2)]
        o2 = [pk('fma', K+i, K+i, RS+i, B+i) for i in (0, 2)]
        o2 += [pk('fma', V+i, V+i, RS+i, MR+i) for i in (0, 2)]
        o2 += [pk('fma', B+i, K+i, ('b', L2Er), ('b', NE)) for i in (0, 2)]
        o2 += [f'v_exp_f32_e64 v{B+i}, v{B+i} clamp' for i in range(4)]
        o2 += [f'v_max_f32 v{K+i}, v{K+i}, v{E6}' for i in range(4)]
        o2 += [cvt(VV+2*t, V), cvt(VV+2*t+1, V+2)]
        o2 += [pk('add', K+i, K+i, B+i) for i in (0, 2)]
        o2 += [cvt(PK+2*t, K), cvt(PK+2*t+1, K+2)]
        return o, o2
    a.extend(epi_A_pk(0, 0, RS0(3), RS0(3)+4, B0(3), CK, CV, 3)[0])
    for t in range(4): a.extend(epi_A_pk(acc0('k', t), acc0('v', t), RS0(t), RS0(t)+4, B0(t), CK, CV, t)[1])
    def kv_mfma(h): return [M16(vr(KVr,4), vr(PK+4*h,4), vr(VV+4*h,4), '0' if h == 0 else vr(KVr,4)), M16(vr(Zr,4), vr(PK+4*h,4), vr(ONES,4), '0' if h == 0 else vr(Zr,4))]
    a.extend(kv_mfma(0) + kv_mfma(1))

    QA, XRq = 28, 44
    QF = [20, 24]; OA = [28, 44]
    def wo_xor(t): return [f'v_xor_b32 v{t+i}, {32*(i+1)}, {vWoD}' for i in range(3)]
    def wo_dma(srd, t, gs):
        o = []
        for g in gs:
            o += [f's_add_u32 m0, {sW14}, {WO + g*4096}', f's_add_u32 s7, {sWoSrc}, {g*32768}']
            for i in range(4): o.append(tok(f'buffer_load_dwordx4 {vWoD if i == 0 else "v%d" % (t+i-1)}, {srd}, s7 offen offset:{i*1024} lds', 'wo'))
        return o
    def q_pass(mat, ringb, fill, mem, mstart, forced):
        reads = [(t, s) for s in range(16) for t in range(4)]
        R = len(ringb); D = R - 1
        rdx = lambda n: f'ds_read_b128 {vr(ringb[n % R], 4)}, {vT} offset:{(reads[n][0]*16 + reads[n][1])*1024}'
        main = [rdx(n) for n in range(D)]
        for n, (t, s) in enumerate(reads):
            if n % 4 == 0 and n: main.append(f'.waitfor {vr(ringb[(n+3) % R], 4)}')
            d = vr(QA + 4*t, 4); main.append(M16(d, Wfrag(mat, 'q', s), vr(ringb[n % R], 4), '0' if s == 0 else d))
            if n + D < 64: main.append(rdx(n + D))
            main += forced.get(n, [])
        main, left = place(main, mem, mstart, 4)
        a.extend(weave(main, fill) + left)
    def flag_line(t):
        return [f'v_mov_b32 v{t+i}, {sTag}' for i in range(4)] + lines(f'''v_mov_b32 v{t+4}, {OOB}
        v_cmp_gt_u32 vcc, 8, v0
        v_cndmask_b32 v{t+4}, v{t+4}, {vL16}, vcc''')
    def passes(L, mat, fills, mems, shadow=[], extra0=[], forced={}):
        accp = lambda p, t: 20 + 8*(t & 1) + (0 if p == 'k' else 4)
        XR = 36
        dma = lambda n, name: [tok(f'buffer_load_dwordx4 {vL16}, {WS}, s3 offen offset:{i*1024} sc1 lds', name) for i in range(n)]
        fair = ['s_barrier'] if opt.get('fair', 1) else []
        a.extend(dma(2, 't0a'))
        a('s_add_u32 m0, m0, 8192\ns_add_u32 s3, s3, 8192')
        a.extend(fair + dma(2, 't0b'))
        a(f'buffer_load_dwordx4 v[112:115], {vL16}, {WS}, s6 offen sc1')
        nxt = lambda t: [f's_add_u32 m0, s5, {t*16384}', f's_add_u32 s3, s4, {t*16384}'] + dma(4, f't{t}')
        n1_ = nxt(1); a.extend(n1_[:2] + fair + n1_[2:2 + opt.get('t1n', 2)])
        stat = lines(f'''v_add_f32 v112, v112, v114
        v_add_f32 v113, v113, v115
        {sw32(112,113)}
        v_add_f32 v112, v112, v113
        v_mov_b32 v113, v112
        {sw16(112,113)}
        v_add_f32 v112, v112, v113
        v_mov_b32 v113, v112
        {sw32(112,113)}''') + stats_fin(112, 113, 119, 114)
        a.extend(shadow)
        a('.waitfor tok:t0a tok:shadow\ns_barrier')
        stamp(L, 1)
        rdx = lambda n: f'ds_read_b128 {vr(XR + 4*(n % 8), 4)}, {vT} offset:{n*1024}'
        D = 7
        a.extend([rdx(n) for n in range(D)])
        pend = n1_[2 + opt.get('t1n', 2):]
        for t in range(4):
            main = []
            for s in range(16):
                n = 16*t + s; x = vr(XR + 4*(n % 8), 4)
                if n % 4 == 0 and n: main.append(f'.waitfor {vr(XR + 4*((n+3) % 8), 4)}')
                for p in 'kv':
                    d = vr(accp(p, t), 4); w = Wfrag(mat, p, s)
                    A, B = (w, x) if (mat == 'b' and p == 'k') else (x, w)
                    main.append(M16(d, A, B, '0' if s == 0 else d))
                m = n + D
                if m == 10: main += ['.waitfor tok:t0b', 's_barrier', rdx(8), rdx(9)]
                if m == 18: main += ['.waitfor tok:t1 tok:stw', 's_barrier', rdx(16), rdx(17)]
                if m in (32, 48): main += [f'.waitfor tok:t{m//16}', 's_barrier']
                if m < 64 and m not in (8, 9, 16, 17): main.append(rdx(m))
                main += forced.get(n, [])
                if opt.get('fine') and focus == L and t == 0 and n in (0, 2, 3, 7, 10, 11, 13):
                    main += ['s_memtime s[96:97]' if profile == 'cyc' else 's_memrealtime s[96:97]', 's_waitcnt lgkmcnt(0)', f'v_writelane_b32 {vStamp}, s96, {len(names)}']; names.append(f'p0n{n}')
            f = fills[t]
            if t == 0: f = [('at', 5)] + stat + f; main = extra0 + main
            mem = pend + (nxt(2) + nxt(3) if t == 0 else []) + mems[t]
            main, pend = place(main, mem, 1, 4)
            a.extend(weave(main, f))
            fstamp(L, f'pass{t}')
        assert not pend
        return accp
    def entry_prep(L):
        return lines(f'''s_lshl_b32 s6, {sW}, 11
        s_add_u32 s4, {sGb}, {oXX + XX(L-1)}
        s_add_u32 s3, s4, s6
        s_add_u32 m0, s6, {T}
        s_add_u32 s4, s4, {sW12}
        s_add_u32 s5, {sW12}, {T}
        s_lshl_b32 s6, {sW}, 6
        v_add_u32 v119, s6, {vRSb}
        s_lshl_b32 s6, {sW}, 10
        s_add_u32 s6, s6, {sGb}
        s_add_u32 s6, s6, {ST(L-1)}
        v_add_u32 {vT}, {T}, {vL16}''')

    def A_passes(L):
        RS, MR, B = 68, 72, 76
        accp = lambda p, t: 20 + 8*(t & 1) + (0 if p == 'k' else 4)
        def prep(t):
            o = [f'ds_read_b128 {vr(MR,4)}, {vRSa} offset:{256+t*64}', f'ds_read_b128 {vr(RS,4)}, {vRSa} offset:{t*64}']
            o2 = [f'.waitfor {vr(RS,4)}'] + [f'v_fma_f32 v{108+i}, v{MR+i}, v104, v{E6}' for i in range(4)]
            o2 += [f'v_mul_f32 v{MR+i}, v{MR+i}, v105' for i in range(4)]
            return o, o2
        def fin(t):
            K, V = accp('k', t), accp('v', t)
            r, p2 = prep(t + 1)
            o = [('at', 3)] + [f'v_fma_f32 v{K+i}, v{K+i}, v{RS+i}, v{108+i}' for i in range(4)]
            o += [f'v_fma_f32 v{V+i}, v{V+i}, v{RS+i}, v{MR+i}' for i in range(4)]
            o += r
            o += [f'v_fma_f32 v{B+i}, v{K+i}, v{L2Er}, v{NE}' for i in range(4)]
            o += [cvt(VV+2*t, V), cvt(VV+2*t+1, V+2)]
            for i in range(4): o += [f'v_exp_f32_e64 v{B+i}, v{B+i} clamp', f'v_max_f32 v{K+i}, v{K+i}, v{E6}']
            o += [f'v_add_f32 v{K+i}, v{K+i}, v{B+i}' for i in range(4)]
            o += [cvt(PK+2*t, K), cvt(PK+2*t+1, K+2)]
            return o + p2
        r0, p0 = prep(0)
        fills = [[f'ds_read2_b32 v[104:105], {vCSb} offset0:16 offset1:32', ('at', 25)] + r0 + [('at', 28)] + p0, fin(0), fin(1), kv_mfma(0) + fin(2)]
        passes(L, 'a', fills, [[], [], [], []])
        stamp(L, 2)
        o, o2 = epi_A_pk(accp('k', 3), accp('v', 3), RS, MR, 108, 104, 105, 3)
        a.extend(o2 + kv_mfma(1))
    def dppm(d, src, ctl, bank=0xf): return f'v_mov_b32_dpp v{d}, v{src} {ctl} row_mask:0xf bank_mask:{hex(bank)}'
    def ror(r, sh): return f'v_add_f32_dpp v{r}, v{r}, v{r} row_ror:{sh} row_mask:0xf bank_mask:0xf'
    B2 = [(0, 'k', 1), (1, 'k', 2), (2, 'k', 3), (3, 'v', 0)]; W2 = opt.get('w2', 1)
    def A_tail(L):
        it = L >> 1
        a(f's_lshl_b32 s3, {sG}, 10\ns_add_u32 s4, {sH1}, {it*0x100000}\ns_add_u32 s5, s4, s3\ns_lshl_b32 s3, {sG}, 5\ns_add_u32 s4, s4, s3')
        a(f's_add_u32 s6, {sH2}, {it*0x20000}\ns_lshl_b32 s3, {sG}, 7')
        dz = [dppm(Zr, Zr+i, 'quad_perm:[0,1,2,3]', 1 << i) for i in (1, 2, 3)]
        a.extend([dz[0], cvt(99, 98), cvt(98, 96), dz[1], f'v_mov_b32 v101, {sTag}', 's_add_u32 s3, s6, s3', dz[2]])
        a.ins.append(tok(f'buffer_store_dwordx4 v[98:101], {vL16}, {WS}, s5 offen sc1', 'h1'))
        stamp(L, 3)
        adr = lines(f'''v_lshrrev_b32 v112, 1, v0
        v_and_b32 v116, 1, v0
        v_lshlrev_b32 v116, 4, v116
        v_lshl_add_u32 v117, v112, 7, v116
        v_lshl_add_u32 v116, v112, 10, v116
        v_mov_b32 v112, {OOB}
        v_cmp_gt_u32 vcc, 8, v0''') + wo_xor(113) + [f'v_cndmask_b32 v112, v112, {vL16}, vcc']
        p1 = ('v116', 's4', 104, 0); p2 = ('v117', 's6', 96, 0)
        ringb = list(range(44, 92, 4))
        n1 = opt.get('n1', 2)
        if L == 0:
            a.extend(post)
            a('ds_read_b128 v[44:47], v121\nds_read_b128 v[48:51], v121 offset:1024')
            a.extend(adr)
            a('ds_write_b128 v119, v[44:47]\nds_write_b128 v119, v[48:51] offset:1024')
            a('.waitfor tok:r11\ns_barrier')
            for n in range(8, 12): a.extend(wr(n))
            P1 = opt.get('p1a', 24); n1 = 2
            q_pass('a', ringb, [], wo_dma(WOA, 113, range(n1)), P1 + 5, {8: ['s_barrier'], P1: ['.waitfor tok:h1', poll_start(*p1, n=4)]})
        else:
            a.extend(adr[7:10])
            q_pass('a', ringb, adr[:7] + adr[10:], wo_dma(WOA, 113, range(n1)), 2, {opt.get('p1b', 46): ['.waitfor tok:h1', poll_start(*p1, n=4)]})
        if L: a(f'ds_read_b128 v[76:79], {vCSa}')
        a.extend([f'ds_read2_b32 {vr(80+2*t,2)}, {vRSb} offset0:{t*16} offset1:{64+t*16}' for t in range(4)])
        stamp(L, 4)
        poll_masked(*p1, n=4)
        fstamp(L, 'hop1')
        a(f'''v_lshlrev_b32 v108, 16, v104
        v_and_b32 v109, 0xffff0000, v104
        v_lshlrev_b32 v110, 16, v105
        v_and_b32 v111, 0xffff0000, v105
        v_mov_b32 v104, v106
        {sw32(108, 109)}
        {sw32(110, 111)}
        {sw32(106, 104)}
        v_add_f32 v108, v108, v109
        v_add_f32 v110, v110, v111
        v_add_f32 v106, v106, v104
        v_mov_b32 v104, v106
        {sw16(108, 110)}
        v_add_f32 v108, v108, v110
        {sw16(106, 104)}
        v_add_f32 v106, v106, v104''')
        for sh in (8, 4, 2): a.extend([ror(108, sh), ror(106, sh)])
        a(f'v_mov_b32 v109, v108\n{sw32(108, 109)}\n{cvt(104, 108)}\nv_mov_b32 v105, v104\n{sw16(104, 105)}')
        a.ins.append(tok(f'buffer_store_dwordx4 v[104:107], v112, {WS}, s3 offen sc1', 'h2'))
        fstamp(L, 'reduce')
        e = []
        for t in range(4):
            q = QA + 4*t; B = 88
            e += [pk('fma', B+i, 76+i, ('b', 81+2*t), ('b', E6)) for i in (0, 2)]
            e += [pk('fma', q+i, q+i, ('b', 80+2*t), B+i) for i in (0, 2)]
            e += [pk('fma', B+i, q+i, ('b', L2Er), ('b', NE)) for i in (0, 2)]
            e += [f'v_exp_f32_e64 v{B+i}, v{B+i} clamp' for i in range(4)]
            e += [f'v_max_f32 v{q+i}, v{q+i}, v{E6}' for i in range(4)]
            e += [pk('add', q+i, q+i, B+i) for i in (0, 2)]
            e += [cvt(20+2*t, q), cvt(21+2*t, q+2)]
        e += [f's_add_u32 s4, {sGb}, {XO(L)}', sw16(20, 22), sw16(21, 23), f's_add_u32 s5, s4, 32768', sw16(24, 26), sw16(25, 27)]
        mem = wo_dma(WOA, 113, range(n1, 4))
        if L == 0:
            mem += w_dma('b', 'k', 0, S, WE, WOd, 'b2')
            cq, mem = place(cs_mfma('a', 'q', 92), mem, 2, 4)
            a.extend(cq)
            poll_finish(vPG, sFl, 252, 256, [f'v_subrev_u32 v120, {sTag}, v252', 'v_cmp_lt_u32 vcc, 15, v120'], drain=False)
            a(f'v_readfirstlane_b32 s7, v252\nv_cmp_ne_u32 vcc, s7, v252\ns_cmp_eq_u64 vcc, 0\ns_cselect_b32 {sFast}, {0 if opt.get("slow") else 1}, 0\n{cs_write("a", "q", 92)}\nds_read_b128 v[76:79], {vCSa}')
        a.extend(spread(e, mem, 10))
        a('.waitfor tok:h2')
        a(poll_start(*p2, n=4))
        if L == 0:
            a(f'v_add_u32 v122, {T}, v{WR}\ns_barrier')
            for i, p, kq in B2[:W2]: a.extend(w_dma('b', p, kq, T + i*16384, WE, WOd, 'b2'))
        stamp(L, 5)
        poll_masked(*p2, n=4)
        stamp(L, 6)
        a.extend([dppm(108+r, 98, f'row_newbcast:{4*r}') for r in range(4)] + [cvt(98, 108), cvt(99, 110), sw16(96, 98), sw16(97, 99)])
        for u in range(2): a(M32(vr(OA[u],16), 'v[96:99]', vr(QF[u],4), '0'))
        for u in range(2): a(f'v_add_f32 v{OA[u]+8}, v{OA[u]+8}, v{E6}')

    CB, SB, KB, VB = 60, [96, 112], 76, 88
    vK, vVa, vVb, NM, NEG, TMP = 13, 14, 15, [16, 17], 18, 19
    mk = lambda i: f's[{MASK0+2*i}:{MASK0+2*i+1}]'
    def qk(u, sb, c, k=KB): return M32(vr(sb,16), vr(k,4), vr(QF[u],4), c)
    def pv(u, sb, h, init=False): return M32(vr(OA[u],16), vr(VB+4*h,4), vr(sb+8*h,4), '0' if init else vr(OA[u],16))
    def B_prep(L):
        o = lines(f'''v_mov_b32 v60, {sKVN}
        v_mov_b32 v61, {sOwn}
        v_cmp_gt_u32 vcc, 8, v0
        v_mul_u32_u24 v62, {TS}, v0
        s_lshl_b32 s7, {sG}, 1
        v_cndmask_b32 v60, v61, v60, vcc
        v_add_u32 v61, s7, v0
        v_cmp_le_u32 vcc, 8, v61
        v_add3_u32 v60, v60, v62, 64
        v_mov_b32 v62, 0x3f803f80
        v_cndmask_b32 v17, 0, v62, vcc
        v_cmp_gt_u32 vcc, 10, v0
        v_add_u32 v60, {2048-64}, v60
        v_mov_b32 v63, {LDS_BYTES - 2048}
        v_cndmask_b32 v16, v63, v60, vcc
        v_lshrrev_b32 v60, 5, v0
        v_and_b32 v61, 15, v0
        v_lshlrev_b32 v61, 4, v61
        v_lshl_add_u32 v60, v60, 8, v61
        v_and_b32 v63, 16, v0
        v_cmp_eq_u32 vcc, 0, v63
        v_add_u32 v60, 1024, v60
        v_add_u32 v61, 512, v60
        v_mov_b32 v62, 2048
        v_cndmask_b32 v60, v62, v60, vcc
        v_cndmask_b32 v61, v62, v61, vcc
        v_add_u32 v{vK}, {sKVN}, {vL16}
        v_add_u32 v{vVa}, {sOwn}, v60
        v_add_u32 v{vVb}, {sOwn}, v61
        v_and_b32 v60, 3, v0
        v_sub_u32 v60, {sG}, v60
        v_subrev_u32 v60, 1, v60
        v_cmp_gt_i32 vcc, 0, v60
        v_mov_b32 v61, {sG}
        v_mov_b32 v{NEG}, {f2u(-1e30)}
        v_cndmask_b32 v60, v60, v61, vcc
        v_lshlrev_b32 v{TMP}, 20, v60''')
        if L == 3: o += [f's_add_u32 {x}, {x}, 0x20000' for x in sNb + [sKVB]] + [f's_add_u32 {sFB}, {sFB}, 0x2000']
        return o
    def B_layer(L):
        it = L >> 1
        RS, MR, B = 68, 72, 76
        KK = PK
        accp = lambda p, t: 20 + 8*(t & 1) + (0 if p == 'k' else 4)
        def rds(t, RS, MR, rm): return [f'ds_read_b128 {vr(RS,4)}, {vRSa} offset:{t*64}', f'ds_read_b128 {vr(MR,4)}, {vRSa} offset:{256+t*64}', f'ds_read2_b32 {vr(rm,2)}, {vRSb} offset0:{t*16} offset1:{64+t*16}']
        def prep(t):
            o2 = ['.waitfor v[110:111]'] + [f'v_mul_f32 v{B+i}, v111, v{104+i}' for i in range(4)] + [f'v_mul_f32 v{MR+i}, v{MR+i}, v108' for i in range(4)]
            return rds(t, RS, MR, 110), o2
        def fin(t, mid=[]):
            K, V = accp('k', t), accp('v', t)
            r, p2 = prep(t + 1)
            o = [('at', 3)] + [f'v_fma_f32 v{K+i}, v{K+i}, v110, v{B+i}' for i in range(4)]
            o += [f'v_fma_f32 v{V+i}, v{V+i}, v{RS+i}, v{MR+i}' for i in range(4)]
            o += [cvt(KK+2*t, K), cvt(KK+2*t+1, K+2), cvt(VV+2*t, V), cvt(VV+2*t+1, V+2)]
            return o + mid + r + [('at', 24)] + p2
        def out(u):
            k, v = KK + 4*u, VV + 4*u
            return [sw16(k, k+2), sw16(k+1, k+3), sw32(v, v+2), sw32(v+1, v+3),
                    tok(f'buffer_store_dwordx4 {vr(k,4)}, {vL16}, {WS}, {sKVB} offen offset:{u*2048} sc1', f'kv{u}'),
                    tok(f'buffer_store_dwordx4 {vr(v,4)}, {vL16}, {WS}, {sKVB} offen offset:{u*2048+1024} sc1', f'kv{u}'),
                    f'ds_write_b128 v109, {vr(v,4)} offset:{(8+u)*TS+1024}']
        f0 = [f'ds_read_b128 v[104:107], {vCSa} offset:{768+64}'] + ([f'ds_read_b32 v108, {vCSb} offset:{768+128}'] if L == 3 else [])
        f0 += [f'v_add_u32 v109, {sOwn}, {vL16}', f's_add_u32 s99, {sFB}, {sGb}', f's_add_u32 s98, s99, 0x1000'] + flag_line(96) + wo_xor(101)
        bq = [w_dma('b', 'q', kq, kq*16384, WE, WOd, 'bq') for kq in range(4)] if L == 1 else [[], [], [], []]
        r0, p0 = prep(0)
        x0 = 0
        fl = lambda e: [f'.waitfor tok:kv{e}', tok(f'buffer_store_dwordx4 v[96:99], v100, {WS}, {"s99" if e == 0 else "s98"} offen sc1', f'fl{e}')]
        shadow = []; extra0 = []
        if L == 1:
            shadow = w_read('b', 'v', 3, 123, 0) + cs_mfma('b', 'v', 92, 12, 16, one=76)
            f0 = f0 + [cs_write('b', 'v', 92), 'v_mov_b32 v108, v92']
        fills = [f0 + [('at', 25 + x0)] + r0 + [('at', 28 + x0)] + p0, fin(0), fin(1, out(0)), fin(2)]
        w = wo_dma(WOB, 101, range(4))
        mems = [[], bq[0] + bq[1] + bq[2] + bq[3], [], []] if L == 1 else [[], w[:12], [], w[12:]]
        passes(L, 'b', fills, mems, shadow, extra0)
        stamp(L, 2)
        K, V = accp('k', 3), accp('v', 3)
        a.extend(fl(0))
        a(f's_add_u32 s6, {sFB}, {G0}\ns_add_u32 s5, s6, 0x1000\ns_sub_u32 s4, {sKVN}, {sOwn}')
        a.extend([pk('fma', K+i, K+i, ('b', 110), B+i) for i in (0, 2)] + [pk('fma', V+i, V+i, RS+i, MR+i) for i in (0, 2)])
        a.extend([cvt(KK+6, K), cvt(KK+7, K+2), cvt(VV+6, V), cvt(VV+7, V+2)])
        a.extend(out(1))
        stamp(L, 3)
        ringb = list(range(44, 76, 4)) + list(range(104, 120, 4))
        pe = (f'v{TMP}', 's6', 79, 0); pl = (f'v{TMP}', 's5', 84, 0)
        qrd = [f'ds_read_b128 v[88:91], {vCSa} offset:768'] + [f'ds_read2_b32 {vr(120+2*t,2)}, {vRSb} offset0:{t*16} offset1:{64+t*16}' for t in range(4)]
        if L == 1:
            a.extend(ones(104))
            a('.waitfor tok:bq\ns_barrier')
            for kq in range(4): a.extend(w_read('b', 'q', kq, WR, kq*16384))
            a.extend(cs_mfma('b', 'q', 92, one=104))
            a('s_barrier')
            q_pass('b', ringb, [('at', 3), cs_write('b', 'q', 92), ('at', 54)] + qrd, w, 1, {14: fl(1), 30: [poll_start(*pe)]})
        else:
            q_pass('b', ringb, [('at', 54)] + qrd, [], 1, {opt.get('pe', 42): [poll_start(*pe)], opt.get('fl1', 52): fl(1)})
        stamp(L, 4)
        def nb_dma(e):
            o = []
            for i in range(4):
                kt = 6 - 2*i + e
                o += [f's_add_u32 m0, {sKVN}, {kt*TS - e*2048}']
                o += [tok(f'buffer_load_dwordx4 {vL16}, {WS}, {sNb[i]} offen offset:{e*2048 + h*1024} sc1 lds', f'n{kt}') for h in range(2)]
            return o
        rdK = lambda kt: f'ds_read_b128 {vr(KB,4)}, v{vK} offset:{kt*TS}'
        rdV = lambda kt, h: f'ds_read_b128 {vr(VB+4*h,4)}, v{vVa if h == 0 else vVb} offset:{kt*TS}'
        a('s_barrier')
        e = [f'v_mov_b32 v92, {f2u(0.25*L2E)}'] + [f'v_cndmask_b32 v{CB+i}, v{NEG}, 0, {mk(i)}' for i in range(16)]
        e += [pk('mul', 120+2*t, 120+2*t, ('b', 92)) for t in range(4)]
        for t in range(4):
            q = QA + 4*t
            e += [pk('mul', 92+i, 88+i, ('b', 121+2*t)) for i in (0, 2)] + [pk('fma', q+i, q+i, ('b', 120+2*t), 92+i) for i in (0, 2)]
            if t == 2: e += [sw16(20, 22), sw16(21, 23)]
            e += [cvt(20+2*t, q), cvt(21+2*t, q+2)]
        e += [f'ds_write2_b32 v16, v17, v17 offset0:0 offset1:1', qk(0, SB[0], vr(CB,16), KK), sw16(24, 26), sw16(25, 27),
              f'ds_write2_b32 v16, v17, v17 offset0:2 offset1:3', 's_nop 0', qk(1, SB[1], vr(CB,16), KK+4)]
        ce = opt.get('ce', 40)
        a.extend(e[:ce])
        fstamp(L, 'qepi')
        poll_masked(*pe)
        stamp(L, 5)
        main_a = a; a2 = Asm(); a2.extend(e[ce:])
        diag(a2)
        a.extend(spread(a2.ins, nb_dma(0) + [poll_start(*pl)], 6))
        stamp(L, 6)
        attention(L, pl, nb_dma, rdK, rdV, KK)
    def diag(a):
        for u in range(2):
            a(f'v_max3_f32 v{NM[u]}, v{SB[u]}, v{SB[u]+1}, v{SB[u]+2}\nv_max3_f32 v{76+u}, v{SB[u]+3}, v{SB[u]+4}, v{SB[u]+5}')
            for i in range(6, 14, 4):
                a(f'v_max3_f32 v{NM[u]}, v{NM[u]}, v{SB[u]+i}, v{SB[u]+i+1}\nv_max3_f32 v{76+u}, v{76+u}, v{SB[u]+i+2}, v{SB[u]+i+3}')
            a(f'v_max3_f32 v{NM[u]}, v{NM[u]}, v{SB[u]+14}, v{SB[u]+15}\nv_max_f32 v{NM[u]}, v{NM[u]}, v{76+u}\nv_mov_b32 v{76+u}, v{NM[u]}')
        a(f'{sw32(NM[0], 76)}\n{sw32(NM[1], 77)}')
        for u in range(2): a(f'v_min_f32_e64 v{NM[u]}, -v{NM[u]}, -v{76+u}')
        if opt.get('fb'):
            for u in range(2): a(f'v_add_f32 v{NM[u]}, {f2u(200.0)}, v{NM[u]}')
        a.extend([pk('add', SB[u]+i, SB[u]+i, ('b', NM[u])) for u in range(2) for i in range(0, 16, 2)])
        a.extend([f'v_pk_mov_b32 {vr(CB+i,2)}, v[16:17], v[16:17] op_sel:[1,1]' for i in range(0, 16, 2)])
    def attention(L, pl, nb_dma, rdK, rdV, KK):
        ops = [(0, 8), (1, 9), (1, 8), (1, 6), (1, 4), (1, 2), (0, 6), (0, 4), (0, 2), (0, 0), (0, 7), (0, 5), (0, 3), (0, 1), (1, 7), (1, 5), (1, 3), (1, 1)]
        N = len(ops); seen = set()
        for n in range(N + 1):
            sb, pb = SB[n % 2], SB[1 - n % 2]
            far = n < N and ops[n][1] == ops[n][0]
            def E(i):
                if n == N: return []
                o = [f'v_exp_f32 v{sb+i}, v{sb+i}', f'v_exp_f32 v{sb+i+1}, v{sb+i+1}']
                return o
            def Cv(h, i, b=None, isfar=far):
                b = sb if b is None else b
                o = []
                if isfar: o += [f'v_cndmask_b32 v{b+8*h+2*i+k}, v{b+8*h+2*i+k}, 0, {mk(8*h+2*i+k)}' for k in range(2)]
                return o + [f'v_cvt_pk_bf16_f32 v{b+8*h+i}, v{b+8*h+2*i}, v{b+8*h+2*i+1}']
            C = (lambda h, i: Cv(h, i)) if n < N else (lambda h, i: [])
            lateK = n + 1 < N and n + 1 in (3, 10)
            toks = []
            for m in ([n] if n < N else []) + ([n+1] if lateK else []) + ([n+2] if n + 2 < N and n + 2 not in (3, 10) else []):
                kt = ops[m][1]
                if kt < 8 and kt not in seen: seen.add(kt); toks.append(f'tok:n{kt}')
            s = E(0)
            if n > 0: s += Cv(1, 3, pb, ops[n-1][1] == ops[n-1][0])
            s += [f'.waitfor {" ".join(toks)} {vr(KB,4)} {vr(VB,8)}']
            if n == 3: s += [f'v_add_u32 v{vVa}, s4, v{vVa}', f'v_add_u32 v{vVb}, s4, v{vVb}']
            if lateK: s += [rdK(ops[n+1][1])]
            if n > 0: s += [pv(ops[n-1][0], pb, 0, init=(n-1 < 2))]
            if n < N: s += [rdV(ops[n][1], 0)]
            s += E(2) + C(0, 0) + E(4)
            if n > 0: s += [pv(ops[n-1][0], pb, 1)]
            if n < N: s += [rdV(ops[n][1], 1)]
            s += C(0, 1) + E(6) + C(0, 2)
            if 2 <= n + 1 < N:
                s += [qk(ops[n+1][0], pb, vr(CB,16), KK if n + 1 == 2 else KB)]
            if n + 2 < N and n + 2 > 2 and n + 2 not in (3, 10): s += [rdK(ops[n+2][1])]
            s += E(8) + C(0, 3) + E(10) + C(1, 0) + E(12)
            if n + 2 < N and n + 1 >= 2 and ops[n+2][0] != ops[n+1][0]:
                s += [f'v_mov_b32 v{CB+i}, v{NM[ops[n+2][0]]}' for i in range(16)]
            s += C(1, 1) + E(14) + C(1, 2)
            LP = opt.get('lp', 3)
            if n in (LP + 1, LP + 2):
                d = nb_dma(1); s = spread(s, d[:6] if n == LP + 1 else d[6:], 8)
            if L == 1 and n == 12: s = s + touch2(85)
            if L == 3 and 6 <= n < 6 + opt.get('dirty', 0): s = s + [f's_add_u32 s7, {sKVB}, {0x20000 + 0x20000*((n-6)>>2)}', f'buffer_store_dwordx4 v[20:23], {vL16}, {WS}, s7 offen offset:{((n-6)&3)*1024} {opt.get("dm", "")}']
            a.extend(s)
            fstamp(L, f'op{n}')
            if n == LP:
                poll_masked(*pl, drain=True)
                fstamp(L, 'latepoll')
        a(f's_add_u32 s4, {sGb}, {XO(L)}\ns_add_u32 s5, s4, 32768\ns_mov_b32 {sL}, {L}')
        o = OA[0]
        a(f'v_maximum3_f32 v76, abs(v{o}), abs(v{o+1}), v{o+8}')
        for i in range(2, 8, 2): a(f'v_maximum3_f32 v76, abs(v{o+i}), abs(v{o+i+1}), v76')
        o = OA[1]
        for i in range(0, 8, 2): a(f'v_maximum3_f32 v76, abs(v{o+i}), abs(v{o+i+1}), v76')
        a(f'v_maximum3_f32 v76, v{o+8}, v76, v76')
        a(f'v_cmp_nlt_f32 vcc, v76, abs(v{NEG})\ns_cbranch_vccnz L_fallback\nL_fbdone{L}:')

    def common(L):
        stamp(L, 7)
        for u in range(2): a(f'v_rcp_f32 v{OA[u]+8}, v{OA[u]+8}')
        a(f's_cmp_eq_u32 {sFast}, 0')
        for u in range(2):
            o = OA[u]
            a.extend([pk('mul', o+i, o+i, ('b', o+8)) for i in range(0, 8, 2)] + [cvt(o+10+i, o+2*i) for i in range(4)])
        fast_stores([tok(f'buffer_store_dwordx4 {vr(OA[u]+10,4)}, {vXo}, {WS}, {"s4" if u == 0 else "s5"} offen', 'ost') for u in range(2)], wt=(L == 0 or not reuse or (L == 3 and opt.get('wto'))) and opt.get('wt', 1))
        if L == 0:
            a(f'v_mov_b32 v13, v122\nv_mov_b32 v253, v123\nv_mov_b32 v254, v{WE}\nv_mov_b32 v255, v{WOd}')
            for i, p, kq in B2[W2:]: a.extend(w_dma('b', p, kq, T + i*16384, 254, 255, 'b3'))
        a(f's_lshl_b32 s6, {sW}, 11\ns_add_u32 s6, s6, {RES}\nv_add_u32 v14, s6, {vL16}')
        a('ds_read_b128 v[60:63], v14\nds_read_b128 v[64:67], v14 offset:1024')
        a(f'v_mov_b32 v68, {sTag}\nv_mov_b32 v69, {OOB}\nv_cmp_eq_u32 vcc, 0, v0')
        a.extend([f'v_xor_b32 v{124+i}, {32*(i+1)}, {vWoR}' for i in range(3)])
        a(f'v_cndmask_b32 v15, v69, v0, vcc\ns_add_u32 s5, {sXoLd}, {XO(L)}')
        a.extend(ones())
        if L == 3 and opt.get('clx'):
            a(f's_add_u32 s7, {sXxSt}, {XX(2)}\nbuffer_store_dwordx4 v[60:63], {vXs}, {WS}, s7 offen sc1\nbuffer_store_dwordx4 v[64:67], {vXs}, {WS}, s7 offen offset:1024 sc1')
        a.extend([sw16(60, 62), sw16(61, 63), sw16(64, 66), sw16(65, 67)])
        for i in range(8): a(f'v_lshlrev_b32 v{20+2*i}, 16, v{60+i}\nv_and_b32 v{21+2*i}, 0xffff0000, v{60+i}')
        a(f's_cmp_eq_u32 {sFast}, 0\n.waitfor tok:ost\ns_barrier')
        fast_stores([f'buffer_store_dword v68, v15, {WS}, {sFlOwn} offen offset:{64*L}'])
        stamp(L, 8)
        NW, NO, Wr, Or = 12, 10, 76, 36
        def rdw(n):
            s, t = n >> 2, n & 3
            ad = vWoR if t == 0 else f'v{123+t}'
            return [f'ds_read_b64_tr_b16 {vr(Wr + 4*(n % NW) + 2*hi, 2)}, {ad} offset:{WO + s*4096 + hi*256}' for hi in range(2)]
        def ldo(s):
            o = [f's_add_u32 s5, s5, 4096'] if s % 4 == 0 and s else []
            return o + [f'buffer_load_dwordx4 {vr(Or + 4*(s % NO), 4)}, {vL16}, {WS}, s5 offen offset:{(s%4)*1024} sc1']
        pre = [x for n in range(NW) for x in rdw(n)]
        a.extend(pre)
        a(poll_start(vPG, sFl, 127, 64*L))
        if L == 0:
            a.extend(w_read('b', 'k', 0, 253, 0))
            for i, p, kq in B2[:W2]: a.extend(w_read('b', p, kq, 13, i*16384))
        poll_finish(vPG, sFl, 127, 64*L)
        stamp(L, 9)
        NU = opt.get('nu', 8)
        for s in range(NU):
            a.extend(ldo(s))
            if opt.get('fair', 1) and s % 2 == 1 and s < NU - 1: a('s_barrier')
        fstamp(L, 'oissue')
        if L == 0:
            assert opt.get('fair', 1)
            for i, p, kq in B2[W2:]: a.extend(w_read('b', p, kq, 13, i*16384))
        if L == 0: st0 = w_dma('b', 'v', 1, T, 254, 255, 'b4') + w_dma('b', 'v', 2, T + 16384, 254, 255, 'b4')
        fin3 = [f'v_and_b32 v70, 15, v0\nv_lshrrev_b32 v71, 8, {vXs}', 'v_and_b32 v72, 7, v0\nv_xor_b32 v71, v71, v72', f'v_lshlrev_b32 v71, 4, v71\nv_lshl_add_u32 v70, v70, 7, v71',
                f'v_sub_u32 v71, v14, {vL16}\nv_add_u32 v70, v70, v71', 'v_xor_b32 v71, 64, v70\nv_lshrrev_b32 v73, 3, v0', 'v_xor_b32 v72, v72, v73\nv_lshlrev_b32 v72, 4, v72',
                f'v_lshl_add_u32 v72, v73, 10, v72\ns_add_u32 s3, {sRow}, 8192']
        for n in range(64):
            s, t = n >> 2, n & 3
            if t == 0: a(f'.waitfor {vr(Or + 4*(s % NO), 4)} {vr(Wr + 4*((n+3) % NW), 4)}')
            d = vr(20+4*t, 4)
            a(M16(d, vr(Wr + 4*(n % NW), 4), vr(Or + 4*(s % NO), 4), d))
            if n + NW < 64: a.extend(rdw(n + NW))
            if t == 3 and s + NU < 16: a.extend(ldo(s + NU))
            if L == 0 and n == 15: a('s_barrier')
            if L == 0 and s >= 16 - NU and t == 1:
                while st0:
                    y = st0.pop(0); a.extend([y])
                    if isinstance(y, Ins): break
            if t == 3 and s in (0, 3, 7, 11, 15): fstamp(L, f'wo{s}')
            if n == 56 and L < 3:
                a(f's_add_u32 s4, {sXxSt}, {XX(L)}')
            if n == 59 and L < 3: a(f's_add_u32 s3, {sSt}, {ST(L)}\nv_mov_b32 v70, 0')
            if n == 60 and L < 3: a('v_mov_b32 v71, 0\nv_mov_b32 v72, 0')
            if n == 62 and L < 3: a(f'v_mov_b32 v73, 0\ns_cmp_eq_u32 {sFast}, 0')
            if L == 3 and 54 <= n < 54 + len(fin3): a(fin3[n - 54])
        assert L or not st0
        a.extend([cvt(36+i, 20+2*i) for i in range(8)])
        a.extend([sw16(36, 38), sw16(37, 39), sw16(40, 42), sw16(41, 43)])
        if L == 3:
            om = opt.get('om', 'sc1')
            a('ds_write_b128 v70, v[36:39]\nds_write_b128 v71, v[40:43]\nds_read_b128 v[44:47], v14\nds_read_b128 v[48:51], v14 offset:1024')
            a(f'buffer_store_dwordx4 v[44:47], v72, {OUT}, {sRow} offen {om}\nbuffer_store_dwordx4 v[48:51], v72, {OUT}, s3 offen {om}')
            stamp(L, 10)
            return
        fast_stores([f'buffer_store_dwordx4 {vr(36+4*i,4)}, {vXs}, {WS}, s4 offen offset:{i*1024}' for i in range(2)], wt=(L == 0 or not reuse or (L == 2 and opt.get('wtx'))) and opt.get('wt', 1))
        for r in range(8):
            a(f'v_dot2c_f32_bf16 v{70 + (r&1)}, v{36+r}, v{ONES}\nv_dot2c_f32_bf16 v{72 + (r&1)}, v{36+r}, v{36+r}')
        a(f'v_and_b32 v48, 15, v0\nv_lshlrev_b32 v48, 4, v48\nv_lshrrev_b32 v49, 5, v0')
        a(f'v_add_f32 v70, v70, v71\nv_add_f32 v72, v72, v73\nv_lshl_add_u32 v48, v49, 2, v48\nv_and_b32 v49, 16, v0')
        a(f'{sw32(70, 72)}\nv_add_f32 v70, v70, v72\nv_mov_b32 v71, v70\nv_lshl_add_u32 v48, v49, 22, v48\nv_mov_b32 v68, {sTag}\n{sw16(70, 71)}\nv_add_f32 v70, v70, v71')
        fast_stores([tok(f'buffer_store_dword v70, v48, {WS}, s3 offen', 'xst')])
        stamp(L, 10)
        if L == 0:
            a.extend(w_dma('b', 'v', 3, S, 254, 255, 'b5'))
        a('ds_write_b128 v14, v[36:39]\nds_write_b128 v14, v[40:43] offset:1024')
        a.extend(entry_prep(L + 1))
        a(f's_cmp_eq_u32 {sFast}, 0\n.waitfor tok:xst\ns_barrier')
        fast_stores([f'buffer_store_dword v68, v15, {WS}, {sFlOwn} offen offset:{64*L+32}'])
        stamp(L, 11)
        px = (vPG, sFl, 127, 64*L+32)
        if L == 0:
            a.extend(w_read('b', 'v', 1, 13, 0) + w_read('b', 'v', 2, 13, 16384) + ones(76))
            c1, _ = place(cs_mfma('b', 'k', 88, one=76) + cs_mfma('b', 'v', 92, 0, 12, one=76), [poll_start(*px)], 10, 4)
            a.extend(weave(c1, w_addr(WE, WOd, WR, 100) + [f'v_add_u32 v123, {S}, v{WR}'] + B_prep(1)))
            a(cs_write('b', 'k', 88))
        else:
            pre = consts() if L == 1 else B_prep(3)
            a.extend(pre[:opt.get('pd', 24)]); a(poll_start(*px)); a.extend(pre[opt.get('pd', 24):])
        poll_finish(*px)
        if L == 0: a('s_barrier')
        stamp(L, 12)

    A_tail(0); common(0)
    B_layer(1); common(1)
    A_passes(2); A_tail(2); common(2)
    B_layer(3); common(3)
    a(f's_or_b32 s3, s2, {sW}\ns_cmp_eq_u32 s3, 0\ns_cselect_b32 s3, 0, {OOB}\nv_mov_b32 v52, {sEp}\nbuffer_store_dword v52, v15, {WS}, s3 offen')
    if profile:
        a('s_waitcnt vmcnt(0)')
        stamp(3, 11)
        a(f's_lshl_b32 s3, s2, 2\ns_add_u32 s3, s3, {sW}\ns_lshl_b32 s3, s3, 8\ns_add_u32 s3, s3, {STAMP0}\nv_lshlrev_b32 v45, 2, v0')
        a(f'buffer_store_dword {vStamp}, v45, {WS}, s3 offen')
        if opt.get('amp'):
            i0, i1, wg = opt['amp']
            a(f's_cmp_lg_u32 s2, {wg}\ns_cbranch_scc1 L_end\ns_cmp_lg_u32 {sW}, 0\ns_cbranch_scc1 L_end')
            a(f'v_readlane_b32 s4, {vStamp}, {i0}\nv_readlane_b32 s5, {vStamp}, {i1}\nv_readlane_b32 s6, {vStamp}, {59 if focus is None else len(names)-1}\ns_nop 3\ns_sub_u32 s5, s5, s4\ns_lshl_b32 s5, s5, 3\ns_min_u32 s5, s5, 100000')
            a('L_amp:\ns_memrealtime s[96:97]\ns_waitcnt lgkmcnt(0)\ns_sub_u32 s7, s96, s6\ns_cmp_lt_u32 s7, s5\ns_cbranch_scc1 L_amp')
    a('L_end:\ns_endpgm\nL_codeend:')
    a('.resetwait')
    a.extend(ool.ins)

    a('L_fallback:\n.resetwait\ns_nop 15')
    for u in range(2):
        a(f's_add_u32 m0, {sOwn}, {(8+u)*TS - u*2048}\ns_nop 0\nbuffer_load_dwordx4 {vL16}, {WS}, {sKVB} offen offset:{u*2048} sc1 lds')
    a('s_waitcnt vmcnt(0)')
    a(f's_lshl_b32 s3, {sG}, 1\ns_sub_i32 s96, 8, s3\ns_max_i32 s96, s96, 0\ns_sub_u32 s97, {sOwn}, {sKVN}')
    for u in range(2):
        sb = SB[0]
        def tile_addr():
            a(f's_mul_i32 s3, s98, {TS}\ns_cmp_ge_u32 s98, 8\ns_cselect_b32 s7, s97, 0\ns_add_u32 s3, s3, s7')
            a(f'v_add_u32 v112, s3, v{vK}\nv_add_u32 v113, s3, v{vVa}\nv_add_u32 v114, s3, v{vVb}')
        def scores():
            l1, l2 = lab('m'), lab('m')
            a(f'ds_read_b128 {vr(KB,4)}, v112\ns_waitcnt lgkmcnt(0)')
            a(qk(u, sb, '0'))
            a('s_nop 15')
            a(f's_cmp_lg_u32 s98, {8+u}\ns_cbranch_scc1 {l1}')
            for i in range(16): a(f'v_cndmask_b32 v{sb+i}, v{NEG}, v{sb+i}, {mk(i)}')
            a(f'{l1}:\ns_cmp_lg_u32 s98, {u}\ns_cbranch_scc1 {l2}')
            for i in range(16): a(f'v_cndmask_b32 v{sb+i}, v{sb+i}, v{NEG}, {mk(i)}')
            a(f'{l2}:')
        lp = lab('fb1')
        a(f's_max_i32 s98, s96, {u}\nv_mov_b32 v{NM[u]}, v{NEG}')
        a(f'{lp}:')
        tile_addr(); scores()
        for i in range(8): a(f'v_max3_f32 v{NM[u]}, v{NM[u]}, v{sb+2*i}, v{sb+1+2*i}')
        a(f's_add_u32 s98, s98, 1\ns_cmp_le_u32 s98, {8+u}\ns_cbranch_scc1 {lp}')
        a(f'v_mov_b32 v115, v{NM[u]}\n{sw32(NM[u], 115)}\nv_max_f32 v{NM[u]}, v{NM[u]}, v115')
        for i in range(16): a(f'v_mov_b32 v{OA[u]+i}, 0')
        lp = lab('fb2')
        a(f's_max_i32 s98, s96, {u}')
        a(f'{lp}:')
        tile_addr(); scores()
        a(f'ds_read_b128 {vr(VB,4)}, v113\nds_read_b128 {vr(VB+4,4)}, v114')
        for i in range(16): a(f'v_sub_f32 v{sb+i}, v{sb+i}, v{NM[u]}')
        a('s_waitcnt lgkmcnt(0)')
        for h in range(2):
            for i in range(8): a(f'v_exp_f32 v{sb+8*h+i}, v{sb+8*h+i}')
            for i in range(4): a(f'v_cvt_pk_bf16_f32 v{sb+8*h+i}, v{sb+8*h+2*i}, v{sb+8*h+2*i+1}')
            a(pv(u, sb, h))
        a('s_nop 15')
        a(f's_add_u32 s98, s98, 1\ns_cmp_le_u32 s98, {8+u}\ns_cbranch_scc1 {lp}')
    a(f's_cmp_eq_u32 {sL}, 1\ns_cbranch_scc1 L_fbdone1\ns_branch L_fbdone3')

    a.auto_wait()
    nn = a.fix_hazards()
    for b in a.check_branch_hazards(): print('BRANCH HAZARD', b, file=sys.stderr)
    hdr = f'; fused persistent kernel: 256 workgroups (one per CU), generated by a script\n; @launch grid=(256,1,1) block=(256,1,1) lds={LDS_BYTES}\n'
    tail = f'''.section .rodata,"a"
.p2align 6
.amdhsa_kernel {KNAME}
  .amdhsa_next_free_vgpr 512
  .amdhsa_next_free_sgpr 102
  .amdhsa_accum_offset 256
  .amdhsa_group_segment_fixed_size 0
  .amdhsa_kernarg_size 72
  .amdhsa_user_sgpr_count 2
  .amdhsa_user_sgpr_kernarg_segment_ptr 1
  .amdhsa_system_sgpr_workgroup_id_x 1
.end_amdhsa_kernel
'''
    print('instructions', sum(1 for I in a.ins if I.kind not in ('label', 'dir')), 'nop states added', nn, file=sys.stderr)
    if focus is not None: hdr += '; names ' + ' '.join(names) + '\n'
    return hdr + a.text() + tail

if __name__ == '__main__':
    opt = {}
    for x in sys.argv[2:]:
        k, _, v = x.partition('=')
        opt[k] = eval(v) if v else 1
    open(sys.argv[1], 'w').write(gen(opt))
```

```python
import sys, struct
from asmlib import Asm, Ins, vr, weave, place

KNAME = 'interleave_layers__linear_attn_block__sliding_block__prompt_kernel'
WO = 0; T = 65536; S = 131072
TS = 2064
KVN = T
OWN = S + 512
STAT = S + 17024
CS = S + 17536
RES = S + 19072
LDS_BYTES = 163840
H2 = 0x10000; H1 = 0x100000
G0 = 0x300000
oXO = 0; oXX = 0x40000; oST = 0x70000; oFL = 0x78000; oFB = 0x7a000; oKVB = 0x80000
WS_BYTES = 0x2300000
STAMP0 = 0x2300000
OOB = 0x4000000
X0, WA, WOA, WB, WOB, OUT, WS = 's[8:11]', 's[12:15]', 's[16:19]', 's[20:23]', 's[24:27]', 's[28:31]', 's[32:35]'
sG, sJ, sW, sTag, sL, sGb, sEp, sCnt = ['s%d' % i for i in range(36, 44)]
sW14, sWsrc, sW12, sWoSrc, sXoLd, sXxSt, sRow, sFl, sFlOwn, sFast, sH1, sH2, sKVB, sFB, sKVN, sOwn = ['s%d' % i for i in range(44, 60)]
sNb = ['s60', 's61', 's62', 's63']
sSt = 's1'
MASK0 = 64
vLane, vL16, vT, vRSa, vRSb, vCSa, vCSb, vXo, vPG, vWoD, vWoR, vXs, vStamp = ['v%d' % i for i in range(13)]
NE, E6, L2Er, ONES = 13, 14, 15, 16
L2E = 1.4426950408889634
def Wreg(mat, part, s):
    base = {('a', 'k'): ('a', 0), ('a', 'v'): ('a', 64), ('a', 'q'): ('a', 128), ('b', 'q'): ('a', 192), ('b', 'k'): ('v', 128), ('b', 'v'): ('v', 192)}[(mat, part)]
    return base[0], base[1] + 4 * s
def Wfrag(mat, part, s):
    k, b = Wreg(mat, part, s); return vr(b, 4, k)
PARTOFF = {'q': 0, 'k': 1024, 'v': 2048}
PARTI = {'q': 0, 'k': 1, 'v': 2}
def f2u(x): return '0x%08x' % struct.unpack('<I', struct.pack('<f', x))[0]
def M16(d, A, B, C): return f'v_mfma_f32_16x16x32_bf16 {d}, {A}, {B}, {C}'
def M32(d, A, B, C): return f'v_mfma_f32_32x32x16_bf16 {d}, {A}, {B}, {C}'
def pk(op, dst, *srcs):
    ops = []; lo = []; hi = []
    for s in srcs:
        if isinstance(s, tuple):
            n = s[1]; ops.append(vr(n & ~1, 2)); lo.append(n & 1); hi.append(n & 1)
        else:
            assert s % 2 == 0; ops.append(vr(s, 2)); lo.append(0); hi.append(1)
    assert dst % 2 == 0
    f = lambda l: '[' + ','.join(map(str, l)) + ']'
    return f'v_pk_{op}_f32 {vr(dst,2)}, ' + ', '.join(ops) + f' op_sel:{f(lo)} op_sel_hi:{f(hi)}'
def cvt(d, s): return f'v_cvt_pk_bf16_f32 v{d}, v{s}, v{s+1}'
def sw16(x, y): return f'v_permlane16_swap_b32 v{x}, v{y}'
def sw32(x, y): return f'v_permlane32_swap_b32 v{x}, v{y}'
def tok(text, name): return Ins(text, 'tok:' + name)
def lines(s): return [x.strip() for x in s.split('\n') if x.strip()]

def gen(opt):
    profile = opt.get('profile'); reuse = opt.get('reuse', 1)
    a = Asm(); ool = Asm()
    uid = [0]
    def lab(n):
        uid[0] += 1; return f'L_{n}_{uid[0]}'
    focus = opt.get('focus'); names = ['start']
    def stamp(L, i):
        if not profile: return
        if focus is not None:
            if L == focus or i == 12 or (L, i) == (3, 11) or (focus == 9 and i in (3, 7)): fstamp(focus, f'S{L}.{i}')
            return
        a('s_memtime s[96:97]' if profile == 'cyc' else 's_memrealtime s[96:97]')
        a('s_waitcnt lgkmcnt(0)')
        a(f'v_writelane_b32 {vStamp}, s96, {16*L+i}')
    def fstamp(L, name):
        if focus != L: return
        a('s_memtime s[96:97]' if profile == 'cyc' else 's_memrealtime s[96:97]')
        a('s_waitcnt lgkmcnt(0)')
        a(f'v_writelane_b32 {vStamp}, s96, {len(names)}')
        names.append(name)
        assert len(names) <= 64
    def poll_start(vaddr, sbase, vtmp, off=0, n=1):
        return f'buffer_load_dword{"" if n == 1 else "x4"} {vr(vtmp, n)}, {vaddr}, {WS}, {sbase} offen offset:{off} sc1'
    def poll_finish(vaddr, sbase, vtmp, off=0, cmp=None, n=1, drain=True):
        r, c = lab('retry'), lab('chk')
        a(f's_branch {c}\n{r}:')
        a(poll_start(vaddr, sbase, vtmp, off, n), 'nocount')
        a(f's_add_u32 {sCnt}, {sCnt}, 1\ns_cmp_ge_u32 {sCnt}, 0x20000\ns_cbranch_scc1 L_end')
        if drain: a(f'{c}:\ns_waitcnt vmcnt(0)')
        else:
            a('s_waitcnt vmcnt(0)', 'nocount')
            a(f'{c}:\n.waitfor {vr(vtmp, n)}')
        a.extend(cmp or [f'v_cmp_ne_u32 vcc, {sTag}, v{vtmp + n - 1}'])
        a(f's_cbranch_vccnz {r}')
    def poll_masked(vaddr, sbase, vtmp, off=0, n=1, drain=False):
        r, c = lab('retry'), lab('chk')
        a(f's_branch {c}\n{r}:')
        a(poll_start(vaddr, sbase, vtmp, off, n), 'nocount')
        a(f's_add_u32 {sCnt}, {sCnt}, 1\ns_cmp_ge_u32 {sCnt}, 0x20000\ns_cbranch_scc1 L_end')
        if drain: a(f'{c}:\ns_waitcnt vmcnt(0)')
        else:
            a('s_waitcnt vmcnt(0)', 'nocount')
            a(f'{c}:\n.waitfor {vr(vtmp, n)}')
        a(f'v_cmp_ne_u32 vcc, {sTag}, v{vtmp + n - 1}\ns_and_b64 exec, exec, vcc\ns_cbranch_scc1 {r}\ns_mov_b64 exec, -1')
    def spread(alu, mem, every):
        o = []; mem = list(mem); k = 0
        isv = lambda y: (y.text if isinstance(y, Ins) else y).startswith('buffer_')
        for x in alu:
            if k % every == 0:
                while mem and not isv(mem[0]): o.append(mem.pop(0))
            if k % every == 1 and mem: o.append(mem.pop(0))
            o.append(x); k += 1
        return o + mem
    def fast_stores(stores, wt=False):
        if wt:
            for x in stores: a.ins.append(Ins(x.text + ' sc1', x.tag) if isinstance(x, Ins) else Ins(x + ' sc1'))
            return
        s, b = lab('slow'), lab('back')
        a(f's_cbranch_scc1 {s}')
        for x in stores: a.ins.append(x if isinstance(x, Ins) else Ins(x))
        a(f'{b}:')
        ool(f'{s}:')
        for x in stores: ool((x.text if isinstance(x, Ins) else x) + ' sc1')
        ool(f's_branch {b}')
    XO = lambda L: oXO + (0 if reuse else L * 0x10000)
    XX = lambda L: (0 if reuse else L * 0x10000)
    ST = lambda L: oST + (0 if reuse else L * 0x1000)

    def w_addr(E, O, R, t):
        o = lines(f'''v_lshrrev_b32 v{t}, 3, v0
        v_and_b32 v{t+1}, 7, v0
        v_lshrrev_b32 v{t+2}, 3, v0
        v_and_b32 v{t+2}, 2, v{t+2}
        v_xor_b32 v{t+1}, v{t+1}, v{t+2}
        v_mul_u32_u24 v{t}, 3072, v{t}
        v_lshl_add_u32 v{E}, v{t+1}, 4, v{t}
        v_xor_b32 v{O}, 64, v{E}
        v_add_u32 v{O}, 24576, v{O}''')
        o += lines(f'''v_lshrrev_b32 v{t}, 4, v0
        v_bfe_u32 v{t+1}, v0, 2, 2
        v_lshl_add_u32 v{t}, v{t}, 3, v{t+1}
        v_and_b32 v{t+1}, 3, v0
        v_lshlrev_b32 v{t+1}, 3, v{t+1}
        v_lshl_add_u32 v{t}, v{t}, 7, v{t+1}
        v_bfe_u32 v{t+1}, v0, 3, 2
        v_xor_b32 v{t+1}, {sW}, v{t+1}
        v_lshl_add_u32 v{R}, v{t+1}, 5, v{t}''')
        return o
    def w_dma(m, p, kq, slot, E, O, name):
        o = []
        for i in range(4):
            o.append(f's_add_u32 m0, {sW12}, {slot + i*1024}')
            if i % 2 == 0: o.append(f's_add_u32 s7, {sWsrc}, {(128*kq + 8*i)*3072 + PARTOFF[p]}')
            o.append(tok(f'buffer_load_dwordx4 v{E if i % 2 == 0 else O}, {WA if m == "a" else WB}, s7 offen lds', name))
        return o
    def w_read(m, p, kq, R, off):
        o = []
        for s2 in range(4):
            k, b = Wreg(m, p, 4*kq + s2)
            for hi in range(2): o.append(f'ds_read_b64_tr_b16 {vr(b+2*hi, 2, k)}, v{R} offset:{off + s2*4096 + hi*512}')
        return o
    def cs_mfma(m, p, d, lo=0, hi=16, one=ONES):
        return [M16(vr(d,4), vr(one,4), Wfrag(m,p,s), '0' if s == 0 else vr(d,4)) for s in range(lo, hi)]
    def cs_write(m, p, d): return f'ds_write_b32 {vCSb}, v{d} offset:{(0 if m == "a" else 768) + PARTI[p]*64}'
    def consts(): return [f'v_mov_b32 v{E6}, {f2u(1e-6)}', f'v_mov_b32 v{L2Er}, {f2u(L2E)}', f'v_mov_b32 v{NE}, {f2u(-1e-6*L2E)}'] + ones()
    def ones(b=ONES): return [f'v_mov_b32 v{b+i}, 0x3f803f80' for i in range(4)]
    def stats_fin(vs, vq, vaddr, t1):
        return lines(f'''v_mul_f32 v{vs}, {f2u(-1/512)}, v{vs}
        v_mul_f32 v{vq}, {f2u(1/512)}, v{vq}
        v_fma_f32 v{vq}, -v{vs}, v{vs}, v{vq}
        v_max_f32 v{vq}, 0, v{vq}
        v_add_f32 v{vq}, {f2u(1e-5)}, v{vq}
        v_rsq_f32 v{t1}, v{vq}
        v_mul_f32 v{vs}, v{vs}, v{t1}''') + [tok(f'ds_write2st64_b32 v{vaddr}, v{t1}, v{vs} offset0:0 offset1:1', 'stw')]

    a(f'.amdgcn_target "amdgcn-amd-amdhsa--gfx950"\n.text\n.globl {KNAME}\n.p2align 8\n.type {KNAME},@function\n{KNAME}:')
    if profile: a('s_memtime s[100:101]' if profile == 'cyc' else 's_memrealtime s[100:101]')
    a('s_cmp_ge_u32 s2, 256\ns_cbranch_scc1 L_end')
    srds = ((8, 0, 0x200000), (12, 8, 0x180000), (32, 64, WS_BYTES + (0x40000 if profile else 0)), (16, 16, 0x80000), (20, 32, 0x180000), (24, 40, 0x80000), (28, 48, 0x200000))
    for b_, o_, n_ in srds: a(f's_load_dwordx2 s[{b_}:{b_+1}], s[0:1], {o_}')
    a('s_lshr_b32 s4, s2, 3')
    if opt.get('codepf', 1):
        a('s_getpc_b64 s[82:83]\nL_pc0:')
        a('v_lshrrev_b32 v1, 6, v0\nv_lshl_add_u32 v1, s4, 2, v1\nv_and_b32 v2, 3, v0\nv_lshl_add_u32 v1, v1, 2, v2\nv_lshlrev_b32 v1, 7, v1')
        a('v_min_u32 v1, L_codeend-L_pc0-4, v1')
        a('global_load_dword v127, v1, s[82:83]')
    a(f's_and_b32 s3, s2, 7\ns_lshr_b32 s5, s4, 3\ns_lshl_b32 s3, s3, 2\ns_add_u32 {sG}, s3, s5\ns_and_b32 {sJ}, s4, 7')
    a(f'v_lshrrev_b32 v2, 6, v0\nv_and_b32 v0, 63, v0\nv_readfirstlane_b32 {sW}, v2')
    if profile: a(f'v_mov_b32 {vStamp}, 0')
    a(f's_lshl_b32 s84, s4, 2\ns_add_u32 s84, s84, {sW}\ns_lshl_b32 s85, s2, 2\ns_add_u32 s85, s85, {sW}')
    a(f'v_lshlrev_b32 v26, 7, v0\nv_subrev_u32 v27, 16, v0\nv_lshlrev_b32 v28, 10, v27\nv_mov_b32 v29, {OOB}')
    def pf_addr(d, n, cs, xs):
        return lines(f'''s_mul_i32 s86, s85, {cs}
        s_mul_i32 s87, s84, {xs}
        s_add_u32 s87, s87, 384
        v_add_u32 v30, s86, v26
        v_cmp_gt_u32 vcc, {n}, v0
        v_add_u32 v31, s87, v28
        s_nop 0
        v_cndmask_b32 v{d}, v29, v30, vcc
        v_cmp_gt_u32 vcc, {n}, v27
        s_nop 1
        v_cndmask_b32 v{d}, v{d}, v31, vcc''')
    a.extend(pf_addr(255, 12, 1536, 12288))
    a(f's_and_b32 s88, s2, 7\ns_lshl_b32 s88, s88, 18\ns_lshl_b32 s86, s84, 11\ns_add_u32 s88, s88, s86\nv_cmp_gt_u32 vcc, 16, v0\nv_cndmask_b32 v32, v29, v26, vcc')
    for b_, o_, n_ in srds: a(f's_mov_b32 s{b_+2}, {hex(n_)}\ns_mov_b32 s{b_+3}, 0x20000')
    a.extend(pf_addr(254, 4, 512, 4096))
    if opt.get('noj3'):
        a('v_cmp_gt_u32 vcc, 16, v0\nv_cndmask_b32 v250, v29, v255, vcc\nv_cndmask_b32 v254, v29, v254, vcc')
    a('s_waitcnt lgkmcnt(0)')
    if opt.get('pf', 1): a(f'buffer_load_dword v127, v32, {X0}, s88 offen\nbuffer_load_dword v127, v255, {WA}, 0 offen')
    tlb = opt.get('tlb', 3)
    if tlb & 1:
        a(f'v_add_u32 v33, {sG}, v0\nv_subrev_u32 v33, 4, v33\nv_max_i32 v33, 3, v33\nv_writelane_b32 v33, 0, 0\nv_writelane_b32 v33, 3, 1\nv_writelane_b32 v33, 3, 2\nv_cmp_gt_u32 vcc, 8, v0\nv_lshlrev_b32 v33, 20, v33\nv_add_u32 v33, 0xfff80, v33')
        a(f'v_cndmask_b32 v33, v29, v33, vcc\nbuffer_load_dword v127, v33, {WS}, 0 offen')
    if tlb & 2:
        a('v_cmp_eq_u32 vcc, 0, v0\nv_cndmask_b32 v34, v29, v0, vcc')
        for r_ in (WB, WOA, WOB): a(f'buffer_load_dword v127, v34, {r_}, 0 offen')
    if profile: a(f'v_writelane_b32 {vStamp}, s100, 0')
    stamp(0, 1)
    a(f's_load_dword {sEp}, s[32:33], 0')
    a(f'v_lshlrev_b32 {vL16}, 4, v0')
    a('v_lshrrev_b32 v22, 2, v0\nv_and_b32 v23, 3, v0\nv_lshrrev_b32 v24, 4, v0\nv_and_b32 v24, 2, v24\nv_xor_b32 v23, v23, v24\nv_lshlrev_b32 v22, 10, v22\nv_lshl_add_u32 v118, v23, 4, v22')
    WE, WOd, WR = 124, 125, 126
    wa = w_addr(WE, WOd, WR, 24)
    a.extend(wa[:9])
    a(f's_lshl_b32 {sW14}, {sW}, 14\ns_lshl_b32 {sW12}, {sW}, 12\ns_lshl_b32 s6, {sJ}, 7')
    a(f's_mul_i32 {sWsrc}, {sW}, {32*3072}\ns_add_u32 {sWsrc}, {sWsrc}, s6')
    a(f's_lshl_b32 s3, {sG}, 16\ns_add_u32 s3, s3, {sW14}\ns_add_u32 {sRow}, s3, s6\ns_add_u32 s5, {sW14}, {T}')
    def x_dma(kq):
        o = []
        for s in range(4*kq, 4*kq+4):
            o += [f's_add_u32 m0, s5, {s*1024 - s*64}', tok(f'buffer_load_dwordx4 v118, {X0}, s3 offen offset:{s*64} lds', f'x{kq}')]
        return o
    ring = [('a','k',0),('a','v',0),('a','k',1),('a','v',1),('a','k',2),('a','v',2),('a','k',3),('a','v',3),('a','q',0),('a','q',1),('a','q',2),('a','q',3)]
    slot = lambda n: [0, 16384, 32768, 49152, S][n % 5]
    rd = lambda n: w_dma(*ring[n], slot(n), WE, WOd, f'r{n}')
    up = [x_dma(0), x_dma(1), x_dma(2), x_dma(3), rd(0), rd(1)]
    nf = opt.get('nf', 0)
    for c in up[:nf]: a.extend(c)
    a.extend(wa[9:])
    a(f'v_add_u32 v123, {S}, v{WR}')
    a('v_and_b32 v20, 15, v0\nv_lshrrev_b32 v21, 4, v0')
    a(f'v_lshlrev_b32 {vRSa}, 4, v21\nv_lshlrev_b32 {vRSb}, 2, v20')
    a(f's_mul_i32 s6, {sW}, 192\ns_add_u32 s6, s6, {CS}')
    a(f'v_add_u32 {vCSa}, s6, {vRSa}\nv_add_u32 {vCSb}, s6, {vRSb}\nv_add_u32 {vRSa}, {STAT}, {vRSa}\nv_add_u32 {vRSb}, {STAT}, {vRSb}')
    a(f'v_lshrrev_b32 v23, 2, v20\nv_and_b32 v23, 2, v23\nv_xor_b32 v24, v21, v23\nv_lshlrev_b32 v24, 4, v24\nv_lshl_add_u32 v24, v20, 6, v24\nv_add_u32 {vT}, {T}, v24')
    a(f'v_add_u32 v122, {sW14}, {vT}')
    a(f'v_and_b32 v25, 1, v21\nv_lshrrev_b32 v26, 1, v21\nv_lshl_add_u32 v27, v25, 1, v26\nv_lshlrev_b32 v28, 4, v20\nv_lshl_add_u32 {vXs}, v27, 8, v28')
    a(f'v_xor_b32 v27, v27, v23\nv_lshlrev_b32 v27, 4, v27\nv_lshl_add_u32 v27, v20, 6, v27\ns_lshl_b32 s6, {sJ}, 11\ns_add_u32 s7, s6, s5\nv_add_u32 v121, s7, v27')
    a(f's_lshl_b32 {sGb}, {sG}, 20\ns_add_u32 {sGb}, {sGb}, {G0}\ns_add_u32 {sXoLd}, {sGb}, {sW14}\ns_add_u32 {sXxSt}, {sXoLd}, s6\ns_add_u32 {sXxSt}, {sXxSt}, {oXX}')
    a(f's_lshl_b32 s6, {sJ}, 2\ns_add_u32 s6, s6, {sW}\ns_lshl_b32 s7, s6, 9')
    a(f'v_lshl_add_u32 v27, v25, 14, v28\nv_lshl_add_u32 v27, v26, 8, v27\nv_add_u32 {vXo}, s7, v27')
    a(f's_lshl_b32 {sH1}, s6, 15\ns_add_u32 {sH1}, {sH1}, {H1}\ns_lshl_b32 {sH2}, s6, 12\ns_add_u32 {sH2}, {sH2}, {H2}')
    a(f's_lshl_b32 {sKVB}, s6, 12\ns_add_u32 {sKVB}, {sKVB}, {sGb}\ns_add_u32 {sKVB}, {sKVB}, {oKVB}')
    a(f's_lshl_b32 {sFB}, s6, 7\ns_add_u32 {sFB}, {sFB}, {oFB}')
    a(f's_add_u32 {sFl}, {sGb}, {oFL}\ns_lshl_b32 s6, {sJ}, 2\ns_add_u32 {sFlOwn}, {sFl}, s6\ns_cmp_eq_u32 {sW}, 0\ns_cselect_b32 {sFlOwn}, {sFlOwn}, {OOB}')
    a(f's_lshl_b32 {sWoSrc}, {sW}, 17\ns_lshl_b32 s6, {sJ}, 7\ns_add_u32 {sWoSrc}, {sWoSrc}, s6')
    a(f's_mul_i32 {sKVN}, {sW}, {8*TS}\ns_add_u32 {sKVN}, {sKVN}, {KVN}\ns_mul_i32 {sOwn}, {sW}, {2*TS}\ns_add_u32 {sOwn}, {sOwn}, {OWN - 8*TS}')
    for i in range(4):
        a(f's_sub_u32 s6, {sKVB}, {(i+1) << 20}\ns_cmp_gt_u32 {sG}, {i}\ns_cselect_b32 {sNb[i]}, s6, {OOB}')
    a(f's_mov_b32 {sCnt}, 0\ns_mov_b32 {sL}, 0')
    a(f's_lshr_b32 s6, {sJ}, 1\ns_lshl_b32 s6, s6, 8\ns_and_b32 s7, {sJ}, 1\ns_lshl_b32 s7, s7, 3\ns_add_u32 s6, s6, s7\ns_lshl_b32 s7, {sW}, 10\ns_add_u32 s6, s6, s7\ns_add_u32 {sSt}, s6, {sGb}')
    a(f'v_and_b32 {vPG}, 7, v0\nv_lshlrev_b32 v27, 4, {vPG}\nv_lshlrev_b32 {vPG}, 2, {vPG}\nv_lshrrev_b32 v29, 3, v0\nv_lshl_add_u32 {vWoD}, v29, 12, v27')
    a(f'v_bfe_u32 v27, v0, 2, 2\nv_lshl_add_u32 v29, v26, 2, v25\nv_lshl_add_u32 v29, v27, 3, v29\nv_lshlrev_b32 v29, 7, v29\nv_lshl_add_u32 v29, v27, 5, v29\nv_and_b32 v27, 3, v0\nv_lshl_add_u32 {vWoR}, v27, 3, v29')
    a.extend(consts())
    a('v_and_b32 v28, 31, v0\nv_lshlrev_b32 v29, 2, v26\nv_sub_u32 v28, v28, v29')
    for i in range(16): a(f'v_cmp_le_i32 s[{MASK0+2*i}:{MASK0+2*i+1}], {8*(i>>2) + (i&3)}, v28')
    a(f'v_mov_b32 v29, {OOB}\nv_cmp_eq_u32 vcc, 0, v0\nv_cndmask_b32 v120, v29, v0, vcc')
    xccst = [f'buffer_store_dword v117, v120, {WS}, {sFlOwn} offen offset:256 sc1']
    rest = [f'buffer_load_dword v127, {"v250" if opt.get("noj3") else "v255"}, {WB}, 0 offen', f'buffer_load_dword v127, v254, {WOA}, 0 offen', f'buffer_load_dword v127, v254, {WOB}, 0 offen'] if opt.get('pf', 1) else []
    tx = opt.get('tx', 0)
    a(f's_lshl_b32 s6, {sJ}, 2\ns_add_u32 s6, s6, {sW}\ns_lshl_b32 s7, s6, 11\ns_add_u32 s7, s7, {sGb}')
    a(f'v_lshlrev_b32 v30, 7, v20\nv_lshl_add_u32 v30, v25, 18, v30\nv_add_u32 v30, s7, v30\nv_cmp_gt_u32 vcc, {32 if tx else 0}, v0\ns_lshl_b32 s6, s6, 7\ns_add_u32 s6, s6, {sGb}\nv_cndmask_b32 v251, v29, v30, vcc')
    a(f's_add_u32 s7, s6, {oST}\nv_writelane_b32 v251, s7, 32\nv_writelane_b32 v251, {sFl}, 33\ns_add_u32 s7, {sFl}, 128\nv_writelane_b32 v251, s7, 34')
    if opt.get('th', 1):
        a(f's_lshl_b32 s7, {sG}, 7\ns_add_u32 s7, s7, {sH2}\nv_writelane_b32 v251, s7, 35\ns_add_u32 s7, s6, {oFB}\nv_writelane_b32 v251, s7, 36\ns_add_u32 s7, s7, 0x1000\nv_writelane_b32 v251, s7, 37')
    def touch2(t):
        if not opt.get('th2', 1): return []
        return lines(f'''s_lshl_b32 s7, {sG}, 10
        s_add_u32 s7, s7, {sH1}
        s_add_u32 s7, s7, 0x100000
        v_and_b32 v{t}, 7, v0
        v_lshl_add_u32 v{t}, v{t}, 7, s7
        s_lshl_b32 s7, {sG}, 7
        s_add_u32 s7, s7, {sH2}
        s_add_u32 s7, s7, 0x20000
        v_writelane_b32 v{t}, s7, 8
        s_add_u32 s7, s99, 0x2000
        v_writelane_b32 v{t}, s7, 9
        s_add_u32 s7, s99, 0x3000
        v_writelane_b32 v{t}, s7, 10
        buffer_load_dword v{t+1}, v{t}, {WS}, 0 offen sc1''')
    a(f'''v_and_b32 v116, 3, v0
    s_lshl_b32 s6, {sW}, 6
    v_add_u32 v253, s6, {vRSb}
    v_bfe_u32 v31, v0, 2, 2
    v_cmp_eq_u32 vcc, v31, v21
    v_mov_b32 v31, {LDS_BYTES - 1024}
    s_lshl_b32 s6, {sW}, 11
    v_cndmask_b32 v253, v31, v253, vcc
    s_add_u32 s6, s6, {RES}
    v_add_u32 v119, s6, {vL16}
    v_cmp_eq_u32 s[98:99], 1, v116
    v_cmp_eq_u32 s[100:101], 2, v116''')
    sm = opt.get('sm', 0)
    def smpf(base, off, n):
        a(off + f'\ns_add_u32 s6, s6, s{base}\ns_addc_u32 s7, s{base+1}, 0')
        for i in range(n): a(f's_load_dword s0, s[6:7], {i*128}', 'nocount')
    gw = f's_lshl_b32 s6, s2, 2\ns_add_u32 s6, s6, {sW}'
    def sm1():
        smpf(20, gw + '\ns_and_b32 s7, s6, 1\ns_lshr_b32 s6, s6, 1\ns_mul_i32 s6, s6, 3\ns_add_u32 s6, s6, s7\ns_add_u32 s6, s6, 1\ns_lshl_b32 s6, s6, 10', 8)
        smpf(16, gw + '\ns_lshl_b32 s6, s6, 9', 4)
    def sm2():
        smpf(20, gw + '\ns_and_b32 s7, s6, 1\ns_lshr_b32 s6, s6, 1\ns_mul_i32 s6, s6, 6\ns_add_u32 s6, s6, s7\ns_lshl_b32 s6, s6, 9', 4)
        smpf(24, gw + '\ns_lshl_b32 s6, s6, 9', 4)
    if sm in (1, 2): sm1()
    if sm == 2: sm2()
    for i, c in enumerate(up[nf:]):
        a.extend(c)
        if nf + i in (1, 3): a('s_barrier')
        if sm == 3 and nf + i == 1: sm1()
        if sm == 4 and nf + i == 1: sm1(); sm2()
    a(f's_waitcnt lgkmcnt(0)\ns_add_u32 {sEp}, {sEp}, 1\ns_mul_i32 {sTag}, {sEp}, 0x9E3779B1\ns_cmp_eq_u32 {sTag}, 0x3f803f80\ns_addc_u32 {sEp}, {sEp}, 0\ns_mul_i32 {sTag}, {sEp}, 0x9E3779B1')
    a(f's_getreg_b32 s6, hwreg(HW_REG_XCC_ID, 0, 4)\ns_add_u32 s6, s6, {sTag}\nv_mov_b32 v117, s6')
    fstamp(0, 'issued')
    acc0 = lambda p, t: 20 + 8*t + (0 if p == 'k' else 4)
    XR0 = 52
    GR, SM, CK, CV, OT = 84, 88, 92, 96, 100
    touch = [f'buffer_load_dword v127, v251, {WS}, 0 offen sc1', poll_start(vPG, sFl, 252, 256)]
    if opt.get('notouch'): touch = touch[1:]
    if opt.get('norest'): rest = []
    xlate = []
    if opt.get('xlate'): xlate = touch[-1:]; touch = touch[:-1]
    later = {0: rd(4) + rd(5) + rd(6) + xccst, 1: rd(7) + rd(8), 2: rd(9) + rd(10), 3: rd(11) + rest + touch}
    post = []; head = {}
    qr = opt.get('qr', 2)
    def w_reg(n, base):
        m, p, kq = ring[n]; o = []
        for i in range(4):
            if i % 2 == 0: o.append(f's_add_u32 s7, {sWsrc}, {(128*kq + 8*i)*3072 + PARTOFF[p]}')
            o.append(f'buffer_load_dwordx4 {vr(base + 4*i, 4)}, v{WE if i % 2 == 0 else WOd}, {WA}, s7 offen')
        return o
    def w_put(n, base): return [tok(f'ds_write_b128 v118, {vr(base + 4*i, 4)} offset:{slot(n) + i*1024}', 'put') for i in range(4)]
    if qr == 1:
        q3 = w_reg(11, 176); head = {1: q3[:3], 2: q3[3:], 3: rest[:2]}; later[3] = rest[2:] + touch
        post = [f'v_add_u32 v118, {sW12}, {vL16}'] + w_put(11, 176)
    if qr == 2:
        q2, q3 = w_reg(10, 176), w_reg(11, 192)
        head = {1: q2[:3], 2: q3[3:]}; later[1] = rd(7) + rd(8) + q2[3:] + q3[:3]; later[2] = rd(9) + rest + touch; later[3] = []
        post = [f'v_add_u32 v118, {sW12}, {vL16}'] + w_put(10, 176) + w_put(11, 192)
    RS0 = lambda t: 128 + 8*t
    B0 = lambda t: 160 + 4*t
    wr = lambda n: w_read(*ring[n], WR if slot(n) < 65536 else 123, slot(n) if slot(n) < 65536 else 0)
    rdx = lambda N: f'ds_read_b128 {vr(XR0 + 4*(N % 8), 4)}, {vT} offset:{((N & 3)*16 + (N >> 2))*1024}'
    a('.waitfor tok:x3')
    a.extend([f'ds_read_b128 {vr(176 + 4*s, 4)}, v122 offset:{s*1024}' for s in range(8)])
    main = []
    for s in range(16):
        x = vr(176 + 4*s, 4)
        main += [M16(vr(GR,4), x, x, '0' if s == 0 else vr(GR,4)), M16(vr(SM,4), vr(ONES,4), x, '0' if s == 0 else vr(SM,4))]
        if s < 8: main.append(f'ds_read_b128 {vr(176 + 4*(s+8), 4)}, v122 offset:{(s+8)*1024}')
    main, left = place(main, rd(2) + rd(3), 1, 4)
    a.extend(main + left)
    fstamp(0, 'stats')
    a('.waitfor tok:r0 tok:r1\ns_barrier')
    fstamp(0, 'step0')
    a.extend(wr(0) + wr(1)[:4])
    for kq in range(4):
        main = cs_mfma('a', 'k', CK, 4*kq, 4*kq+4) + cs_mfma('a', 'v', CV, 4*kq, 4*kq+4)
        main += [f'.waitfor tok:stw', 's_barrier']
        for n in range(16):
            N = 16*kq + n; t, s = N & 3, N >> 2
            x = vr(XR0 + 4*(N % 8), 4)
            if n % 4 == 0: main.append(f'.waitfor {vr(XR0 + 4*((N+3) % 8), 4)}')
            for p in 'kv':
                d = vr(acc0(p, t), 4); main.append(M16(d, x, Wfrag('a', p, s), '0' if s == 0 else d))
            if n == 9 and kq < 3: main += [f'.waitfor tok:r{2*kq+2} tok:r{2*kq+3}', 's_barrier']
            if N + 7 < 64: main.append(rdx(N + 7))
        main, left = place(main, head.get(kq, []), 1, 4); assert not left
        main, left = place(main, later[kq], 1 if kq == 0 else 9, 3 if kq == 0 or (kq == 1 and qr == 2) else 4)
        fill = wr(2*kq + 1)[4:] + ([rdx(N) for N in range(7)] if kq == 0 else [])
        if kq == 0:
            fill += ['v_cmp_eq_u32 vcc, 3, v116', f'v_cndmask_b32 v{GR}, v{GR}, v{GR+1}, s[98:99]', f'v_cndmask_b32 v{GR}, v{GR}, v{GR+2}, s[100:101]', f'v_cndmask_b32 v{GR}, v{GR}, v{GR+3}, vcc'] + stats_fin(SM, GR, 253, 116)
        if kq == 2:
            fill += [('at', 9)] + [f'ds_read_b128 {vr(RS0(t)+4*h,4)}, {vRSa} offset:{256*h+t*64}' for t in range(4) for h in range(2)]
        if kq < 3: fill += [('at', 29)] + wr(2*kq + 2) + wr(2*kq + 3)[:4]
        else:
            fill += [('at', 13), cs_write('a', 'k', CK), cs_write('a', 'v', CV)]
            for t in range(4):
                fill += [f'v_fma_f32 v{B0(t)+i}, v{RS0(t)+4+i}, v{CK}, v{E6}' for i in range(4)] + [f'v_mul_f32 v{RS0(t)+4+i}, v{RS0(t)+4+i}, v{CV}' for i in range(4)]
        a.extend(weave(main, fill) + left)
        fstamp(0, f'step{kq+1}')
    stamp(0, 2)
    PK, VV, KVr, Zr = 80, 88, 96, 100
    def epi_A_pk(K, V, RS, MR, B, csk, csv, t):
        o = []
        o += [pk('fma', B+i, MR+i, ('b', csk), ('b', E6)) for i in (0, 2)]
        o += [pk('mul', MR+i, MR+i, ('b', csv)) for i in (0, 2)]
        o2 = [pk('fma', K+i, K+i, RS+i, B+i) for i in (0, 2)]
        o2 += [pk('fma', V+i, V+i, RS+i, MR+i) for i in (0, 2)]
        o2 += [pk('fma', B+i, K+i, ('b', L2Er), ('b', NE)) for i in (0, 2)]
        o2 += [f'v_exp_f32_e64 v{B+i}, v{B+i} clamp' for i in range(4)]
        o2 += [f'v_max_f32 v{K+i}, v{K+i}, v{E6}' for i in range(4)]
        o2 += [cvt(VV+2*t, V), cvt(VV+2*t+1, V+2)]
        o2 += [pk('add', K+i, K+i, B+i) for i in (0, 2)]
        o2 += [cvt(PK+2*t, K), cvt(PK+2*t+1, K+2)]
        return o, o2
    for t in range(4): a.extend(epi_A_pk(acc0('k', t), acc0('v', t), RS0(t), RS0(t)+4, B0(t), CK, CV, t)[1])
    def kv_mfma(h): return [M16(vr(KVr,4), vr(PK+4*h,4), vr(VV+4*h,4), '0' if h == 0 else vr(KVr,4)), M16(vr(Zr,4), vr(PK+4*h,4), vr(ONES,4), '0' if h == 0 else vr(Zr,4))]
    a.extend(kv_mfma(0) + kv_mfma(1))

    QA, XRq = 28, 44
    QF = [20, 24]; OA = [28, 44]
    def wo_xor(t): return [f'v_xor_b32 v{t+i}, {32*(i+1)}, {vWoD}' for i in range(3)]
    def wo_dma(srd, t, gs):
        o = []
        for g in gs:
            o += [f's_add_u32 m0, {sW14}, {WO + g*4096}', f's_add_u32 s7, {sWoSrc}, {g*32768}']
            for i in range(4): o.append(tok(f'buffer_load_dwordx4 {vWoD if i == 0 else "v%d" % (t+i-1)}, {srd}, s7 offen offset:{i*1024} lds', 'wo'))
        return o
    def q_pass(mat, ringb, fill, mem, mstart, forced, cut=None):
        reads = [(t, s) for s in range(16) for t in range(4)]
        R = len(ringb); D = R - 1
        rdx = lambda n: f'ds_read_b128 {vr(ringb[n % R], 4)}, {vT} offset:{(reads[n][0]*16 + reads[n][1])*1024}'
        main = [rdx(n) for n in range(D)]
        for n, (t, s) in enumerate(reads):
            if n % 4 == 0 and n: main.append(f'.waitfor {vr(ringb[(n+3) % R], 4)}')
            d = vr(QA + 4*t, 4); main.append(M16(d, Wfrag(mat, 'q', s), vr(ringb[n % R], 4), '0' if s == 0 else d))
            if n + D < 64: main.append(rdx(n + D))
            main += forced.get(n, [])
        main, left = place(main, mem, mstart, 4)
        o = weave(main, fill) + left
        if cut is None: a.extend(o); return []
        idx = [k for k, x in enumerate(o) if (x.text if isinstance(x, Ins) else x).startswith('v_mfma')][cut]
        a.extend(o[:idx]); return o[idx:]
    def flag_line(t):
        return [f'v_mov_b32 v{t+i}, {sTag}' for i in range(4)] + lines(f'''v_mov_b32 v{t+4}, {OOB}
        v_cmp_gt_u32 vcc, 8, v0
        v_cndmask_b32 v{t+4}, v{t+4}, {vL16}, vcc''')
    def passes(L, mat, fills, mems, shadow=[], extra0=[], forced={}):
        accp = lambda p, t: 20 + 8*(t & 1) + (0 if p == 'k' else 4)
        XR = 36
        dma = lambda n, name: [tok(f'buffer_load_dwordx4 {vL16}, {WS}, s3 offen offset:{i*1024} sc1 lds', name) for i in range(n)]
        fair = ['s_barrier'] if opt.get('fair', 1) else []
        a.extend(dma(2, 't0a'))
        a('s_add_u32 m0, m0, 8192\ns_add_u32 s3, s3, 8192')
        a.extend(fair + dma(2, 't0b'))
        a(f'buffer_load_dwordx4 v[112:115], {vL16}, {WS}, s6 offen sc1')
        nxt = lambda t: [f's_add_u32 m0, s5, {t*16384}', f's_add_u32 s3, s4, {t*16384}'] + dma(4, f't{t}')
        n1_ = nxt(1); a.extend(n1_[:2] + fair + n1_[2:2 + opt.get('t1n', 2)])
        stat = lines(f'''v_add_f32 v112, v112, v114
        v_add_f32 v113, v113, v115
        {sw32(112,113)}
        v_add_f32 v112, v112, v113
        v_mov_b32 v113, v112
        {sw16(112,113)}
        v_add_f32 v112, v112, v113
        v_mov_b32 v113, v112
        {sw32(112,113)}''') + stats_fin(112, 113, 119, 114)
        a.extend(shadow)
        a('.waitfor tok:t0a tok:shadow\ns_barrier')
        stamp(L, 1)
        rdx = lambda n: f'ds_read_b128 {vr(XR + 4*(n % 8), 4)}, {vT} offset:{n*1024}'
        D = 7
        a.extend([rdx(n) for n in range(D)])
        pend = n1_[2 + opt.get('t1n', 2):]
        for t in range(4):
            main = []
            for s in range(16):
                n = 16*t + s; x = vr(XR + 4*(n % 8), 4)
                if n % 4 == 0 and n: main.append(f'.waitfor {vr(XR + 4*((n+3) % 8), 4)}')
                for p in 'kv':
                    d = vr(accp(p, t), 4); w = Wfrag(mat, p, s)
                    A, B = (w, x) if (mat == 'b' and p == 'k') else (x, w)
                    main.append(M16(d, A, B, '0' if s == 0 else d))
                m = n + D
                if m == 10: main += ['.waitfor tok:t0b', 's_barrier', rdx(8), rdx(9)]
                if m == 18: main += ['.waitfor tok:t1 tok:stw', 's_barrier', rdx(16), rdx(17)]
                if m in (32, 48): main += [f'.waitfor tok:t{m//16}', 's_barrier']
                if m < 64 and m not in (8, 9, 16, 17): main.append(rdx(m))
                main += forced.get(n, [])
                if opt.get('fine') and focus == L and t == 0 and n in (0, 2, 3, 7, 10, 11, 13):
                    main += ['s_memtime s[96:97]' if profile == 'cyc' else 's_memrealtime s[96:97]', 's_waitcnt lgkmcnt(0)', f'v_writelane_b32 {vStamp}, s96, {len(names)}']; names.append(f'p0n{n}')
            f = fills[t]
            if t == 0: f = [('at', 5)] + stat + f; main = extra0 + main
            mem = pend + (nxt(2) + nxt(3) if t == 0 else []) + mems[t]
            main, pend = place(main, mem, 1, 4)
            a.extend(weave(main, f))
            fstamp(L, f'pass{t}')
        assert not pend
        return accp
    def entry_prep(L):
        return lines(f'''s_lshl_b32 s6, {sW}, 11
        s_add_u32 s4, {sGb}, {oXX + XX(L-1)}
        s_add_u32 s3, s4, s6
        s_add_u32 m0, s6, {T}
        s_add_u32 s4, s4, {sW12}
        s_add_u32 s5, {sW12}, {T}
        s_lshl_b32 s6, {sW}, 6
        v_add_u32 v119, s6, {vRSb}
        s_lshl_b32 s6, {sW}, 10
        s_add_u32 s6, s6, {sGb}
        s_add_u32 s6, s6, {ST(L-1)}
        v_add_u32 {vT}, {T}, {vL16}''')

    def A_passes(L):
        RS, MR, B = 68, 72, 76
        accp = lambda p, t: 20 + 8*(t & 1) + (0 if p == 'k' else 4)
        def prep(t):
            o = [f'ds_read_b128 {vr(MR,4)}, {vRSa} offset:{256+t*64}', f'ds_read_b128 {vr(RS,4)}, {vRSa} offset:{t*64}']
            o2 = [f'.waitfor {vr(RS,4)}'] + [f'v_fma_f32 v{108+i}, v{MR+i}, v104, v{E6}' for i in range(4)]
            o2 += [f'v_mul_f32 v{MR+i}, v{MR+i}, v105' for i in range(4)]
            return o, o2
        def fin(t):
            K, V = accp('k', t), accp('v', t)
            r, p2 = prep(t + 1)
            o = [('at', 3)] + [f'v_fma_f32 v{K+i}, v{K+i}, v{RS+i}, v{108+i}' for i in range(4)]
            o += [f'v_fma_f32 v{V+i}, v{V+i}, v{RS+i}, v{MR+i}' for i in range(4)]
            o += r
            o += [f'v_fma_f32 v{B+i}, v{K+i}, v{L2Er}, v{NE}' for i in range(4)]
            o += [cvt(VV+2*t, V), cvt(VV+2*t+1, V+2)]
            for i in range(4): o += [f'v_exp_f32_e64 v{B+i}, v{B+i} clamp', f'v_max_f32 v{K+i}, v{K+i}, v{E6}']
            o += [f'v_add_f32 v{K+i}, v{K+i}, v{B+i}' for i in range(4)]
            o += [cvt(PK+2*t, K), cvt(PK+2*t+1, K+2)]
            return o + p2
        r0, p0 = prep(0)
        fills = [[f'ds_read2_b32 v[104:105], {vCSb} offset0:16 offset1:32', ('at', 25)] + r0 + [('at', 28)] + p0, fin(0), fin(1), kv_mfma(0) + fin(2)]
        passes(L, 'a', fills, [[], [], [], []])
        stamp(L, 2)
        o, o2 = epi_A_pk(accp('k', 3), accp('v', 3), RS, MR, 108, 104, 105, 3)
        a.extend(o2 + kv_mfma(1))
    def dppm(d, src, ctl, bank=0xf): return f'v_mov_b32_dpp v{d}, v{src} {ctl} row_mask:0xf bank_mask:{hex(bank)}'
    def ror(r, sh): return f'v_add_f32_dpp v{r}, v{r}, v{r} row_ror:{sh} row_mask:0xf bank_mask:0xf'
    B2 = [(0, 'k', 1), (1, 'k', 2), (2, 'k', 3), (3, 'v', 0)]; W2 = opt.get('w2', 1)
    def A_tail(L):
        it = L >> 1
        a(f's_lshl_b32 s3, {sG}, 10\ns_add_u32 s4, {sH1}, {it*0x100000}\ns_add_u32 s5, s4, s3\ns_lshl_b32 s3, {sG}, 5\ns_add_u32 s4, s4, s3')
        a(f's_add_u32 s6, {sH2}, {it*0x20000}\ns_lshl_b32 s3, {sG}, 7')
        dz = [dppm(Zr, Zr+i, 'quad_perm:[0,1,2,3]', 1 << i) for i in (1, 2, 3)]
        a.extend([dz[0], cvt(99, 98), cvt(98, 96), dz[1], f'v_mov_b32 v101, {sTag}', 's_add_u32 s3, s6, s3', dz[2]])
        a.ins.append(tok(f'buffer_store_dwordx4 v[98:101], {vL16}, {WS}, s5 offen sc1', 'h1'))
        stamp(L, 3)
        adr = lines(f'''v_lshrrev_b32 v112, 1, v0
        v_and_b32 v116, 1, v0
        v_lshlrev_b32 v116, 4, v116
        v_lshl_add_u32 v117, v112, 7, v116
        v_lshl_add_u32 v116, v112, 10, v116
        v_mov_b32 v112, {OOB}
        v_cmp_gt_u32 vcc, 8, v0''') + wo_xor(113) + [f'v_cndmask_b32 v112, v112, {vL16}, vcc']
        p1 = ('v116', 's4', 104, 0); p2 = ('v117', 's6', 96, 0)
        ringb = list(range(44, 92, 4))
        n1 = opt.get('n1', 2)
        if L == 0:
            a.extend(post)
            a('ds_read_b128 v[44:47], v121\nds_read_b128 v[48:51], v121 offset:1024')
            a.extend(adr)
            a('ds_write_b128 v119, v[44:47]\nds_write_b128 v119, v[48:51] offset:1024')
            a('.waitfor tok:r8 tok:r9 tok:r10 tok:r11 tok:put\ns_barrier')
            fstamp(0, 'r11')
            for n in range(8, 12): a.extend(wr(n))
            stp = lambda nm: (names.append(nm) or ['s_memrealtime s[96:97]', 's_waitcnt lgkmcnt(0)', f'v_writelane_b32 {vStamp}, s96, {len(names)-1}']) if focus == 0 else []
            P1 = opt.get('p1a', 4); n1 = opt.get('n10', 3)
            q2nd = q_pass('a', ringb, [], wo_dma(WOA, 113, range(n1)), 13, cut=opt.get('cut0', 40), forced={8: ['s_barrier'], P1: stp('preh1') + ['.waitfor tok:h1'] + stp('h1ack') + [poll_start(*p1, n=4)]})
        else:
            a.extend(adr[7:10])
            q2nd = q_pass('a', ringb, adr[:7] + adr[10:], wo_dma(WOA, 113, range(n1)), 2, cut=opt.get('cut2'), forced={opt.get('p1b', 46): ['.waitfor tok:h1', poll_start(*p1, n=4)]})
        qrd = ([f'ds_read_b128 v[76:79], {vCSa}'] if L else []) + [f'ds_read2_b32 {vr(80+2*t,2)}, {vRSb} offset0:{t*16} offset1:{64+t*16}' for t in range(4)]
        if not q2nd: a.extend(qrd)
        stamp(L, 4)
        poll_masked(*p1, n=4)
        fstamp(L, 'hop1')
        a(f'''v_lshlrev_b32 v108, 16, v104
        v_and_b32 v109, 0xffff0000, v104
        v_lshlrev_b32 v110, 16, v105
        v_and_b32 v111, 0xffff0000, v105
        v_mov_b32 v104, v106
        {sw32(108, 109)}
        {sw32(110, 111)}
        {sw32(106, 104)}
        v_add_f32 v108, v108, v109
        v_add_f32 v110, v110, v111
        v_add_f32 v106, v106, v104
        v_mov_b32 v104, v106
        {sw16(108, 110)}
        v_add_f32 v108, v108, v110
        {sw16(106, 104)}
        v_add_f32 v106, v106, v104''')
        for sh in (8, 4, 2): a.extend([ror(108, sh), ror(106, sh)])
        a(f'v_mov_b32 v109, v108\n{sw32(108, 109)}\n{cvt(104, 108)}\nv_mov_b32 v105, v104\n{sw16(104, 105)}')
        a.ins.append(tok(f'buffer_store_dwordx4 v[104:107], v112, {WS}, s3 offen sc1', 'h2'))
        fstamp(L, 'reduce')
        if q2nd: a.extend(q2nd + qrd)
        e = []
        for t in range(4):
            q = QA + 4*t; B = 88
            e += [pk('fma', B+i, 76+i, ('b', 81+2*t), ('b', E6)) for i in (0, 2)]
            e += [pk('fma', q+i, q+i, ('b', 80+2*t), B+i) for i in (0, 2)]
            e += [pk('fma', B+i, q+i, ('b', L2Er), ('b', NE)) for i in (0, 2)]
            e += [f'v_exp_f32_e64 v{B+i}, v{B+i} clamp' for i in range(4)]
            e += [f'v_max_f32 v{q+i}, v{q+i}, v{E6}' for i in range(4)]
            e += [pk('add', q+i, q+i, B+i) for i in (0, 2)]
            e += [cvt(20+2*t, q), cvt(21+2*t, q+2)]
        e += [f's_add_u32 s4, {sGb}, {XO(L)}', sw16(20, 22), sw16(21, 23), f's_add_u32 s5, s4, 32768', sw16(24, 26), sw16(25, 27)]
        mem = wo_dma(WOA, 113, range(n1, 4))
        if L == 0:
            a.extend(xlate)
            mem += w_dma('b', 'k', 0, S, WE, WOd, 'b2')
            cq, mem = place(cs_mfma('a', 'q', 92), mem, 2, 4)
            a.extend(cq)
            poll_finish(vPG, sFl, 252, 256, [f'v_subrev_u32 v120, {sTag}, v252', 'v_cmp_lt_u32 vcc, 15, v120'], drain=False)
            a(f'v_readfirstlane_b32 s7, v252\nv_cmp_ne_u32 vcc, s7, v252\ns_cmp_eq_u64 vcc, 0\ns_cselect_b32 {sFast}, {0 if opt.get("slow") else 1}, 0\n{cs_write("a", "q", 92)}\nds_read_b128 v[76:79], {vCSa}')
        a.extend(spread(e, mem, 10))
        a('.waitfor tok:h2')
        a(poll_start(*p2, n=4))
        if L == 0:
            a(f'v_add_u32 v122, {T}, v{WR}\ns_barrier')
            for i, p, kq in B2[:W2]: a.extend(w_dma('b', p, kq, T + i*16384, WE, WOd, 'b2'))
        stamp(L, 5)
        poll_masked(*p2, n=4)
        stamp(L, 6)
        a.extend([dppm(108+r, 98, f'row_newbcast:{4*r}') for r in range(4)] + [cvt(98, 108), cvt(99, 110), sw16(96, 98), sw16(97, 99)])
        for u in range(2): a(M32(vr(OA[u],16), 'v[96:99]', vr(QF[u],4), '0'))
        for u in range(2): a(f'v_add_f32 v{OA[u]+8}, v{OA[u]+8}, v{E6}')

    CB, SB, KB, VB = 60, [96, 112], 76, 88
    vK, vVa, vVb, NM, NEG, TMP = 13, 14, 15, [16, 17], 18, 19
    mk = lambda i: f's[{MASK0+2*i}:{MASK0+2*i+1}]'
    def qk(u, sb, c, k=KB): return M32(vr(sb,16), vr(k,4), vr(QF[u],4), c)
    def pv(u, sb, h, init=False): return M32(vr(OA[u],16), vr(VB+4*h,4), vr(sb+8*h,4), '0' if init else vr(OA[u],16))
    def B_prep(L):
        o = lines(f'''v_mov_b32 v60, {sKVN}
        v_mov_b32 v61, {sOwn}
        v_cmp_gt_u32 vcc, 8, v0
        v_mul_u32_u24 v62, {TS}, v0
        s_lshl_b32 s7, {sG}, 1
        v_cndmask_b32 v60, v61, v60, vcc
        v_add_u32 v61, s7, v0
        v_cmp_le_u32 vcc, 8, v61
        v_add3_u32 v60, v60, v62, 64
        v_mov_b32 v62, 0x3f803f80
        v_cndmask_b32 v17, 0, v62, vcc
        v_cmp_gt_u32 vcc, 10, v0
        v_add_u32 v60, {2048-64}, v60
        v_mov_b32 v63, {LDS_BYTES - 2048}
        v_cndmask_b32 v16, v63, v60, vcc
        v_lshrrev_b32 v60, 5, v0
        v_and_b32 v61, 15, v0
        v_lshlrev_b32 v61, 4, v61
        v_lshl_add_u32 v60, v60, 8, v61
        v_and_b32 v63, 16, v0
        v_cmp_eq_u32 vcc, 0, v63
        v_add_u32 v60, 1024, v60
        v_add_u32 v61, 512, v60
        v_mov_b32 v62, 2048
        v_cndmask_b32 v60, v62, v60, vcc
        v_cndmask_b32 v61, v62, v61, vcc
        v_add_u32 v{vK}, {sKVN}, {vL16}
        v_add_u32 v{vVa}, {sOwn}, v60
        v_add_u32 v{vVb}, {sOwn}, v61
        v_and_b32 v60, 3, v0
        v_sub_u32 v60, {sG}, v60
        v_subrev_u32 v60, 1, v60
        v_cmp_gt_i32 vcc, 0, v60
        v_mov_b32 v61, {sG}
        v_mov_b32 v{NEG}, {f2u(-1e30)}
        v_cndmask_b32 v60, v60, v61, vcc
        v_lshlrev_b32 v{TMP}, 20, v60''')
        if L == 3: o += [f's_add_u32 {x}, {x}, 0x20000' for x in sNb + [sKVB]] + [f's_add_u32 {sFB}, {sFB}, 0x2000']
        return o
    def B_layer(L):
        it = L >> 1
        RS, MR, B = 68, 72, 76
        KK = PK
        accp = lambda p, t: 20 + 8*(t & 1) + (0 if p == 'k' else 4)
        def rds(t, RS, MR, rm): return [f'ds_read_b128 {vr(RS,4)}, {vRSa} offset:{t*64}', f'ds_read_b128 {vr(MR,4)}, {vRSa} offset:{256+t*64}', f'ds_read2_b32 {vr(rm,2)}, {vRSb} offset0:{t*16} offset1:{64+t*16}']
        def prep(t):
            o2 = ['.waitfor v[110:111]'] + [f'v_mul_f32 v{B+i}, v111, v{104+i}' for i in range(4)] + [f'v_mul_f32 v{MR+i}, v{MR+i}, v108' for i in range(4)]
            return rds(t, RS, MR, 110), o2
        def fin(t, mid=[]):
            K, V = accp('k', t), accp('v', t)
            r, p2 = prep(t + 1)
            o = [('at', 3)] + [f'v_fma_f32 v{K+i}, v{K+i}, v110, v{B+i}' for i in range(4)]
            o += [f'v_fma_f32 v{V+i}, v{V+i}, v{RS+i}, v{MR+i}' for i in range(4)]
            o += [cvt(KK+2*t, K), cvt(KK+2*t+1, K+2), cvt(VV+2*t, V), cvt(VV+2*t+1, V+2)]
            return o + mid + r + [('at', 24)] + p2
        def out(u):
            k, v = KK + 4*u, VV + 4*u
            return [sw16(k, k+2), sw16(k+1, k+3), sw32(v, v+2), sw32(v+1, v+3),
                    tok(f'buffer_store_dwordx4 {vr(k,4)}, {vL16}, {WS}, {sKVB} offen offset:{u*2048} sc1', f'kv{u}'),
                    tok(f'buffer_store_dwordx4 {vr(v,4)}, {vL16}, {WS}, {sKVB} offen offset:{u*2048+1024} sc1', f'kv{u}'),
                    f'ds_write_b128 v109, {vr(v,4)} offset:{(8+u)*TS+1024}']
        f0 = [f'ds_read_b128 v[104:107], {vCSa} offset:{768+64}'] + ([f'ds_read_b32 v108, {vCSb} offset:{768+128}'] if L == 3 else [])
        f0 += [f'v_add_u32 v109, {sOwn}, {vL16}', f's_add_u32 s99, {sFB}, {sGb}', f's_add_u32 s98, s99, 0x1000'] + flag_line(96) + wo_xor(101)
        bq = [w_dma('b', 'q', kq, kq*16384, WE, WOd, 'bq') for kq in range(4)] if L == 1 else [[], [], [], []]
        r0, p0 = prep(0)
        x0 = 0
        fl = lambda e: [f'.waitfor tok:kv{e}', tok(f'buffer_store_dwordx4 v[96:99], v100, {WS}, {"s99" if e == 0 else "s98"} offen sc1', f'fl{e}')]
        shadow = []; extra0 = []
        if L == 1:
            shadow = w_read('b', 'v', 3, 123, 0) + cs_mfma('b', 'v', 92, 12, 16, one=76)
            f0 = f0 + [cs_write('b', 'v', 92), 'v_mov_b32 v108, v92']
        fills = [f0 + [('at', 25 + x0)] + r0 + [('at', 28 + x0)] + p0, fin(0), fin(1, out(0)), fin(2)]
        w = wo_dma(WOB, 101, range(4))
        mems = [[], bq[0] + bq[1] + bq[2] + bq[3], [], []] if L == 1 else [[], w[:12], [], w[12:]]
        passes(L, 'b', fills, mems, shadow, extra0)
        stamp(L, 2)
        K, V = accp('k', 3), accp('v', 3)
        a.extend(fl(0))
        a(f's_add_u32 s6, {sFB}, {G0}\ns_add_u32 s5, s6, 0x1000\ns_sub_u32 s4, {sKVN}, {sOwn}')
        a.extend([pk('fma', K+i, K+i, ('b', 110), B+i) for i in (0, 2)] + [pk('fma', V+i, V+i, RS+i, MR+i) for i in (0, 2)])
        a.extend([cvt(KK+6, K), cvt(KK+7, K+2), cvt(VV+6, V), cvt(VV+7, V+2)])
        a.extend(out(1))
        stamp(L, 3)
        ringb = list(range(44, 76, 4)) + list(range(104, 120, 4))
        pe = (f'v{TMP}', 's6', 79, 0); pl = (f'v{TMP}', 's5', 84, 0)
        qrd = [f'ds_read_b128 v[88:91], {vCSa} offset:768'] + [f'ds_read2_b32 {vr(120+2*t,2)}, {vRSb} offset0:{t*16} offset1:{64+t*16}' for t in range(4)]
        if L == 1:
            a.extend(ones(104))
            a('.waitfor tok:bq\ns_barrier')
            for kq in range(4): a.extend(w_read('b', 'q', kq, WR, kq*16384))
            a.extend(cs_mfma('b', 'q', 92, one=104))
            a('s_barrier')
            q_pass('b', ringb, [('at', 3), cs_write('b', 'q', 92), ('at', 54)] + qrd, w, 1, {14: fl(1), 30: [poll_start(*pe)]})
        else:
            q_pass('b', ringb, [('at', 54)] + qrd, [], 1, {opt.get('pe', 42): [poll_start(*pe)], opt.get('fl1', 52): fl(1)})
        stamp(L, 4)
        def nb_dma(e):
            o = []
            for i in range(4):
                kt = 6 - 2*i + e
                o += [f's_add_u32 m0, {sKVN}, {kt*TS - e*2048}']
                o += [tok(f'buffer_load_dwordx4 {vL16}, {WS}, {sNb[i]} offen offset:{e*2048 + h*1024} sc1 lds', f'n{kt}') for h in range(2)]
            return o
        rdK = lambda kt: f'ds_read_b128 {vr(KB,4)}, v{vK} offset:{kt*TS}'
        rdV = lambda kt, h: f'ds_read_b128 {vr(VB+4*h,4)}, v{vVa if h == 0 else vVb} offset:{kt*TS}'
        a('s_barrier')
        e = [f'v_mov_b32 v92, {f2u(0.25*L2E)}'] + [f'v_cndmask_b32 v{CB+i}, v{NEG}, 0, {mk(i)}' for i in range(16)]
        e += [pk('mul', 120+2*t, 120+2*t, ('b', 92)) for t in range(4)]
        for t in range(4):
            q = QA + 4*t
            e += [pk('mul', 92+i, 88+i, ('b', 121+2*t)) for i in (0, 2)] + [pk('fma', q+i, q+i, ('b', 120+2*t), 92+i) for i in (0, 2)]
            if t == 2: e += [sw16(20, 22), sw16(21, 23)]
            e += [cvt(20+2*t, q), cvt(21+2*t, q+2)]
        e += [f'ds_write2_b32 v16, v17, v17 offset0:0 offset1:1', qk(0, SB[0], vr(CB,16), KK), sw16(24, 26), sw16(25, 27),
              f'ds_write2_b32 v16, v17, v17 offset0:2 offset1:3', 's_nop 0', qk(1, SB[1], vr(CB,16), KK+4)]
        ce = opt.get('ce', 40)
        a.extend(e[:ce])
        fstamp(L, 'qepi')
        poll_masked(*pe)
        stamp(L, 5)
        main_a = a; a2 = Asm(); a2.extend(e[ce:])
        diag(a2)
        a.extend(spread(a2.ins, nb_dma(0) + [poll_start(*pl)], 6))
        stamp(L, 6)
        attention(L, pl, nb_dma, rdK, rdV, KK)
    def diag(a):
        for u in range(2):
            a(f'v_max3_f32 v{NM[u]}, v{SB[u]}, v{SB[u]+1}, v{SB[u]+2}\nv_max3_f32 v{76+u}, v{SB[u]+3}, v{SB[u]+4}, v{SB[u]+5}')
            for i in range(6, 14, 4):
                a(f'v_max3_f32 v{NM[u]}, v{NM[u]}, v{SB[u]+i}, v{SB[u]+i+1}\nv_max3_f32 v{76+u}, v{76+u}, v{SB[u]+i+2}, v{SB[u]+i+3}')
            a(f'v_max3_f32 v{NM[u]}, v{NM[u]}, v{SB[u]+14}, v{SB[u]+15}\nv_max_f32 v{NM[u]}, v{NM[u]}, v{76+u}\nv_mov_b32 v{76+u}, v{NM[u]}')
        a(f'{sw32(NM[0], 76)}\n{sw32(NM[1], 77)}')
        for u in range(2): a(f'v_min_f32_e64 v{NM[u]}, -v{NM[u]}, -v{76+u}')
        if opt.get('fb'):
            for u in range(2): a(f'v_add_f32 v{NM[u]}, {f2u(200.0)}, v{NM[u]}')
        a.extend([pk('add', SB[u]+i, SB[u]+i, ('b', NM[u])) for u in range(2) for i in range(0, 16, 2)])
        a.extend([f'v_pk_mov_b32 {vr(CB+i,2)}, v[16:17], v[16:17] op_sel:[1,1]' for i in range(0, 16, 2)])
    def attention(L, pl, nb_dma, rdK, rdV, KK):
        ops = [(0, 8), (1, 9), (1, 8), (1, 6), (1, 4), (1, 2), (0, 6), (0, 4), (0, 2), (0, 0), (0, 7), (0, 5), (0, 3), (0, 1), (1, 7), (1, 5), (1, 3), (1, 1)]
        N = len(ops); seen = set()
        for n in range(N + 1):
            sb, pb = SB[n % 2], SB[1 - n % 2]
            far = n < N and ops[n][1] == ops[n][0]
            def E(i):
                if n == N: return []
                o = [f'v_exp_f32 v{sb+i}, v{sb+i}', f'v_exp_f32 v{sb+i+1}, v{sb+i+1}']
                return o
            def Cv(h, i, b=None, isfar=far):
                b = sb if b is None else b
                o = []
                if isfar: o += [f'v_cndmask_b32 v{b+8*h+2*i+k}, v{b+8*h+2*i+k}, 0, {mk(8*h+2*i+k)}' for k in range(2)]
                return o + [f'v_cvt_pk_bf16_f32 v{b+8*h+i}, v{b+8*h+2*i}, v{b+8*h+2*i+1}']
            C = (lambda h, i: Cv(h, i)) if n < N else (lambda h, i: [])
            lateK = n + 1 < N and n + 1 in (3, 10)
            toks = []
            for m in ([n] if n < N else []) + ([n+1] if lateK else []) + ([n+2] if n + 2 < N and n + 2 not in (3, 10) else []):
                kt = ops[m][1]
                if kt < 8 and kt not in seen: seen.add(kt); toks.append(f'tok:n{kt}')
            s = E(0)
            if n > 0: s += Cv(1, 3, pb, ops[n-1][1] == ops[n-1][0])
            s += [f'.waitfor {" ".join(toks)} {vr(KB,4)} {vr(VB,8)}']
            if n == 3: s += [f'v_add_u32 v{vVa}, s4, v{vVa}', f'v_add_u32 v{vVb}, s4, v{vVb}']
            if lateK: s += [rdK(ops[n+1][1])]
            if n > 0: s += [pv(ops[n-1][0], pb, 0, init=(n-1 < 2))]
            if n < N: s += [rdV(ops[n][1], 0)]
            s += E(2) + C(0, 0) + E(4)
            if n > 0: s += [pv(ops[n-1][0], pb, 1)]
            if n < N: s += [rdV(ops[n][1], 1)]
            s += C(0, 1) + E(6) + C(0, 2)
            if 2 <= n + 1 < N:
                s += [qk(ops[n+1][0], pb, vr(CB,16), KK if n + 1 == 2 else KB)]
            if n + 2 < N and n + 2 > 2 and n + 2 not in (3, 10): s += [rdK(ops[n+2][1])]
            s += E(8) + C(0, 3) + E(10) + C(1, 0) + E(12)
            if n + 2 < N and n + 1 >= 2 and ops[n+2][0] != ops[n+1][0]:
                s += [f'v_mov_b32 v{CB+i}, v{NM[ops[n+2][0]]}' for i in range(16)]
            s += C(1, 1) + E(14) + C(1, 2)
            LP = opt.get('lp', 3)
            if n in (LP + 1, LP + 2):
                d = nb_dma(1); s = spread(s, d[:6] if n == LP + 1 else d[6:], 8)
            if L == 1 and n == 12: s = s + touch2(85)
            if L == 3 and 6 <= n < 6 + opt.get('dirty', 0): s = s + [f's_add_u32 s7, {sKVB}, {0x20000 + 0x20000*((n-6)>>2)}', f'buffer_store_dwordx4 v[20:23], {vL16}, {WS}, s7 offen offset:{((n-6)&3)*1024} {opt.get("dm", "")}']
            a.extend(s)
            fstamp(L, f'op{n}')
            if n == LP:
                poll_masked(*pl, drain=True)
                fstamp(L, 'latepoll')
        a(f's_add_u32 s4, {sGb}, {XO(L)}\ns_add_u32 s5, s4, 32768\ns_mov_b32 {sL}, {L}')
        o = OA[0]
        a(f'v_maximum3_f32 v76, abs(v{o}), abs(v{o+1}), v{o+8}')
        for i in range(2, 8, 2): a(f'v_maximum3_f32 v76, abs(v{o+i}), abs(v{o+i+1}), v76')
        o = OA[1]
        for i in range(0, 8, 2): a(f'v_maximum3_f32 v76, abs(v{o+i}), abs(v{o+i+1}), v76')
        a(f'v_maximum3_f32 v76, v{o+8}, v76, v76')
        a(f'v_cmp_nlt_f32 vcc, v76, abs(v{NEG})\ns_cbranch_vccnz L_fallback\nL_fbdone{L}:')

    def common(L):
        stamp(L, 7)
        for u in range(2): a(f'v_rcp_f32 v{OA[u]+8}, v{OA[u]+8}')
        a(f's_cmp_eq_u32 {sFast}, 0')
        for u in range(2):
            o = OA[u]
            a.extend([pk('mul', o+i, o+i, ('b', o+8)) for i in range(0, 8, 2)] + [cvt(o+10+i, o+2*i) for i in range(4)])
        fast_stores([tok(f'buffer_store_dwordx4 {vr(OA[u]+10,4)}, {vXo}, {WS}, {"s4" if u == 0 else "s5"} offen', 'ost') for u in range(2)], wt=(L == 0 or not reuse or (L == 3 and opt.get('wto'))) and opt.get('wt', 1))
        if L == 0:
            a(f'v_mov_b32 v13, v122\nv_mov_b32 v253, v123\nv_mov_b32 v254, v{WE}\nv_mov_b32 v255, v{WOd}')
            for i, p, kq in B2[W2:]: a.extend(w_dma('b', p, kq, T + i*16384, 254, 255, 'b3'))
        a(f's_lshl_b32 s6, {sW}, 11\ns_add_u32 s6, s6, {RES}\nv_add_u32 v14, s6, {vL16}')
        a('ds_read_b128 v[60:63], v14\nds_read_b128 v[64:67], v14 offset:1024')
        a(f'v_mov_b32 v68, {sTag}\nv_mov_b32 v69, {OOB}\nv_cmp_eq_u32 vcc, 0, v0')
        a.extend([f'v_xor_b32 v{124+i}, {32*(i+1)}, {vWoR}' for i in range(3)])
        a(f'v_cndmask_b32 v15, v69, v0, vcc\ns_add_u32 s5, {sXoLd}, {XO(L)}')
        a.extend(ones())
        if L == 3 and opt.get('clx'):
            a(f's_add_u32 s7, {sXxSt}, {XX(2)}\nbuffer_store_dwordx4 v[60:63], {vXs}, {WS}, s7 offen sc1\nbuffer_store_dwordx4 v[64:67], {vXs}, {WS}, s7 offen offset:1024 sc1')
        a.extend([sw16(60, 62), sw16(61, 63), sw16(64, 66), sw16(65, 67)])
        for i in range(8): a(f'v_lshlrev_b32 v{20+2*i}, 16, v{60+i}\nv_and_b32 v{21+2*i}, 0xffff0000, v{60+i}')
        a(f's_cmp_eq_u32 {sFast}, 0\n.waitfor tok:ost\ns_barrier')
        fast_stores([f'buffer_store_dword v68, v15, {WS}, {sFlOwn} offen offset:{64*L}'])
        stamp(L, 8)
        NW, NO, Wr, Or = 12, 10, 76, 36
        def rdw(n):
            s, t = n >> 2, n & 3
            ad = vWoR if t == 0 else f'v{123+t}'
            return [f'ds_read_b64_tr_b16 {vr(Wr + 4*(n % NW) + 2*hi, 2)}, {ad} offset:{WO + s*4096 + hi*256}' for hi in range(2)]
        def ldo(s):
            o = [f's_add_u32 s5, s5, 4096'] if s % 4 == 0 and s else []
            return o + [f'buffer_load_dwordx4 {vr(Or + 4*(s % NO), 4)}, {vL16}, {WS}, s5 offen offset:{(s%4)*1024} sc1']
        pre = [x for n in range(NW) for x in rdw(n)]
        a.extend(pre)
        a(poll_start(vPG, sFl, 127, 64*L))
        if L == 0:
            a.extend(w_read('b', 'k', 0, 253, 0))
            for i, p, kq in B2[:W2]: a.extend(w_read('b', p, kq, 13, i*16384))
        poll_finish(vPG, sFl, 127, 64*L)
        stamp(L, 9)
        NU = opt.get('nu', 8)
        for s in range(NU):
            a.extend(ldo(s))
            if opt.get('fair', 1) and s % 2 == 1 and s < NU - 1: a('s_barrier')
        fstamp(L, 'oissue')
        if L == 0:
            assert opt.get('fair', 1)
            for i, p, kq in B2[W2:]: a.extend(w_read('b', p, kq, 13, i*16384))
        if L == 0: st0 = w_dma('b', 'v', 1, T, 254, 255, 'b4') + w_dma('b', 'v', 2, T + 16384, 254, 255, 'b4')
        fin3 = [f'v_and_b32 v70, 15, v0\nv_lshrrev_b32 v71, 8, {vXs}', 'v_and_b32 v72, 7, v0\nv_xor_b32 v71, v71, v72', f'v_lshlrev_b32 v71, 4, v71\nv_lshl_add_u32 v70, v70, 7, v71',
                f'v_sub_u32 v71, v14, {vL16}\nv_add_u32 v70, v70, v71', 'v_xor_b32 v71, 64, v70\nv_lshrrev_b32 v73, 3, v0', 'v_xor_b32 v72, v72, v73\nv_lshlrev_b32 v72, 4, v72',
                f'v_lshl_add_u32 v72, v73, 10, v72\ns_add_u32 s3, {sRow}, 8192']
        for n in range(64):
            s, t = n >> 2, n & 3
            if t == 0: a(f'.waitfor {vr(Or + 4*(s % NO), 4)} {vr(Wr + 4*((n+3) % NW), 4)}')
            d = vr(20+4*t, 4)
            a(M16(d, vr(Wr + 4*(n % NW), 4), vr(Or + 4*(s % NO), 4), d))
            if n + NW < 64: a.extend(rdw(n + NW))
            if t == 3 and s + NU < 16: a.extend(ldo(s + NU))
            if L == 0 and n == 15: a('s_barrier')
            if L == 0 and s >= 16 - NU and t == 1:
                while st0:
                    y = st0.pop(0); a.extend([y])
                    if isinstance(y, Ins): break
            if t == 3 and s in (0, 3, 7, 11, 15): fstamp(L, f'wo{s}')
            if n == 56 and L < 3:
                a(f's_add_u32 s4, {sXxSt}, {XX(L)}')
            if n == 59 and L < 3: a(f's_add_u32 s3, {sSt}, {ST(L)}\nv_mov_b32 v70, 0')
            if n == 60 and L < 3: a('v_mov_b32 v71, 0\nv_mov_b32 v72, 0')
            if n == 62 and L < 3: a(f'v_mov_b32 v73, 0\ns_cmp_eq_u32 {sFast}, 0')
            if L == 3 and 54 <= n < 54 + len(fin3): a(fin3[n - 54])
        assert L or not st0
        a.extend([cvt(36+i, 20+2*i) for i in range(8)])
        a.extend([sw16(36, 38), sw16(37, 39), sw16(40, 42), sw16(41, 43)])
        if L == 3:
            om = opt.get('om', 'sc1')
            a('ds_write_b128 v70, v[36:39]\nds_write_b128 v71, v[40:43]\nds_read_b128 v[44:47], v14\nds_read_b128 v[48:51], v14 offset:1024')
            a(f'buffer_store_dwordx4 v[44:47], v72, {OUT}, {sRow} offen {om}\nbuffer_store_dwordx4 v[48:51], v72, {OUT}, s3 offen {om}')
            stamp(L, 10)
            return
        fast_stores([f'buffer_store_dwordx4 {vr(36+4*i,4)}, {vXs}, {WS}, s4 offen offset:{i*1024}' for i in range(2)], wt=(L == 0 or not reuse or (L == 2 and opt.get('wtx'))) and opt.get('wt', 1))
        for r in range(8):
            a(f'v_dot2c_f32_bf16 v{70 + (r&1)}, v{36+r}, v{ONES}\nv_dot2c_f32_bf16 v{72 + (r&1)}, v{36+r}, v{36+r}')
        a(f'v_and_b32 v48, 15, v0\nv_lshlrev_b32 v48, 4, v48\nv_lshrrev_b32 v49, 5, v0')
        a(f'v_add_f32 v70, v70, v71\nv_add_f32 v72, v72, v73\nv_lshl_add_u32 v48, v49, 2, v48\nv_and_b32 v49, 16, v0')
        a(f'{sw32(70, 72)}\nv_add_f32 v70, v70, v72\nv_mov_b32 v71, v70\nv_lshl_add_u32 v48, v49, 22, v48\nv_mov_b32 v68, {sTag}\n{sw16(70, 71)}\nv_add_f32 v70, v70, v71')
        fast_stores([tok(f'buffer_store_dword v70, v48, {WS}, s3 offen', 'xst')])
        stamp(L, 10)
        if L == 0:
            a.extend(w_dma('b', 'v', 3, S, 254, 255, 'b5'))
        a('ds_write_b128 v14, v[36:39]\nds_write_b128 v14, v[40:43] offset:1024')
        a.extend(entry_prep(L + 1))
        a(f's_cmp_eq_u32 {sFast}, 0\n.waitfor tok:xst\ns_barrier')
        fast_stores([f'buffer_store_dword v68, v15, {WS}, {sFlOwn} offen offset:{64*L+32}'])
        stamp(L, 11)
        px = (vPG, sFl, 127, 64*L+32)
        if L == 0:
            a.extend(w_read('b', 'v', 1, 13, 0) + w_read('b', 'v', 2, 13, 16384) + ones(76))
            c1, _ = place(cs_mfma('b', 'k', 88, one=76) + cs_mfma('b', 'v', 92, 0, 12, one=76), [poll_start(*px)], 10, 4)
            a.extend(weave(c1, w_addr(WE, WOd, WR, 100) + [f'v_add_u32 v123, {S}, v{WR}'] + B_prep(1)))
            a(cs_write('b', 'k', 88))
        else:
            pre = consts() if L == 1 else B_prep(3)
            a.extend(pre[:opt.get('pd', 24)]); a(poll_start(*px)); a.extend(pre[opt.get('pd', 24):])
        poll_finish(*px)
        if L == 0: a('s_barrier')
        stamp(L, 12)

    A_tail(0); common(0)
    B_layer(1); common(1)
    A_passes(2); A_tail(2); common(2)
    B_layer(3); common(3)
    a(f's_or_b32 s3, s2, {sW}\ns_cmp_eq_u32 s3, 0\ns_cselect_b32 s3, 0, {OOB}\nv_mov_b32 v52, {sEp}\nbuffer_store_dword v52, v15, {WS}, s3 offen')
    if profile:
        a('s_waitcnt vmcnt(0)')
        stamp(3, 11)
        a(f's_lshl_b32 s3, s2, 2\ns_add_u32 s3, s3, {sW}\ns_lshl_b32 s3, s3, 8\ns_add_u32 s3, s3, {STAMP0}\nv_lshlrev_b32 v45, 2, v0')
        a(f'buffer_store_dword {vStamp}, v45, {WS}, s3 offen')
        if opt.get('amp'):
            i0, i1, wg = opt['amp']
            a(f's_cmp_lg_u32 s2, {wg}\ns_cbranch_scc1 L_end\ns_cmp_lg_u32 {sW}, 0\ns_cbranch_scc1 L_end')
            a(f'v_readlane_b32 s4, {vStamp}, {i0}\nv_readlane_b32 s5, {vStamp}, {i1}\nv_readlane_b32 s6, {vStamp}, {59 if focus is None else len(names)-1}\ns_nop 3\ns_sub_u32 s5, s5, s4\ns_lshl_b32 s5, s5, 3\ns_min_u32 s5, s5, 100000')
            a('L_amp:\ns_memrealtime s[96:97]\ns_waitcnt lgkmcnt(0)\ns_sub_u32 s7, s96, s6\ns_cmp_lt_u32 s7, s5\ns_cbranch_scc1 L_amp')
    a('L_end:\ns_endpgm\nL_codeend:')
    a('.resetwait')
    a.extend(ool.ins)

    a('L_fallback:\n.resetwait\ns_nop 15')
    for u in range(2):
        a(f's_add_u32 m0, {sOwn}, {(8+u)*TS - u*2048}\ns_nop 0\nbuffer_load_dwordx4 {vL16}, {WS}, {sKVB} offen offset:{u*2048} sc1 lds')
    a('s_waitcnt vmcnt(0)')
    a(f's_lshl_b32 s3, {sG}, 1\ns_sub_i32 s96, 8, s3\ns_max_i32 s96, s96, 0\ns_sub_u32 s97, {sOwn}, {sKVN}')
    for u in range(2):
        sb = SB[0]
        def tile_addr():
            a(f's_mul_i32 s3, s98, {TS}\ns_cmp_ge_u32 s98, 8\ns_cselect_b32 s7, s97, 0\ns_add_u32 s3, s3, s7')
            a(f'v_add_u32 v112, s3, v{vK}\nv_add_u32 v113, s3, v{vVa}\nv_add_u32 v114, s3, v{vVb}')
        def scores():
            l1, l2 = lab('m'), lab('m')
            a(f'ds_read_b128 {vr(KB,4)}, v112\ns_waitcnt lgkmcnt(0)')
            a(qk(u, sb, '0'))
            a('s_nop 15')
            a(f's_cmp_lg_u32 s98, {8+u}\ns_cbranch_scc1 {l1}')
            for i in range(16): a(f'v_cndmask_b32 v{sb+i}, v{NEG}, v{sb+i}, {mk(i)}')
            a(f'{l1}:\ns_cmp_lg_u32 s98, {u}\ns_cbranch_scc1 {l2}')
            for i in range(16): a(f'v_cndmask_b32 v{sb+i}, v{sb+i}, v{NEG}, {mk(i)}')
            a(f'{l2}:')
        lp = lab('fb1')
        a(f's_max_i32 s98, s96, {u}\nv_mov_b32 v{NM[u]}, v{NEG}')
        a(f'{lp}:')
        tile_addr(); scores()
        for i in range(8): a(f'v_max3_f32 v{NM[u]}, v{NM[u]}, v{sb+2*i}, v{sb+1+2*i}')
        a(f's_add_u32 s98, s98, 1\ns_cmp_le_u32 s98, {8+u}\ns_cbranch_scc1 {lp}')
        a(f'v_mov_b32 v115, v{NM[u]}\n{sw32(NM[u], 115)}\nv_max_f32 v{NM[u]}, v{NM[u]}, v115')
        for i in range(16): a(f'v_mov_b32 v{OA[u]+i}, 0')
        lp = lab('fb2')
        a(f's_max_i32 s98, s96, {u}')
        a(f'{lp}:')
        tile_addr(); scores()
        a(f'ds_read_b128 {vr(VB,4)}, v113\nds_read_b128 {vr(VB+4,4)}, v114')
        for i in range(16): a(f'v_sub_f32 v{sb+i}, v{sb+i}, v{NM[u]}')
        a('s_waitcnt lgkmcnt(0)')
        for h in range(2):
            for i in range(8): a(f'v_exp_f32 v{sb+8*h+i}, v{sb+8*h+i}')
            for i in range(4): a(f'v_cvt_pk_bf16_f32 v{sb+8*h+i}, v{sb+8*h+2*i}, v{sb+8*h+2*i+1}')
            a(pv(u, sb, h))
        a('s_nop 15')
        a(f's_add_u32 s98, s98, 1\ns_cmp_le_u32 s98, {8+u}\ns_cbranch_scc1 {lp}')
    a(f's_cmp_eq_u32 {sL}, 1\ns_cbranch_scc1 L_fbdone1\ns_branch L_fbdone3')

    a.auto_wait()
    nn = a.fix_hazards()
    for b in a.check_branch_hazards(): print('BRANCH HAZARD', b, file=sys.stderr)
    hdr = f'; fused persistent kernel: 256 workgroups (one per CU), generated by a script\n; @launch grid=(256,1,1) block=(256,1,1) lds={LDS_BYTES}\n'
    tail = f'''.section .rodata,"a"
.p2align 6
.amdhsa_kernel {KNAME}
  .amdhsa_next_free_vgpr 512
  .amdhsa_next_free_sgpr 102
  .amdhsa_accum_offset 256
  .amdhsa_group_segment_fixed_size 0
  .amdhsa_kernarg_size 72
  .amdhsa_user_sgpr_count 2
  .amdhsa_user_sgpr_kernarg_segment_ptr 1
  .amdhsa_system_sgpr_workgroup_id_x 1
.end_amdhsa_kernel
'''
    print('instructions', sum(1 for I in a.ins if I.kind not in ('label', 'dir')), 'nop states added', nn, file=sys.stderr)
    if focus is not None: hdr += '; names ' + ' '.join(names) + '\n'
    return hdr + a.text() + tail

if __name__ == '__main__':
    opt = {}
    for x in sys.argv[2:]:
        k, _, v = x.partition('=')
        opt[k] = eval(v) if v else 1
    open(sys.argv[1], 'w').write(gen(opt))
```

```python
import sys, struct
from asmlib import Asm, Ins, vr, weave, place

KNAME = 'interleave_layers__linear_attn_block__sliding_block__prompt_kernel'
WO = 0; T = 65536; S = 131072
TS = 2064
KVN = T
OWN = S + 512
STAT = S + 17024
CS = S + 17536
RES = S + 19072
LDS_BYTES = 163840
H2 = 0x10000; H1 = 0x100000
G0 = 0x300000
oXO = 0; oXX = 0x40000; oST = 0x70000; oFL = 0x78000; oFB = 0x7a000; oKVB = 0x80000
WS_BYTES = 0x2300000
STAMP0 = 0x2300000
OOB = 0x4000000
X0, WA, WOA, WB, WOB, OUT, WS = 's[8:11]', 's[12:15]', 's[16:19]', 's[20:23]', 's[24:27]', 's[28:31]', 's[32:35]'
sG, sJ, sW, sTag, sL, sGb, sEp, sCnt = ['s%d' % i for i in range(36, 44)]
sW14, sWsrc, sW12, sWoSrc, sXoLd, sXxSt, sRow, sFl, sFlOwn, sFast, sH1, sH2, sKVB, sFB, sKVN, sOwn = ['s%d' % i for i in range(44, 60)]
sNb = ['s60', 's61', 's62', 's63']
sSt = 's1'; sPo = 's0'; sVer = 's40'
MASK0 = 64
vLane, vL16, vT, vRSa, vRSb, vCSa, vCSb, vXo, vPG, vWoD, vWoR, vXs, vStamp = ['v%d' % i for i in range(13)]
NE, E6, L2Er, ONES = 13, 14, 15, 16
L2E = 1.4426950408889634
def Wreg(mat, part, s):
    base = {('a', 'k'): ('a', 0), ('a', 'v'): ('a', 64), ('a', 'q'): ('a', 128), ('b', 'q'): ('a', 192), ('b', 'k'): ('v', 128), ('b', 'v'): ('v', 192)}[(mat, part)]
    return base[0], base[1] + 4 * s
def Wfrag(mat, part, s):
    k, b = Wreg(mat, part, s); return vr(b, 4, k)
PARTOFF = {'q': 0, 'k': 1024, 'v': 2048}
PARTI = {'q': 0, 'k': 1, 'v': 2}
def f2u(x): return '0x%08x' % struct.unpack('<I', struct.pack('<f', x))[0]
def M16(d, A, B, C): return f'v_mfma_f32_16x16x32_bf16 {d}, {A}, {B}, {C}'
def M32(d, A, B, C): return f'v_mfma_f32_32x32x16_bf16 {d}, {A}, {B}, {C}'
def pk(op, dst, *srcs):
    ops = []; lo = []; hi = []
    for s in srcs:
        if isinstance(s, tuple):
            n = s[1]; ops.append(vr(n & ~1, 2)); lo.append(n & 1); hi.append(n & 1)
        else:
            assert s % 2 == 0; ops.append(vr(s, 2)); lo.append(0); hi.append(1)
    assert dst % 2 == 0
    f = lambda l: '[' + ','.join(map(str, l)) + ']'
    return f'v_pk_{op}_f32 {vr(dst,2)}, ' + ', '.join(ops) + f' op_sel:{f(lo)} op_sel_hi:{f(hi)}'
def cvt(d, s): return f'v_cvt_pk_bf16_f32 v{d}, v{s}, v{s+1}'
def sw16(x, y): return f'v_permlane16_swap_b32 v{x}, v{y}'
def sw32(x, y): return f'v_permlane32_swap_b32 v{x}, v{y}'
def tok(text, name): return Ins(text, 'tok:' + name)
def lines(s): return [x.strip() for x in s.split('\n') if x.strip()]

def gen(opt):
    profile = opt.get('profile'); reuse = opt.get('reuse', 1)
    a = Asm(); ool = Asm()
    uid = [0]
    def lab(n):
        uid[0] += 1; return f'L_{n}_{uid[0]}'
    focus = opt.get('focus'); names = ['start']
    def stamp(L, i):
        if not profile: return
        if focus is not None:
            if L == focus or i == 12 or (L, i) == (3, 11) or (focus == 9 and i in (3, 7)): fstamp(focus, f'S{L}.{i}')
            return
        a('s_memtime s[96:97]' if profile == 'cyc' else 's_memrealtime s[96:97]')
        a('s_waitcnt lgkmcnt(0)')
        a(f'v_writelane_b32 {vStamp}, s96, {16*L+i}')
    def fstamp(L, name):
        if focus != L: return
        a('s_memtime s[96:97]' if profile == 'cyc' else 's_memrealtime s[96:97]')
        a('s_waitcnt lgkmcnt(0)')
        a(f'v_writelane_b32 {vStamp}, s96, {len(names)}')
        names.append(name)
        assert len(names) <= 64
    def poll_start(vaddr, sbase, vtmp, off=0, n=1):
        return f'buffer_load_dword{"" if n == 1 else "x4"} {vr(vtmp, n)}, {vaddr}, {WS}, {sbase} offen offset:{off} sc1'
    def poll_finish(vaddr, sbase, vtmp, off=0, cmp=None, n=1, drain=True):
        r, c = lab('retry'), lab('chk')
        a(f's_branch {c}\n{r}:')
        a(poll_start(vaddr, sbase, vtmp, off, n), 'nocount')
        a(f's_add_u32 {sCnt}, {sCnt}, 1\ns_cmp_ge_u32 {sCnt}, 0x20000\ns_cbranch_scc1 L_end')
        if drain: a(f'{c}:\ns_waitcnt vmcnt(0)')
        else:
            a('s_waitcnt vmcnt(0)', 'nocount')
            a(f'{c}:\n.waitfor {vr(vtmp, n)}')
        a.extend(cmp or [f'v_cmp_ne_u32 vcc, {sTag}, v{vtmp + n - 1}'])
        a(f's_cbranch_vccnz {r}')
    def poll_multi(vaddr, sbase, regs, off, work):
        K = len(regs); lp, dn = lab('mp'), lab('md')
        cut = [len(work) * (i + 1) // (K + opt.get('mpo', 0)) for i in range(K)]
        prev = 0
        for i in range(K):
            a.extend(work[prev:cut[i]]); prev = cut[i]
            a(poll_start(vaddr, sbase, regs[i], off), 'nocount')
        a.extend(work[prev:])
        a(f'{lp}:')
        for i in range(K):
            a(f's_waitcnt vmcnt({K-1})', 'nocount')
            a(f'v_cmp_ne_u32 vcc, {sTag}, v{regs[i]}\ns_cbranch_vccz {dn}')
            a(poll_start(vaddr, sbase, regs[i], off), 'nocount')
        a(f's_add_u32 {sCnt}, {sCnt}, 1\ns_cmp_lt_u32 {sCnt}, 0x20000\ns_cbranch_scc1 {lp}\ns_endpgm\n{dn}:\n.vmdone')
    def poll_masked(vaddr, sbase, vtmp, off=0, n=1, drain=False):
        r, c = lab('retry'), lab('chk')
        a(f's_branch {c}\n{r}:')
        a(poll_start(vaddr, sbase, vtmp, off, n), 'nocount')
        a(f's_add_u32 {sCnt}, {sCnt}, 1\ns_cmp_ge_u32 {sCnt}, 0x20000\ns_cbranch_scc1 L_end')
        if drain: a(f'{c}:\ns_waitcnt vmcnt(0)')
        else:
            a('s_waitcnt vmcnt(0)', 'nocount')
            a(f'{c}:\n.waitfor {vr(vtmp, n)}')
        a(f'v_cmp_ne_u32 vcc, {sTag}, v{vtmp + n - 1}\ns_and_b64 exec, exec, vcc\ns_cbranch_scc1 {r}\ns_mov_b64 exec, -1')
    def spread(alu, mem, every):
        o = []; mem = list(mem); k = 0
        isv = lambda y: (y.text if isinstance(y, Ins) else y).startswith('buffer_')
        for x in alu:
            if k % every == 0:
                while mem and not isv(mem[0]): o.append(mem.pop(0))
            if k % every == 1 and mem: o.append(mem.pop(0))
            o.append(x); k += 1
        return o + mem
    def fast_stores(stores, wt=False, drain=False):
        if wt:
            for x in stores: a.ins.append(Ins(x.text + ' sc1', x.tag) if isinstance(x, Ins) else Ins(x + ' sc1'))
            return
        s, b = lab('slow'), lab('back')
        a(f's_cbranch_scc1 {s}')
        for x in stores: a.ins.append(x if isinstance(x, Ins) else Ins(x))
        a(f'{b}:')
        ool(f'{s}:')
        for x in stores: ool((x.text if isinstance(x, Ins) else x) + ' sc1')
        if drain: ool('s_waitcnt vmcnt(0)')
        ool(f's_branch {b}')
    HP = 0
    RH = opt.get('rh', 1); AK = opt.get('ak', 1)
    XO = lambda L: oXO + (0 if reuse else L * 0x10000)
    XX = lambda L: (0 if reuse else L * 0x10000)
    ST = lambda L: oST + (0 if reuse else L * 0x1000)

    def w_addr(E, O, R, t):
        o = lines(f'''v_lshrrev_b32 v{t}, 3, v0
        v_and_b32 v{t+1}, 7, v0
        v_lshrrev_b32 v{t+2}, 3, v0
        v_and_b32 v{t+2}, 2, v{t+2}
        v_xor_b32 v{t+1}, v{t+1}, v{t+2}
        v_mul_u32_u24 v{t}, 3072, v{t}
        v_lshl_add_u32 v{E}, v{t+1}, 4, v{t}
        v_xor_b32 v{O}, 64, v{E}
        v_add_u32 v{O}, 24576, v{O}''')
        o += lines(f'''v_lshrrev_b32 v{t}, 4, v0
        v_bfe_u32 v{t+1}, v0, 2, 2
        v_lshl_add_u32 v{t}, v{t}, 3, v{t+1}
        v_and_b32 v{t+1}, 3, v0
        v_lshlrev_b32 v{t+1}, 3, v{t+1}
        v_lshl_add_u32 v{t}, v{t}, 7, v{t+1}
        v_bfe_u32 v{t+1}, v0, 3, 2
        v_xor_b32 v{t+1}, {sW}, v{t+1}
        v_lshl_add_u32 v{R}, v{t+1}, 5, v{t}''')
        return o
    def w_dma(m, p, kq, slot, E, O, name):
        o = []
        for i in range(4):
            o.append(f's_add_u32 m0, {sW12}, {slot + i*1024}')
            if i % 2 == 0: o.append(f's_add_u32 s7, {sWsrc}, {(128*kq + 8*i)*3072 + PARTOFF[p]}')
            o.append(tok(f'buffer_load_dwordx4 v{E if i % 2 == 0 else O}, {WA if m == "a" else WB}, s7 offen lds', name))
        return o
    def w_read(m, p, kq, R, off):
        o = []
        for s2 in range(4):
            k, b = Wreg(m, p, 4*kq + s2)
            for hi in range(2): o.append(f'ds_read_b64_tr_b16 {vr(b+2*hi, 2, k)}, v{R} offset:{off + s2*4096 + hi*512}')
        return o
    def cs_mfma(m, p, d, lo=0, hi=16, one=ONES):
        return [M16(vr(d,4), vr(one,4), Wfrag(m,p,s), '0' if s == 0 else vr(d,4)) for s in range(lo, hi)]
    def cs_write(m, p, d): return f'ds_write_b32 {vCSb}, v{d} offset:{(0 if m == "a" else 768) + PARTI[p]*64}'
    def consts(): return [f'v_mov_b32 v{E6}, {f2u(1e-6)}', f'v_mov_b32 v{L2Er}, {f2u(L2E)}', f'v_mov_b32 v{NE}, {f2u(-1e-6*L2E)}'] + ones()
    def ones(b=ONES): return [f'v_mov_b32 v{b+i}, 0x3f803f80' for i in range(4)]
    def poison(t, sb, off):
        return [[f'v_mov_b32 v{t+i}, -1' for i in range(4)] + [f's_add_u32 s7, {sb}, {off}']] + [[f'buffer_store_dwordx4 {vr(t,4)}, {vL16}, {WS}, s7 offen offset:{i*1024} sc1'] for i in range(4)]
    def wo_pf(srd, t, full=False):
        o = ['s_lshr_b32 s7, s2, 3', 's_lshl_b32 s7, s7, 14', f's_add_u32 s7, s7, {sW12}']
        if full: return o + [f'v_and_b32 v{t}, 31, v0', f'v_lshlrev_b32 v{t}, 7, v{t}', f'buffer_load_dword v{t+1}, v{t}, {srd}, s7 offen']
        return o + [f'v_and_b32 v{t}, 3, v0', f'v_lshlrev_b32 v{t}, 10, v{t}', f'buffer_load_dword v{t+1}, v{t}, {srd}, s7 offen offset:384']
    def st_addr(d, t): return lines(f'''v_and_b32 v{d}, 15, v0
        v_lshrrev_b32 v{t}, 5, v0
        v_lshlrev_b32 v{d}, 4, v{d}
        v_lshl_add_u32 v{d}, v{t}, 2, v{d}
        v_and_b32 v{t}, 16, v0
        v_lshl_add_u32 v{d}, v{t}, 22, v{d}''')
    def po_o(m1): return [f's_add_u32 s3, {sGb}, {sPo}', tok(f'buffer_store_dword v{m1}, {vXo}, {WS}, s3 offen', 'poo'), 's_add_u32 s3, s3, 32768', tok(f'buffer_store_dword v{m1}, {vXo}, {WS}, s3 offen', 'poo')] if HP else []
    def po_s(m1, ad): return [f's_add_u32 s3, {sSt}, {sPo}', f's_add_u32 s3, s3, {oST}', tok(f'buffer_store_dword v{m1}, v{ad}, {WS}, s3 offen', 'pox')]
    def po_x(m1): return [f's_add_u32 s3, {sXxSt}, {sPo}', tok(f'buffer_store_dword v{m1}, {vXs}, {WS}, s3 offen', 'pox'), tok(f'buffer_store_dword v{m1}, {vXs}, {WS}, s3 offen offset:1024', 'pox')]
    def code_pf(L, t):
        if not opt.get('cpf', 1): return []
        p = lab('pc')
        return lines(f'''s_getpc_b64 s[100:101]
        {p}:
        s_lshr_b32 s7, s2, 3
        s_lshl_b32 s7, s7, 2
        s_add_u32 s7, s7, {sW}
        v_and_b32 v{t}, 1, v0
        v_lshl_add_u32 v{t}, v{t}, 7, s7
        v_lshlrev_b32 v{t}, 7, v{t}
        v_add_u32 v{t}, L_entry{L}-{p}, v{t}
        v_min_u32 v{t}, {"L_codeend" if L == 3 else "L_entry%d" % (L+1)}-{p}-4, v{t}
        global_load_dword v{t+1}, v{t}, s[100:101]''')
    def stats_fin(vs, vq, vaddr, t1):
        return lines(f'''v_mul_f32 v{vs}, {f2u(-1/512)}, v{vs}
        v_mul_f32 v{vq}, {f2u(1/512)}, v{vq}
        v_fma_f32 v{vq}, -v{vs}, v{vs}, v{vq}
        v_maximum3_f32 v{vq}, v{vq}, 0, 0
        v_add_f32 v{vq}, {f2u(1e-5)}, v{vq}
        v_rsq_f32 v{t1}, v{vq}
        v_mul_f32 v{vs}, v{vs}, v{t1}''') + [tok(f'ds_write2st64_b32 v{vaddr}, v{t1}, v{vs} offset0:0 offset1:1', 'stw')]

    a(f'.amdgcn_target "amdgcn-amd-amdhsa--gfx950"\n.text\n.globl {KNAME}\n.p2align 8\n.type {KNAME},@function\n{KNAME}:')
    if profile: a('s_memtime s[100:101]' if profile == 'cyc' else 's_memrealtime s[100:101]')
    a('s_cmp_ge_u32 s2, 256\ns_cbranch_scc1 L_end')
    srds = ((8, 0, 0x200000), (12, 8, 0x180000), (32, 64, WS_BYTES + (0x40000 if profile else 0)), (16, 16, 0x80000), (20, 32, 0x180000), (24, 40, 0x80000), (28, 48, 0x200000))
    for b_, o_, n_ in srds: a(f's_load_dwordx2 s[{b_}:{b_+1}], s[0:1], {o_}')
    a('s_lshr_b32 s4, s2, 3')
    if opt.get('codepf', 1):
        a('s_getpc_b64 s[82:83]\nL_pc0:')
        a('v_lshrrev_b32 v1, 6, v0\nv_lshl_add_u32 v1, s4, 2, v1\nv_and_b32 v2, 3, v0\nv_lshl_add_u32 v1, v1, 2, v2\nv_lshlrev_b32 v1, 7, v1')
        a('v_min_u32 v1, L_codeend-L_pc0-4, v1')
        a('global_load_dword v127, v1, s[82:83]')
    a(f's_and_b32 s3, s2, 7\ns_lshr_b32 s5, s4, 3\ns_lshl_b32 s3, s3, 2\ns_add_u32 {sG}, s3, s5\ns_and_b32 {sJ}, s4, 7')
    a(f'v_lshrrev_b32 v2, 6, v0\nv_and_b32 v0, 63, v0\nv_readfirstlane_b32 {sW}, v2')
    if profile: a(f'v_mov_b32 {vStamp}, 0')
    a(f's_lshl_b32 s84, s4, 2\ns_add_u32 s84, s84, {sW}\ns_lshl_b32 s85, s2, 2\ns_add_u32 s85, s85, {sW}')
    a(f'v_lshlrev_b32 v26, 7, v0\nv_subrev_u32 v27, 16, v0\nv_lshlrev_b32 v28, 10, v27\nv_mov_b32 v29, {OOB}')
    def pf_addr(d, n, cs, xs):
        return lines(f'''s_mul_i32 s86, s85, {cs}
        s_mul_i32 s87, s84, {xs}
        s_add_u32 s87, s87, 384
        v_add_u32 v30, s86, v26
        v_cmp_gt_u32 vcc, {n}, v0
        v_add_u32 v31, s87, v28
        s_nop 0
        v_cndmask_b32 v{d}, v29, v30, vcc
        v_cmp_gt_u32 vcc, {n}, v27
        s_nop 1
        v_cndmask_b32 v{d}, v{d}, v31, vcc''')
    a.extend(pf_addr(255, 12, 1536, 12288))
    a(f's_and_b32 s88, s2, 7\ns_lshl_b32 s88, s88, 18\ns_lshl_b32 s86, s84, 11\ns_add_u32 s88, s88, s86\nv_cmp_gt_u32 vcc, 16, v0\nv_cndmask_b32 v32, v29, v26, vcc')
    for b_, o_, n_ in srds: a(f's_mov_b32 s{b_+2}, {hex(n_)}\ns_mov_b32 s{b_+3}, 0x20000')
    a.extend(pf_addr(254, 4, 512, 4096))
    if opt.get('noj3'):
        a('v_cmp_gt_u32 vcc, 16, v0\nv_cndmask_b32 v250, v29, v255, vcc\nv_cndmask_b32 v254, v29, v254, vcc')
    a('s_waitcnt lgkmcnt(0)')
    if opt.get('pf', 1): a(f'buffer_load_dword v127, v32, {X0}, s88 offen\nbuffer_load_dword v127, v255, {WA}, 0 offen')
    tlb = opt.get('tlb', 0)
    if tlb & 1:
        a(f'v_add_u32 v33, {sG}, v0\nv_subrev_u32 v33, 4, v33\nv_max_i32 v33, 3, v33\nv_writelane_b32 v33, 0, 0\nv_writelane_b32 v33, 3, 1\nv_writelane_b32 v33, 3, 2\nv_cmp_gt_u32 vcc, 8, v0\nv_lshlrev_b32 v33, 20, v33\nv_add_u32 v33, 0xfff80, v33')
        a(f'v_cndmask_b32 v33, v29, v33, vcc\nbuffer_load_dword v127, v33, {WS}, 0 offen')
    if tlb & 2:
        a('v_cmp_eq_u32 vcc, 0, v0\nv_cndmask_b32 v34, v29, v0, vcc')
        for r_ in (WB, WOA, WOB): a(f'buffer_load_dword v127, v34, {r_}, 0 offen')
    if profile: a(f'v_writelane_b32 {vStamp}, s100, 0')
    stamp(0, 1)
    a(f's_load_dword {sEp}, s[32:33], 0')
    a(f'v_lshlrev_b32 {vL16}, 4, v0')
    a('v_lshrrev_b32 v22, 2, v0\nv_and_b32 v23, 3, v0\nv_lshrrev_b32 v24, 4, v0\nv_and_b32 v24, 2, v24\nv_xor_b32 v23, v23, v24\nv_lshlrev_b32 v22, 10, v22\nv_lshl_add_u32 v118, v23, 4, v22')
    WE, WOd, WR = 124, 125, 126
    wa = w_addr(WE, WOd, WR, 24)
    a.extend(wa[:9])
    a(f's_lshl_b32 {sW14}, {sW}, 14\ns_lshl_b32 {sW12}, {sW}, 12\ns_lshl_b32 s6, {sJ}, 7')
    a(f's_mul_i32 {sWsrc}, {sW}, {32*3072}\ns_add_u32 {sWsrc}, {sWsrc}, s6')
    a(f's_lshl_b32 s3, {sG}, 16\ns_add_u32 s3, s3, {sW14}\ns_add_u32 {sRow}, s3, s6\ns_add_u32 s5, {sW14}, {T}')
    def x_dma(kq):
        o = []
        for s in range(4*kq, 4*kq+4):
            o += [f's_add_u32 m0, s5, {s*1024 - s*64}', tok(f'buffer_load_dwordx4 v118, {X0}, s3 offen offset:{s*64} lds', f'x{kq}')]
        return o
    ring = [('a','k',0),('a','v',0),('a','k',1),('a','v',1),('a','k',2),('a','v',2),('a','k',3),('a','v',3),('a','q',0),('a','q',1),('a','q',2),('a','q',3)]
    slot = lambda n: [0, 16384, 32768, 49152, S][n % 5]
    rd = lambda n: w_dma(*ring[n], slot(n), WE, WOd, f'r{n}')
    up = [x_dma(0), x_dma(1), x_dma(2), x_dma(3), rd(0), rd(1)]
    nf = opt.get('nf', 0)
    for c in up[:nf]: a.extend(c)
    a.extend(wa[9:])
    a(f'v_add_u32 v123, {S}, v{WR}')
    a('v_and_b32 v20, 15, v0\nv_lshrrev_b32 v21, 4, v0')
    a(f'v_lshlrev_b32 {vRSa}, 4, v21\nv_lshlrev_b32 {vRSb}, 2, v20')
    a(f's_mul_i32 s6, {sW}, 192\ns_add_u32 s6, s6, {CS}')
    a(f'v_add_u32 {vCSa}, s6, {vRSa}\nv_add_u32 {vCSb}, s6, {vRSb}\nv_add_u32 {vRSa}, {STAT}, {vRSa}\nv_add_u32 {vRSb}, {STAT}, {vRSb}')
    a(f'v_lshrrev_b32 v23, 2, v20\nv_and_b32 v23, 2, v23\nv_xor_b32 v24, v21, v23\nv_lshlrev_b32 v24, 4, v24\nv_lshl_add_u32 v24, v20, 6, v24\nv_add_u32 {vT}, {T}, v24')
    a(f'v_add_u32 v122, {sW14}, {vT}')
    a(f'v_and_b32 v25, 1, v21\nv_lshrrev_b32 v26, 1, v21\nv_lshl_add_u32 v27, v25, 1, v26\nv_lshlrev_b32 v28, 4, v20\nv_lshl_add_u32 {vXs}, v27, 8, v28')
    a(f'v_xor_b32 v27, v27, v23\nv_lshlrev_b32 v27, 4, v27\nv_lshl_add_u32 v27, v20, 6, v27\ns_lshl_b32 s6, {sJ}, 11\ns_add_u32 s7, s6, s5\nv_add_u32 v121, s7, v27')
    a(f's_lshl_b32 {sGb}, {sG}, 20\ns_add_u32 {sGb}, {sGb}, {G0}\ns_add_u32 {sXoLd}, {sGb}, {sW14}\ns_add_u32 {sXxSt}, {sXoLd}, s6\ns_add_u32 {sXxSt}, {sXxSt}, {oXX}')
    a(f's_lshl_b32 s6, {sJ}, 2\ns_add_u32 s6, s6, {sW}\ns_lshl_b32 s7, s6, 9')
    a(f'v_lshl_add_u32 v27, v25, 14, v28\nv_lshl_add_u32 v27, v26, 8, v27\nv_add_u32 {vXo}, s7, v27')
    a(f's_lshl_b32 {sH1}, s6, 15\ns_add_u32 {sH1}, {sH1}, {H1}\ns_lshl_b32 {sH2}, s6, 12\ns_add_u32 {sH2}, {sH2}, {H2}')
    a(f's_add_u32 s7, s6, {opt.get("kvrot", 0)}\ns_and_b32 s7, s7, 31\ns_lshl_b32 {sKVB}, s7, 12\ns_add_u32 {sKVB}, {sKVB}, {sGb}\ns_add_u32 {sKVB}, {sKVB}, {oKVB}')
    a(f's_lshl_b32 {sFB}, s6, 7\ns_add_u32 {sFB}, {sFB}, {oFB}')
    a(f's_add_u32 {sFl}, {sGb}, {oFL}\ns_lshl_b32 s6, {sJ}, 2\ns_add_u32 {sFlOwn}, {sFl}, s6\ns_cmp_eq_u32 {sW}, 0\ns_cselect_b32 {sFlOwn}, {sFlOwn}, {OOB}')
    a(f's_lshl_b32 {sWoSrc}, {sW}, 17\ns_lshl_b32 s6, {sJ}, 7\ns_add_u32 {sWoSrc}, {sWoSrc}, s6')
    a(f's_mul_i32 {sKVN}, {sW}, {8*TS}\ns_add_u32 {sKVN}, {sKVN}, {KVN}\ns_mul_i32 {sOwn}, {sW}, {2*TS}\ns_add_u32 {sOwn}, {sOwn}, {OWN - 8*TS}')
    for i in range(4):
        a(f's_sub_u32 s6, {sKVB}, {(i+1) << 20}\ns_cmp_gt_u32 {sG}, {i}\ns_cselect_b32 {sNb[i]}, s6, {OOB}')
    a(f's_mov_b32 {sCnt}, 0\ns_mov_b32 {sL}, 0')
    a(f's_lshr_b32 s6, {sJ}, 1\ns_lshl_b32 s6, s6, 8\ns_and_b32 s7, {sJ}, 1\ns_lshl_b32 s7, s7, 3\ns_add_u32 s6, s6, s7\ns_lshl_b32 s7, {sW}, 10\ns_add_u32 s6, s6, s7\ns_add_u32 {sSt}, s6, {sGb}')
    a(f'v_and_b32 {vPG}, 7, v0\nv_lshlrev_b32 v27, 4, {vPG}\nv_lshlrev_b32 {vPG}, 2, {vPG}\nv_lshrrev_b32 v29, 3, v0\nv_lshl_add_u32 {vWoD}, v29, 12, v27')
    a(f'v_bfe_u32 v27, v0, 2, 2\nv_lshl_add_u32 v29, v26, 2, v25\nv_lshl_add_u32 v29, v27, 3, v29\nv_lshlrev_b32 v29, 7, v29\nv_lshl_add_u32 v29, v27, 5, v29\nv_and_b32 v27, 3, v0\nv_lshl_add_u32 {vWoR}, v27, 3, v29')
    a.extend(consts())
    a('v_and_b32 v28, 31, v0\nv_lshlrev_b32 v29, 2, v26\nv_sub_u32 v28, v28, v29')
    for i in range(16): a(f'v_cmp_le_i32 s[{MASK0+2*i}:{MASK0+2*i+1}], {8*(i>>2) + (i&3)}, v28')
    a(f'v_mov_b32 v29, {OOB}\nv_cmp_eq_u32 vcc, 0, v0\nv_cndmask_b32 v120, v29, v0, vcc')
    xccst = [f'buffer_store_dword v117, v120, {WS}, {sFlOwn} offen offset:256 sc1']
    rest = [f'buffer_load_dword v127, {"v250" if opt.get("noj3") else "v255"}, {WB}, 0 offen', f'buffer_load_dword v127, v254, {WOA}, 0 offen', f'buffer_load_dword v127, v254, {WOB}, 0 offen'] if opt.get('pf', 1) else []
    tx = opt.get('tx', 0)
    a(f's_lshl_b32 s6, {sJ}, 2\ns_add_u32 s6, s6, {sW}\ns_lshl_b32 s7, s6, 11\ns_add_u32 s7, s7, {sGb}')
    a(f'v_lshlrev_b32 v30, 7, v20\nv_lshl_add_u32 v30, v25, 18, v30\nv_add_u32 v30, s7, v30\nv_cmp_gt_u32 vcc, {32 if tx else 0}, v0\ns_lshl_b32 s6, s6, 7\ns_add_u32 s6, s6, {sGb}\nv_cndmask_b32 v251, v29, v30, vcc')
    a(f's_add_u32 s7, s6, {oST}\nv_writelane_b32 v251, s7, 32\nv_writelane_b32 v251, {sFl}, 33\ns_add_u32 s7, {sFl}, 128\nv_writelane_b32 v251, s7, 34')
    if opt.get('th', 0):
        a(f's_lshl_b32 s7, {sG}, 7\ns_add_u32 s7, s7, {sH2}\nv_writelane_b32 v251, s7, 35\ns_add_u32 s7, s6, {oFB}\nv_writelane_b32 v251, s7, 36\ns_add_u32 s7, s7, 0x1000\nv_writelane_b32 v251, s7, 37')
    def touch2(t):
        if RH or not opt.get('th2', 0): return []
        return lines(f'''s_lshl_b32 s7, {sG}, 10
        s_add_u32 s7, s7, {sH1}
        s_add_u32 s7, s7, 0x100000
        v_and_b32 v{t}, 7, v0
        v_lshl_add_u32 v{t}, v{t}, 7, s7
        s_lshl_b32 s7, {sG}, 7
        s_add_u32 s7, s7, {sH2}
        s_add_u32 s7, s7, 0x20000
        v_writelane_b32 v{t}, s7, 8
        s_add_u32 s7, s99, 0x2000
        v_writelane_b32 v{t}, s7, 9
        s_add_u32 s7, s99, 0x3000
        v_writelane_b32 v{t}, s7, 10
        buffer_load_dword v{t+1}, v{t}, {WS}, 0 offen sc1''')
    a(f'''v_and_b32 v116, 3, v0
    s_lshl_b32 s6, {sW}, 6
    v_add_u32 v253, s6, {vRSb}
    v_bfe_u32 v31, v0, 2, 2
    v_cmp_eq_u32 vcc, v31, v21
    v_mov_b32 v31, {LDS_BYTES - 1024}
    s_lshl_b32 s6, {sW}, 11
    v_cndmask_b32 v253, v31, v253, vcc
    s_add_u32 s6, s6, {RES}
    v_add_u32 v119, s6, {vL16}
    v_cmp_eq_u32 s[98:99], 1, v116
    v_cmp_eq_u32 s[100:101], 2, v116''')
    sm = opt.get('sm', 0)
    def smpf(base, off, n):
        a(off + f'\ns_add_u32 s6, s6, s{base}\ns_addc_u32 s7, s{base+1}, 0')
        for i in range(n): a(f's_load_dword s0, s[6:7], {i*128}', 'nocount')
    gw = f's_lshl_b32 s6, s2, 2\ns_add_u32 s6, s6, {sW}'
    def sm1():
        smpf(20, gw + '\ns_and_b32 s7, s6, 1\ns_lshr_b32 s6, s6, 1\ns_mul_i32 s6, s6, 3\ns_add_u32 s6, s6, s7\ns_add_u32 s6, s6, 1\ns_lshl_b32 s6, s6, 10', 8)
        smpf(16, gw + '\ns_lshl_b32 s6, s6, 9', 4)
    def sm2():
        smpf(20, gw + '\ns_and_b32 s7, s6, 1\ns_lshr_b32 s6, s6, 1\ns_mul_i32 s6, s6, 6\ns_add_u32 s6, s6, s7\ns_lshl_b32 s6, s6, 9', 4)
        smpf(24, gw + '\ns_lshl_b32 s6, s6, 9', 4)
    if sm in (1, 2): sm1()
    if sm == 2: sm2()
    for i, c in enumerate(up[nf:]):
        a.extend(c)
        if nf + i in (1, 3): a('s_barrier')
        if sm == 3 and nf + i == 1: sm1()
        if sm == 4 and nf + i == 1: sm1(); sm2()
    a(f's_waitcnt lgkmcnt(0)\ns_add_u32 {sEp}, {sEp}, 1\ns_mul_i32 {sTag}, {sEp}, 0x9E3779B1\ns_cmp_eq_u32 {sTag}, -1\ns_addc_u32 {sEp}, {sEp}, 0\ns_mul_i32 {sTag}, {sEp}, 0x9E3779B1')
    a(f's_getreg_b32 s6, hwreg(HW_REG_XCC_ID, 0, 4)\ns_add_u32 s6, s6, {sTag}\nv_mov_b32 v117, s6')
    fstamp(0, 'issued')
    acc0 = lambda p, t: 20 + 8*t + (0 if p == 'k' else 4)
    XR0 = 52
    GR, SM, CK, CV, OT = 84, 88, 92, 96, 100
    touch = [f'buffer_load_dword v127, v251, {WS}, 0 offen sc1', poll_start(vPG, sFl, 252, 256)]
    if opt.get('notouch'): touch = touch[1:]
    if opt.get('norest'): rest = []
    xlate = []
    if opt.get('xlate'): xlate = touch[-1:]; touch = touch[:-1]
    later = {0: rd(4) + rd(5) + rd(6) + xccst, 1: rd(7) + rd(8), 2: rd(9) + rd(10), 3: rd(11) + rest + touch}
    post = []; head = {}
    qr = opt.get('qr', 2)
    def w_reg(n, base):
        m, p, kq = ring[n]; o = []
        for i in range(4):
            if i % 2 == 0: o.append(f's_add_u32 s7, {sWsrc}, {(128*kq + 8*i)*3072 + PARTOFF[p]}')
            o.append(f'buffer_load_dwordx4 {vr(base + 4*i, 4)}, v{WE if i % 2 == 0 else WOd}, {WA}, s7 offen')
        return o
    def w_put(n, base): return [tok(f'ds_write_b128 v118, {vr(base + 4*i, 4)} offset:{slot(n) + i*1024}', 'put') for i in range(4)]
    if qr == 1:
        q3 = w_reg(11, 176); head = {1: q3[:3], 2: q3[3:], 3: rest[:2]}; later[3] = rest[2:] + touch
        post = [f'v_add_u32 v118, {sW12}, {vL16}'] + w_put(11, 176)
    if qr == 2:
        q2, q3 = w_reg(10, 176), w_reg(11, 192)
        head = {1: q2[:3], 2: q3[3:]}; later[1] = rd(7) + rd(8) + q2[3:] + q3[:3]; later[2] = rd(9) + rest + touch; later[3] = []
        post = [f'v_add_u32 v118, {sW12}, {vL16}'] + w_put(10, 176) + w_put(11, 192)
    RS0 = lambda t: 128 + 8*t
    B0 = lambda t: 160 + 4*t
    wr = lambda n: w_read(*ring[n], WR if slot(n) < 65536 else 123, slot(n) if slot(n) < 65536 else 0)
    rdx = lambda N: f'ds_read_b128 {vr(XR0 + 4*(N % 8), 4)}, {vT} offset:{((N & 3)*16 + (N >> 2))*1024}'
    a('.waitfor tok:x3')
    a.extend([f'ds_read_b128 {vr(176 + 4*s, 4)}, v122 offset:{s*1024}' for s in range(8)])
    main = []
    for s in range(16):
        x = vr(176 + 4*s, 4)
        main += [M16(vr(GR,4), x, x, '0' if s == 0 else vr(GR,4)), M16(vr(SM,4), vr(ONES,4), x, '0' if s == 0 else vr(SM,4))]
        if s < 8: main.append(f'ds_read_b128 {vr(176 + 4*(s+8), 4)}, v122 offset:{(s+8)*1024}')
    main, left = place(main, rd(2) + rd(3), 1, 4)
    a.extend(main + left)
    fstamp(0, 'stats')
    a('.waitfor tok:r0 tok:r1\ns_barrier')
    fstamp(0, 'step0')
    a.extend(wr(0) + wr(1)[:4])
    for kq in range(4):
        main = cs_mfma('a', 'k', CK, 4*kq, 4*kq+4) + cs_mfma('a', 'v', CV, 4*kq, 4*kq+4)
        main += [f'.waitfor tok:stw', 's_barrier']
        for n in range(16):
            N = 16*kq + n; t, s = N & 3, N >> 2
            x = vr(XR0 + 4*(N % 8), 4)
            if n % 4 == 0: main.append(f'.waitfor {vr(XR0 + 4*((N+3) % 8), 4)}')
            for p in 'kv':
                d = vr(acc0(p, t), 4); main.append(M16(d, x, Wfrag('a', p, s), '0' if s == 0 else d))
            if n == 9 and kq < 3: main += [f'.waitfor tok:r{2*kq+2} tok:r{2*kq+3}', 's_barrier']
            if N + 7 < 64: main.append(rdx(N + 7))
        main, left = place(main, head.get(kq, []), 1, 4); assert not left
        if kq == 3 and opt.get('po', 2) == 1: main, left = place(main, [y for x in poison(240, sKVB, 0) for y in x], 3, 10); assert not left
        main, left = place(main, later[kq], 1 if kq == 0 else 9, 3 if kq == 0 or (kq == 1 and qr == 2) else 4)
        fill = wr(2*kq + 1)[4:] + ([rdx(N) for N in range(7)] if kq == 0 else [])
        if kq == 0:
            fill += ['v_cmp_eq_u32 vcc, 3, v116', f'v_cndmask_b32 v{GR}, v{GR}, v{GR+1}, s[98:99]', f'v_cndmask_b32 v{GR}, v{GR}, v{GR+2}, s[100:101]', f'v_cndmask_b32 v{GR}, v{GR}, v{GR+3}, vcc'] + stats_fin(SM, GR, 253, 116)
        if kq == 2:
            fill += [('at', 9)] + [f'ds_read_b128 {vr(RS0(t)+4*h,4)}, {vRSa} offset:{256*h+t*64}' for t in range(4) for h in range(2)]
        if kq < 3: fill += [('at', 29)] + wr(2*kq + 2) + wr(2*kq + 3)[:4]
        else:
            fill += [('at', 13), cs_write('a', 'k', CK), cs_write('a', 'v', CV)]
            for t in range(4):
                fill += [f'v_fma_f32 v{B0(t)+i}, v{RS0(t)+4+i}, v{CK}, v{E6}' for i in range(4)] + [f'v_mul_f32 v{RS0(t)+4+i}, v{RS0(t)+4+i}, v{CV}' for i in range(4)]
        a.extend(weave(main, fill) + left)
        fstamp(0, f'step{kq+1}')
    stamp(0, 2)
    PK, VV, KVr, Zr = 80, 88, 96, 100
    def epi_A_pk(K, V, RS, MR, B, csk, csv, t):
        o = []
        o += [pk('fma', B+i, MR+i, ('b', csk), ('b', E6)) for i in (0, 2)]
        o += [pk('mul', MR+i, MR+i, ('b', csv)) for i in (0, 2)]
        o2 = [pk('fma', K+i, K+i, RS+i, B+i) for i in (0, 2)]
        o2 += [pk('fma', V+i, V+i, RS+i, MR+i) for i in (0, 2)]
        o2 += [pk('fma', B+i, K+i, ('b', L2Er), ('b', NE)) for i in (0, 2)]
        o2 += [f'v_exp_f32_e64 v{B+i}, v{B+i} clamp' for i in range(4)]
        o2 += [f'v_max_f32 v{K+i}, v{K+i}, v{E6}' for i in range(4)]
        o2 += [cvt(VV+2*t, V), cvt(VV+2*t+1, V+2)]
        o2 += [pk('add', K+i, K+i, B+i) for i in (0, 2)]
        o2 += [cvt(PK+2*t, K), cvt(PK+2*t+1, K+2)]
        return o, o2
    for t in range(4): a.extend(epi_A_pk(acc0('k', t), acc0('v', t), RS0(t), RS0(t)+4, B0(t), CK, CV, t)[1])
    def kv_mfma(h): return [M16(vr(KVr,4), vr(PK+4*h,4), vr(VV+4*h,4), '0' if h == 0 else vr(KVr,4)), M16(vr(Zr,4), vr(PK+4*h,4), vr(ONES,4), '0' if h == 0 else vr(Zr,4))]
    a.extend(kv_mfma(0) + kv_mfma(1))

    QA, XRq = 28, 44
    QF = [20, 24]; OA = [28, 44]
    def wo_xor(t): return [f'v_xor_b32 v{t+i}, {32*(i+1)}, {vWoD}' for i in range(3)]
    def wo_dma(srd, t, gs):
        o = []
        for g in gs:
            o += [f's_add_u32 m0, {sW14}, {WO + g*4096}', f's_add_u32 s7, {sWoSrc}, {g*32768}']
            for i in range(4): o.append(tok(f'buffer_load_dwordx4 {vWoD if i == 0 else "v%d" % (t+i-1)}, {srd}, s7 offen offset:{i*1024} lds', 'wo'))
        return o
    def q_pass(mat, ringb, fill, mem, mstart, forced, cut=None):
        reads = [(t, s) for s in range(16) for t in range(4)]
        R = len(ringb); D = R - 1
        rdx = lambda n: f'ds_read_b128 {vr(ringb[n % R], 4)}, {vT} offset:{(reads[n][0]*16 + reads[n][1])*1024}'
        main = [rdx(n) for n in range(D)]
        for n, (t, s) in enumerate(reads):
            if n % 4 == 0 and n: main.append(f'.waitfor {vr(ringb[(n+3) % R], 4)}')
            d = vr(QA + 4*t, 4); main.append(M16(d, Wfrag(mat, 'q', s), vr(ringb[n % R], 4), '0' if s == 0 else d))
            if n + D < 64: main.append(rdx(n + D))
            main += forced.get(n, [])
        main, left = place(main, mem, mstart, 4)
        o = weave(main, fill) + left
        if cut is None: a.extend(o); return []
        idx = [k for k, x in enumerate(o) if (x.text if isinstance(x, Ins) else x).startswith('v_mfma')][cut]
        a.extend(o[:idx]); return o[idx:]
    def flag_line(t):
        return [f'v_mov_b32 v{t+i}, {sTag}' for i in range(4 if opt.get('h4', 1) or opt.get('race') else 1)] + lines(f'''v_mov_b32 v{t+4}, {OOB}
        v_cmp_gt_u32 vcc, {8 if opt.get('h4', 1) else 1}, v0
        v_cndmask_b32 v{t+4}, v{t+4}, {vL16}, vcc''')
    def xcheck(L, ops):
        if HP: a(f'v_cmp_u_f32 vcc, {ops}\ns_cbranch_vccnz L_xre{L}\nL_xok{L}:')
    def passes(L, mat, fills, mems, shadow=[], extra0=[], forced={}):
        a(f'L_entry{L}:')
        accp = lambda p, t: 20 + 8*(t & 1) + (0 if p == 'k' else 4)
        XR = 36
        dma = lambda n, name: [tok(f'buffer_load_dwordx4 {vL16}, {WS}, s3 offen offset:{i*1024} sc1 lds', name) for i in range(n)]
        fair = ['s_barrier'] if opt.get('fair', 1) else []
        a.extend(dma(2, 't0a'))
        a('s_add_u32 m0, m0, 8192\ns_add_u32 s3, s3, 8192')
        a.extend(fair + dma(2, 't0b'))
        a(f'buffer_load_dwordx4 v[112:115], {vL16}, {WS}, s6 offen sc1')
        nxt = lambda t: [f's_add_u32 m0, s5, {t*16384}', f's_add_u32 s3, s4, {t*16384}'] + dma(4, f't{t}')
        n1_ = nxt(1); a.extend(n1_[:2] + fair + n1_[2:2 + opt.get('t1n', 2)])
        stat = lines(f'''v_add_f32 v112, v112, v114
        v_add_f32 v113, v113, v115
        {sw32(112,113)}
        v_add_f32 v112, v112, v113
        v_mov_b32 v113, v112
        {sw16(112,113)}
        v_add_f32 v112, v112, v113
        v_mov_b32 v113, v112
        {sw32(112,113)}''') + stats_fin(112, 113, 119, 114)
        a.extend(shadow)
        a('.waitfor tok:t0a tok:shadow\ns_barrier')
        stamp(L, 1)
        rdx = lambda n: f'ds_read_b128 {vr(XR + 4*(n % 8), 4)}, {vT} offset:{n*1024}'
        D = 7
        a.extend([rdx(n) for n in range(D)])
        pend = n1_[2 + opt.get('t1n', 2):]
        for t in range(4):
            main = []
            for s in range(16):
                n = 16*t + s; x = vr(XR + 4*(n % 8), 4)
                if n % 4 == 0 and n: main.append(f'.waitfor {vr(XR + 4*((n+3) % 8), 4)}')
                for p in 'kv':
                    d = vr(accp(p, t), 4); w = Wfrag(mat, p, s)
                    A, B = (w, x) if (mat == 'b' and p == 'k') else (x, w)
                    main.append(M16(d, A, B, '0' if s == 0 else d))
                m = n + D
                if m == 10: main += ['.waitfor tok:t0b', 's_barrier', rdx(8), rdx(9)]
                if m == 18: main += ['.waitfor tok:t1 tok:stw', 's_barrier', rdx(16), rdx(17)]
                if m in (32, 48): main += [f'.waitfor tok:t{m//16}', 's_barrier']
                if m < 64 and m not in (8, 9, 16, 17): main.append(rdx(m))
                main += forced.get(n, [])
                if opt.get('fine') and focus == L and t == 0 and n in (0, 2, 3, 7, 10, 11, 13):
                    main += ['s_memtime s[96:97]' if profile == 'cyc' else 's_memrealtime s[96:97]', 's_waitcnt lgkmcnt(0)', f'v_writelane_b32 {vStamp}, s96, {len(names)}']; names.append(f'p0n{n}')
            f = fills[t]
            if t == 0: f = [('at', 5)] + stat + f; main = extra0 + main
            mem = pend + (nxt(2) if t == 0 else []) + (nxt(3) if t == opt.get('t3p', 0) else []) + mems[t]
            main, pend = place(main, mem, 1, opt.get('ds', 4) if t == 0 else 4)
            a.extend(weave(main, f))
            fstamp(L, f'pass{t}')
        assert not pend
        return accp
    def entry_prep(L):
        return lines(f'''s_lshl_b32 s6, {sW}, 11
        s_add_u32 s4, {sGb}, {oXX + XX(L-1)}
        s_add_u32 s3, s4, s6
        s_add_u32 m0, s6, {T}
        s_add_u32 s4, s4, {sW12}
        s_add_u32 s5, {sW12}, {T}
        s_lshl_b32 s6, {sW}, 6
        v_add_u32 v119, s6, {vRSb}
        s_lshl_b32 s6, {sW}, 10
        s_add_u32 s6, s6, {sGb}
        s_add_u32 s6, s6, {ST(L-1)}
        v_add_u32 {vT}, {T}, {vL16}''')

    def A_passes(L):
        RS, MR, B = 68, 72, 76
        accp = lambda p, t: 20 + 8*(t & 1) + (0 if p == 'k' else 4)
        def prep(t):
            o = [f'ds_read_b128 {vr(MR,4)}, {vRSa} offset:{256+t*64}', f'ds_read_b128 {vr(RS,4)}, {vRSa} offset:{t*64}']
            o2 = [f'.waitfor {vr(RS,4)}'] + [f'v_fma_f32 v{108+i}, v{MR+i}, v104, v{E6}' for i in range(4)]
            o2 += [f'v_mul_f32 v{MR+i}, v{MR+i}, v105' for i in range(4)]
            return o, o2
        def fin(t):
            K, V = accp('k', t), accp('v', t)
            r, p2 = prep(t + 1)
            o = [('at', 3)] + [f'v_fma_f32 v{K+i}, v{K+i}, v{RS+i}, v{108+i}' for i in range(4)]
            o += [f'v_fma_f32 v{V+i}, v{V+i}, v{RS+i}, v{MR+i}' for i in range(4)]
            o += r
            o += [f'v_fma_f32 v{B+i}, v{K+i}, v{L2Er}, v{NE}' for i in range(4)]
            o += [cvt(VV+2*t, V), cvt(VV+2*t+1, V+2)]
            for i in range(4): o += [f'v_exp_f32_e64 v{B+i}, v{B+i} clamp', f'v_max_f32 v{K+i}, v{K+i}, v{E6}']
            o += [f'v_add_f32 v{K+i}, v{K+i}, v{B+i}' for i in range(4)]
            o += [cvt(PK+2*t, K), cvt(PK+2*t+1, K+2)]
            return o + p2
        r0, p0 = prep(0)
        fills = [[f'ds_read2_b32 v[104:105], {vCSb} offset0:16 offset1:32', ('at', 25)] + r0 + [('at', 28)] + p0, fin(0), fin(1), kv_mfma(0) + fin(2)]
        passes(L, 'a', fills, [[], [], [], []])
        stamp(L, 2)
        o, o2 = epi_A_pk(accp('k', 3), accp('v', 3), RS, MR, 108, 104, 105, 3)
        a.extend(o2 + kv_mfma(1))
    def dppm(d, src, ctl, bank=0xf): return f'v_mov_b32_dpp v{d}, v{src} {ctl} row_mask:0xf bank_mask:{hex(bank)}'
    def ror(r, sh): return f'v_add_f32_dpp v{r}, v{r}, v{r} row_ror:{sh} row_mask:0xf bank_mask:0xf'
    B2 = [(0, 'k', 1), (1, 'k', 2), (2, 'k', 3), (3, 'v', 0)]; W2 = opt.get('w2', 2)
    def A_tail(L):
        it = 0 if RH else L >> 1
        if RH and L == 2: a(f's_add_u32 {sTag}, {sTag}, 1')
        a(f's_lshl_b32 s3, {sG}, 10\ns_add_u32 s4, {sH1}, {it*0x100000}\ns_add_u32 s5, s4, s3\ns_lshl_b32 s3, {sG}, 5\ns_add_u32 s4, s4, s3')
        a(f's_add_u32 s6, {sH2}, {it*0x20000}\ns_lshl_b32 s3, {sG}, 7')
        dz = [dppm(Zr, Zr+i, 'quad_perm:[0,1,2,3]', 1 << i) for i in (1, 2, 3)]
        a.extend([dz[0], cvt(99, 98), cvt(98, 96), dz[1], f'v_mov_b32 v101, {sTag}', 's_add_u32 s3, s6, s3', dz[2]])
        if L: xcheck(L, 'v96, v96')
        a.ins.append(tok(f'buffer_store_dwordx4 v[98:101], {vL16}, {WS}, s5 offen sc1', 'h1'))
        stamp(L, 3)
        adr = lines(f'''v_lshrrev_b32 v112, 1, v0
        v_and_b32 v116, 1, v0
        v_lshlrev_b32 v116, 4, v116
        v_lshl_add_u32 v117, v112, 7, v116
        v_lshl_add_u32 v116, v112, 10, v116
        v_mov_b32 v112, {OOB}
        v_cmp_gt_u32 vcc, 8, v0''') + wo_xor(113) + [f'v_cndmask_b32 v112, v112, {vL16}, vcc']
        p1 = ('v116', 's4', 104, 0); p2 = ('v117', 's6', 96, 0)
        ringb = list(range(44, 92, 4))
        n1 = opt.get('n1', 1)
        if L == 0:
            a.extend(post)
            a('ds_read_b128 v[44:47], v121\nds_read_b128 v[48:51], v121 offset:1024')
            a.extend(adr)
            a('ds_write_b128 v119, v[44:47]\nds_write_b128 v119, v[48:51] offset:1024')
            a('.waitfor tok:r8 tok:r9 tok:r10 tok:r11 tok:put\ns_barrier')
            fstamp(0, 'r11')
            for n in range(8, 12): a.extend(wr(n))
            stp = lambda nm: (names.append(nm) or ['s_memrealtime s[96:97]', 's_waitcnt lgkmcnt(0)', f'v_writelane_b32 {vStamp}, s96, {len(names)-1}']) if focus == 0 else []
            P1 = opt.get('p1a', 4); n1 = opt.get('n10', 3)
            q2nd = q_pass('a', ringb, [], wo_dma(WOA, 113, range(n1)), 13, cut=opt.get('cut0', 40), forced={8: ['s_barrier'], P1: stp('preh1') + ['.waitfor tok:h1'] + stp('h1ack') + [poll_start(*p1, n=4)]})
        else:
            a.extend(adr[7:10])
            q2nd = q_pass('a', ringb, adr[:7] + adr[10:], wo_dma(WOA, 113, range(n1)), 2, cut=opt.get('cut2'), forced={opt.get('p1b', 46): ['.waitfor tok:h1', poll_start(*p1, n=4)]})
        qrd = ([f'ds_read_b128 v[76:79], {vCSa}'] if L else []) + [f'ds_read2_b32 {vr(80+2*t,2)}, {vRSb} offset0:{t*16} offset1:{64+t*16}' for t in range(4)]
        if not q2nd: a.extend(qrd)
        stamp(L, 4)
        poll_masked(*p1, n=4)
        fstamp(L, 'hop1')
        a(f'''v_lshlrev_b32 v108, 16, v104
        v_and_b32 v109, 0xffff0000, v104
        v_lshlrev_b32 v110, 16, v105
        v_and_b32 v111, 0xffff0000, v105
        v_mov_b32 v104, v106
        {sw32(108, 109)}
        {sw32(110, 111)}
        {sw32(106, 104)}
        v_add_f32 v108, v108, v109
        v_add_f32 v110, v110, v111
        v_add_f32 v106, v106, v104
        v_mov_b32 v104, v106
        {sw16(108, 110)}
        v_add_f32 v108, v108, v110
        {sw16(106, 104)}
        v_add_f32 v106, v106, v104''')
        for sh in (8, 4, 2): a.extend([ror(108, sh), ror(106, sh)])
        a(f'v_mov_b32 v109, v108\n{sw32(108, 109)}\n{cvt(104, 108)}\nv_mov_b32 v105, v104\n{sw16(104, 105)}')
        a.ins.append(tok(f'buffer_store_dwordx4 v[104:107], v112, {WS}, s3 offen sc1', 'h2'))
        fstamp(L, 'reduce')
        if q2nd: a.extend(q2nd + qrd)
        e = []
        for t in range(4):
            q = QA + 4*t; B = 88
            e += [pk('fma', B+i, 76+i, ('b', 81+2*t), ('b', E6)) for i in (0, 2)]
            e += [pk('fma', q+i, q+i, ('b', 80+2*t), B+i) for i in (0, 2)]
            e += [pk('fma', B+i, q+i, ('b', L2Er), ('b', NE)) for i in (0, 2)]
            e += [f'v_exp_f32_e64 v{B+i}, v{B+i} clamp' for i in range(4)]
            e += [f'v_max_f32 v{q+i}, v{q+i}, v{E6}' for i in range(4)]
            e += [pk('add', q+i, q+i, B+i) for i in (0, 2)]
            e += [cvt(20+2*t, q), cvt(21+2*t, q+2)]
        e += [f's_add_u32 s4, {sGb}, {XO(L)}', sw16(20, 22), sw16(21, 23), f's_add_u32 s5, s4, 32768', sw16(24, 26), sw16(25, 27)]
        mem = wo_dma(WOA, 113, range(n1, 4))
        if L == 0:
            a.extend(xlate)
            mem += w_dma('b', 'k', 0, S, WE, WOd, 'b2')
            cq, mem = place(cs_mfma('a', 'q', 92), mem, 2, 4)
            a.extend(cq)
            poll_finish(vPG, sFl, 252, 256, [f'v_subrev_u32 v120, {sTag}, v252', 'v_cmp_lt_u32 vcc, 15, v120'], drain=False)
            a(f'v_readfirstlane_b32 s7, v252\nv_cmp_ne_u32 vcc, s7, v252\ns_cmp_eq_u64 vcc, 0\ns_cselect_b32 {sFast}, {0 if opt.get("slow") else 1}, 0\ns_cselect_b32 {sPo}, {OOB if opt.get("slow") else 0}, {OOB}\ns_mov_b32 {sVer}, 0\n{cs_write("a", "q", 92)}\nds_read_b128 v[76:79], {vCSa}')
        if L == 0 and opt.get('po', 2) == 2 and not AK:
            pz = poison(240, sKVB, 0)
            first = [tok(f'buffer_store_dwordx4 v[240:243], {vXo}, {WS}, {sGb} offen sc1', 'poo'), f's_add_u32 s7, {sGb}, 32768', tok(f'buffer_store_dwordx4 v[240:243], {vXo}, {WS}, s7 offen sc1', 'poo')] if HP else []
            second = [f'buffer_store_dwordx4 v[240:243], {vXs}, {WS}, {sXxSt} offen offset:{i*1024} sc1' for i in range(2)] if HP else []
            mem = pz[0][:4] + first + mem + second + pz[0][4:] + [y for x in pz[1:] for y in x]
        if L == 2 and opt.get('p2', 0): mem = mem + [y for x in poison(92, sKVB, 0x20000) for y in x]
        if L == 2 and HP: mem = ['v_mov_b32 v92, -1'] + po_o(92) + mem
        a.extend(spread(e, mem, opt.get('e0', 10) if L == 0 else opt.get('e2', 7)))
        a('.waitfor tok:h2')
        a(poll_start(*p2, n=4))
        a.extend(code_pf(L + 1, 118))
        if L == 2 and opt.get('pfb', 0): a.extend(wo_pf(WOB, 92, opt.get('pfb', 0) == 2))
        if L == 0:
            if opt.get('po', 2) == 0:
                for x in poison(92, sKVB, 0): a.extend(x)
            a(f'v_add_u32 v122, {T}, v{WR}\ns_barrier')
            for i, p, kq in B2[:W2]: a.extend(w_dma('b', p, kq, T + i*16384, WE, WOd, 'b2'))
        stamp(L, 5)
        poll_masked(*p2, n=4)
        stamp(L, 6)
        a.extend([dppm(108+r, 98, f'row_newbcast:{4*r}') for r in range(4)] + [cvt(98, 108), cvt(99, 110), sw16(96, 98), sw16(97, 99)])
        for u in range(2): a(M32(vr(OA[u],16), 'v[96:99]', vr(QF[u],4), '0'))
        for u in range(2): a(f'v_add_f32 v{OA[u]+8}, v{OA[u]+8}, v{E6}')

    CB, SB, KB, VB = 60, [96, 112], 76, 88
    vK, vVa, vVb, NM, NEG, TMP = 13, 14, 15, [16, 17], 18, 19
    mk = lambda i: f's[{MASK0+2*i}:{MASK0+2*i+1}]'
    def qk(u, sb, c, k=KB): return M32(vr(sb,16), vr(k,4), vr(QF[u],4), c)
    def pv(u, sb, h, init=False): return M32(vr(OA[u],16), vr(VB+4*h,4), vr(sb+8*h,4), '0' if init else vr(OA[u],16))
    def o_store(u): return tok(f'buffer_store_dwordx4 {vr(OA[u]+10,4)}, {vXo}, {WS}, {"s4" if u == 0 else "s5"} offen', 'ost')
    def o_norm(u):
        o = OA[u]
        return [pk('mul', o+i, o+i, ('b', o+8)) for i in range(0, 8, 2)] + [cvt(o+10+i, o+2*i) for i in range(4)]
    def B_prep(L):
        o = lines(f'''v_mov_b32 v60, {sKVN}
        v_mov_b32 v61, {sOwn}
        v_cmp_gt_u32 vcc, 8, v0
        v_mul_u32_u24 v62, {TS}, v0
        s_lshl_b32 s7, {sG}, 1
        v_cndmask_b32 v60, v61, v60, vcc
        v_add_u32 v61, s7, v0
        v_cmp_le_u32 vcc, 8, v61
        v_add3_u32 v60, v60, v62, 64
        v_mov_b32 v62, 0x3f803f80
        v_cndmask_b32 v17, 0, v62, vcc
        v_cmp_gt_u32 vcc, 10, v0
        v_add_u32 v60, {2048-64}, v60
        v_mov_b32 v63, {LDS_BYTES - 2048}
        v_cndmask_b32 v16, v63, v60, vcc
        v_lshrrev_b32 v60, 5, v0
        v_and_b32 v61, 15, v0
        v_lshlrev_b32 v61, 4, v61
        v_lshl_add_u32 v60, v60, 8, v61
        v_and_b32 v63, 16, v0
        v_cmp_eq_u32 vcc, 0, v63
        v_add_u32 v60, 1024, v60
        v_add_u32 v61, 512, v60
        v_mov_b32 v62, 2048
        v_cndmask_b32 v60, v62, v60, vcc
        v_cndmask_b32 v61, v62, v61, vcc
        v_add_u32 v{vK}, {sKVN}, {vL16}
        v_add_u32 v{vVa}, {sOwn}, v60
        v_add_u32 v{vVb}, {sOwn}, v61
        v_and_b32 v60, 3, v0
        v_sub_u32 v60, {sG}, v60
        v_subrev_u32 v60, 1, v60
        v_cmp_gt_i32 vcc, 0, v60
        v_mov_b32 v61, {sG}
        v_mov_b32 v{NEG}, {f2u(-1e30)}
        v_cndmask_b32 v60, v60, v61, vcc
        v_lshlrev_b32 v{TMP}, 20, v60''')
        if L == 3: o += [f's_add_u32 {x}, {x}, 0x20000' for x in sNb + [sKVB]] + ([] if RH else [f's_add_u32 {sFB}, {sFB}, 0x2000'])
        return o
    def B_layer(L):
        it = L >> 1
        RS, MR, B = 68, 72, 76
        KK = PK
        accp = lambda p, t: 20 + 8*(t & 1) + (0 if p == 'k' else 4)
        def rds(t, RS, MR, rm): return [f'ds_read_b128 {vr(RS,4)}, {vRSa} offset:{t*64}', f'ds_read_b128 {vr(MR,4)}, {vRSa} offset:{256+t*64}', f'ds_read2_b32 {vr(rm,2)}, {vRSb} offset0:{t*16} offset1:{64+t*16}']
        def prep(t):
            o2 = ['.waitfor v[110:111]'] + [f'v_mul_f32 v{B+i}, v111, v{104+i}' for i in range(4)] + [f'v_mul_f32 v{MR+i}, v{MR+i}, v108' for i in range(4)]
            return rds(t, RS, MR, 110), o2
        stK = lambda u: [] if race and u == 0 else [tok(f'buffer_store_dwordx4 {vr(KK+4*u,4)}, {vL16}, {WS}, {sKVB} offen offset:{u*2048} sc1', f'kv{u}')]
        stV = lambda u: [tok(f'buffer_store_dwordx4 {vr(VV+4*u,4)}, {vL16}, {WS}, {sKVB} offen offset:{u*2048+1024} sc1', f'kv{u}')]
        hint = lambda sg: [f'buffer_store_dwordx4 v[96:99], v100, {WS}, {sg} offen sc1' if opt.get('h4', 1) else f'buffer_store_dword v96, v100, {WS}, {sg} offen sc1']
        ownV = lambda u: [f'ds_write_b128 v{OV}, {vr(VV+4*u,4)} offset:{(8+u)*TS+1024}']
        swK = lambda u: [sw16(KK+4*u, KK+4*u+2), sw16(KK+4*u+1, KK+4*u+3)]
        swV = lambda u: [sw32(VV+4*u, VV+4*u+2), sw32(VV+4*u+1, VV+4*u+3)]
        OV = 123 if L == 3 else 122
        ack = AK == 2 or (AK and L == 1)
        race = opt.get('race') and not ack
        def fin(t):
            K, V = accp('k', t), accp('v', t)
            r, p2 = prep(t + 1)
            fk = [f'v_fma_f32 v{K+i}, v{K+i}, v110, v{B+i}' for i in range(4)] + ([f'v_mul_f32 v116, 0, v{K}' if t == 0 else f'v_fma_f32 v116, 0, v{K}, v116'] if HP else []); ck = [cvt(KK+2*t, K), cvt(KK+2*t+1, K+2)]
            fv = [f'v_fma_f32 v{V+i}, v{V+i}, v{RS+i}, v{MR+i}' for i in range(4)]; cv = [cvt(VV+2*t, V), cvt(VV+2*t+1, V+2)]
            if t == 1:
                return [('at', 3)] + fk + ck + fv[:2] + swK(0) + stK(0) + fv[2:] + cv + r + swV(0) + [('at', opt.get('sv', 20))] + stV(0) + p2 + ([] if ack else [('at', opt.get('sh', 28))] + hint('s99'))
            return [('at', 3)] + fk + fv + ck + cv + r + (ownV(0) if t == 2 else []) + [('at', 22)] + p2
        f0 = [f'ds_read_b128 v[104:107], {vCSa} offset:{768+64}'] + [f'ds_read_b32 v108, {vCSb} offset:{768+128}']
        f0 += [f'v_add_u32 v{OV}, {sOwn}, {vL16}', f's_add_u32 s99, {sFB}, {sGb}', f's_add_u32 s98, s99, 0x1000'] + flag_line(96) + wo_xor(101)
        bq = [w_dma('b', 'q', kq, kq*16384, WE, WOd, 'bq') for kq in range(4)] if L == 1 else [[], [], [], []]
        r0, p0 = prep(0)
        x0 = 0
        shadow = []; extra0 = []
        if L == 1:
            shadow = ([f's_cmp_lg_u32 {sVer}, 0', 's_cbranch_scc1 L_noshadow'] if HP else []) + w_read('b', 'v', 3, 123, 0) + cs_mfma('b', 'v', 92, 12, 16, one=76) + [cs_write('b', 'v', 92), 'L_noshadow:']
        fills = [f0 + [('at', 25 + x0)] + r0 + [('at', 28 + x0)] + p0, fin(0), fin(1), fin(2)]
        w = wo_dma(WOB, 101, range(4)); WQ = opt.get('wq', 16)
        mems = [[], bq[0] + bq[1] + bq[2] + bq[3], [], []] if L == 1 else [[], w[:10], [], w[10:WQ]]
        passes(L, 'b', fills, mems, shadow, extra0)
        stamp(L, 2)
        K, V = accp('k', 3), accp('v', 3)
        a(f's_add_u32 s6, {sFB}, {G0}\ns_add_u32 s5, s6, 0x1000\ns_sub_u32 s4, {sKVN}, {sOwn}')
        a.extend([pk('fma', K+i, K+i, ('b', 110), B+i) for i in (0, 2)] + [pk('fma', V+i, V+i, RS+i, MR+i) for i in (0, 2)])
        a.extend([cvt(KK+6, K), cvt(KK+7, K+2), cvt(VV+6, V), cvt(VV+7, V+2)])
        xcheck(L, f'v116, v{K}')
        a.extend(swK(1) + stK(1) + swV(1))
        lateq = {3: stV(1), 11: hint('s98'), 15: ownV(1)} if L == 3 else {}
        if L == 3 and ack: lateq = {3: stV(1), opt.get('f0', 7): ['.waitfor tok:kv0'] + hint('s99'), 15: ownV(1), opt.get('f1', 58): ['.waitfor tok:kv1'] + hint('s98')}
        if L == 1: a.extend(ownV(1) + stV(1) + (['.waitfor tok:kv0'] + hint('s99') if ack else hint('s98')))
        stamp(L, 3)
        ringb = list(range(44, 76, 4)) + list(range(104, 120, 4))
        pe = (f'v{TMP}', 's6', 79, 0); pl = (f'v{TMP}', 's5', 2, 0)
        qrd = [f'ds_read_b128 v[88:91], {vCSa} offset:768'] + [f'ds_read2_b32 {vr(120+2*t,2)}, {vRSb} offset0:{t*16} offset1:{64+t*16}' for t in range(4)]
        pq = ['v_mov_b32 v78, -1'] + po_o(78) if HP else []
        if L == 1:
            a.extend(ones(104))
            a('.waitfor tok:bq\ns_barrier')
            for kq in range(4): a.extend(w_read('b', 'q', kq, WR, kq*16384))
            a.extend(cs_mfma('b', 'q', 92, one=104))
            a('s_barrier')
            q_pass('b', ringb, [('at', 3), cs_write('b', 'q', 92), ('at', 54)] + qrd, pq + [poll_start(*pe)] + ([] if opt.get('wa', 1) else w), opt.get('pe1', 25 if ack else 9), {opt.get('fl1', 12): ['.waitfor tok:kv1'] + hint('s98')} if ack else {})
        else:
            q_pass('b', ringb, [('at', 54)] + qrd, w[WQ:], opt.get('wqs', 36), {**lateq, 17: pq[:3], 21: pq[3:], opt.get('pe', 25): [poll_start(*pe)]})
        stamp(L, 4)
        def nb_dma(e):
            o = []
            for i in range(4):
                kt = 6 - 2*i + e
                o += [f's_add_u32 m0, {sKVN}, {kt*TS - e*2048}']
                o += [tok(f'buffer_load_dwordx4 {vL16}, {WS}, {sNb[i]} offen offset:{e*2048 + h*1024} sc1 lds', f'n{kt}') for h in range(2)]
            return o
        rdK = lambda kt: f'ds_read_b128 {vr(KB,4)}, v{vK} offset:{kt*TS}'
        rdV = lambda kt, h: f'ds_read_b128 {vr(VB+4*h,4)}, v{vVa if h == 0 else vVb} offset:{kt*TS}'
        a('s_barrier')
        e = [f'v_mov_b32 v92, {f2u(0.25*L2E)}'] + [f'v_cndmask_b32 v{CB+i}, v{NEG}, 0, {mk(i)}' for i in range(16)]
        e += [pk('mul', 120+2*t, 120+2*t, ('b', 92)) for t in range(4)]
        for t in range(4):
            q = QA + 4*t
            e += [pk('mul', 92+i, 88+i, ('b', 121+2*t)) for i in (0, 2)] + [pk('fma', q+i, q+i, ('b', 120+2*t), 92+i) for i in (0, 2)]
            if t == 2: e += [sw16(20, 22), sw16(21, 23)]
            e += [cvt(20+2*t, q), cvt(21+2*t, q+2)]
        e += [f'ds_write2_b32 v16, v17, v17 offset0:0 offset1:1', qk(0, SB[0], vr(CB,16), KK), sw16(24, 26), sw16(25, 27),
              f'ds_write2_b32 v16, v17, v17 offset0:2 offset1:3', 's_nop 0', qk(1, SB[1], vr(CB,16), KK+4)]
        ce = opt.get('ce%d' % L, 0); a.extend(e[:ce]); e = e[ce:]
        poll_masked(*pe)
        if not race: a(f's_add_u32 s7, s99, {0x4000 - (0 if RH else it*0x1000)}\n.waitfor tok:kv0 tok:kv1\n' + hint('s7')[0])
        stamp(L, 5)
        a2 = Asm(); a2.extend(e); diag(a2)
        d0 = nb_dma(0); k_ = 3 * opt.get('plk%d' % L, 0)
        a.extend(spread(a2.ins, d0[:k_] + [poll_start(*pl)] + d0[k_:], opt.get('sp', 8)))
        stamp(L, 6)
        attention(L, pl, nb_dma, rdK, rdV, KK)
    def diag(a):
        for u in range(2):
            a(f'v_max3_f32 v{NM[u]}, v{SB[u]}, v{SB[u]+1}, v{SB[u]+2}\nv_max3_f32 v{76+u}, v{SB[u]+3}, v{SB[u]+4}, v{SB[u]+5}')
            for i in range(6, 14, 4):
                a(f'v_max3_f32 v{NM[u]}, v{NM[u]}, v{SB[u]+i}, v{SB[u]+i+1}\nv_max3_f32 v{76+u}, v{76+u}, v{SB[u]+i+2}, v{SB[u]+i+3}')
            a(f'v_max3_f32 v{NM[u]}, v{NM[u]}, v{SB[u]+14}, v{SB[u]+15}\nv_max_f32 v{NM[u]}, v{NM[u]}, v{76+u}\nv_mov_b32 v{76+u}, v{NM[u]}')
        a(f'{sw32(NM[0], 76)}\n{sw32(NM[1], 77)}')
        for u in range(2): a(f'v_min_f32_e64 v{NM[u]}, -v{NM[u]}, -v{76+u}')
        if opt.get('fb'):
            for u in range(2): a(f'v_add_f32 v{NM[u]}, {f2u(200.0)}, v{NM[u]}')
        a.extend([pk('add', SB[u]+i, SB[u]+i, ('b', NM[u])) for u in range(2) for i in range(0, 16, 2)])
        a.extend([f'v_pk_mov_b32 {vr(CB+i,2)}, v[16:17], v[16:17] op_sel:[1,1]' for i in range(0, 16, 2)])
    def attention(L, pl, nb_dma, rdK, rdV, KK):
        ops = [(0, 8), (1, 9), (1, 8), (1, 6), (1, 4), (1, 2), (0, 6), (0, 4), (0, 2), (0, 0), (0, 7), (0, 5), (0, 3), (0, 1), (1, 7), (1, 5), (1, 3), (1, 1)]
        N = len(ops); seen = set()
        for n in range(N + 1):
            sb, pb = SB[n % 2], SB[1 - n % 2]
            far = n < N and ops[n][1] == ops[n][0]
            def E(i):
                if n == N: return []
                o = [f'v_exp_f32 v{sb+i}, v{sb+i}', f'v_exp_f32 v{sb+i+1}, v{sb+i+1}']
                return o
            def Cv(h, i, b=None, isfar=far):
                b = sb if b is None else b
                o = []
                if isfar: o += [f'v_cndmask_b32 v{b+8*h+2*i+k}, v{b+8*h+2*i+k}, 0, {mk(8*h+2*i+k)}' for k in range(2)]
                return o + [f'v_cvt_pk_bf16_f32 v{b+8*h+i}, v{b+8*h+2*i}, v{b+8*h+2*i+1}']
            C = (lambda h, i: Cv(h, i)) if n < N else (lambda h, i: [])
            lateK = n + 1 < N and n + 1 in (3, 10)
            toks = []
            for m in ([n] if n < N else []) + ([n+1] if lateK else []) + ([n+2] if n + 2 < N and n + 2 not in (3, 10) else []):
                kt = ops[m][1]
                if kt < 8 and kt not in seen: seen.add(kt); toks.append(f'tok:n{kt}')
            s = E(0)
            if n > 0: s += Cv(1, 3, pb, ops[n-1][1] == ops[n-1][0])
            s += [f'.waitfor {" ".join(toks)} {vr(KB,2)} {vr(VB,8)}']
            if n == 3: s += [f'v_add_u32 v{vVa}, s4, v{vVa}', f'v_add_u32 v{vVb}, s4, v{vVb}']
            if lateK: s += [rdK(ops[n+1][1])]
            if n > 0: s += [pv(ops[n-1][0], pb, 0, init=(n-1 < 2))]
            if n < N: s += [rdV(ops[n][1], 0)]
            s += E(2) + C(0, 0) + E(4)
            if n > 0: s += [pv(ops[n-1][0], pb, 1)]
            if n < N: s += [rdV(ops[n][1], 1)]
            s += C(0, 1) + E(6) + C(0, 2)
            if 2 <= n + 1 < N:
                s += [qk(ops[n+1][0], pb, vr(CB,16), KK if n + 1 == 2 else KB)]
            if n + 2 < N and n + 2 > 2 and n + 2 not in (3, 10): s += [rdK(ops[n+2][1])]
            s += E(8) + C(0, 3) + E(10) + C(1, 0) + E(12)
            if n + 2 < N and n + 1 >= 2 and ops[n+2][0] != ops[n+1][0]:
                s += [f'v_mov_b32 v{CB+i}, v{NM[ops[n+2][0]]}' for i in range(16)]
            s += C(1, 1) + E(14) + C(1, 2)
            LP = opt.get('lp%d' % L, 0)
            if n == LP + 1:
                poll_masked(*pl); fstamp(L, 'latepoll')
            if n in (LP + 1, LP + 2):
                d = nb_dma(1); s = spread(s, d[:6] if n == LP + 1 else d[6:], 7)
            P0 = opt.get('p0', 9)
            if L == 1 and P0 <= n < P0 + 5 and not opt.get('p2', 0) and AK < 2: s = s + [x.replace('s7', 's3') for x in poison(80, sKVB, 0x20000)[n - P0]]
            if L == 1 and not RH and opt.get('pw2', 1):
                if n == P0: s = s + [f's_lshl_b32 s4, {sG}, 10', f's_add_u32 s4, s4, {sH1}', 's_add_u32 s4, s4, 0x100000', f'buffer_store_dwordx4 v[80:83], {vL16}, {WS}, s4 offen sc1']
                if n == P0 + 1: s = s + ['s_add_u32 s4, s99, 0x2000', 's_mov_b64 exec, 0xffff', f'buffer_store_dwordx4 v[80:83], {vWoD}, {WS}, s4 offen sc1', 's_mov_b64 exec, -1']
                if n == P0 + 2: s = s + [f's_lshl_b32 s4, {sG}, 7', f's_add_u32 s4, s4, {sH2}', 's_add_u32 s4, s4, 0x20000', 's_mov_b64 exec, 0xff', f'buffer_store_dwordx4 v[80:83], {vL16}, {WS}, s4 offen sc1', 's_mov_b64 exec, -1']
            if L == 1 and opt.get('wa', 1):
                W0 = opt.get('w0', 6); wl = wo_dma(WOB, 85, range(4))
                if n == W0 - 1: s = s + wo_xor(85)
                if W0 <= n < W0 + 4: s = spread(s, wl[6*(n-W0):6*(n-W0)+6], 7)
            if opt.get('race') and not (AK and L == 1) and n == 1: s = s + [f'buffer_store_dwordx4 {vr(KK,4)}, {vL16}, {WS}, {sKVB} offen sc1']
            if opt.get('race') and not (AK and L == 1) and n == 4: s = s + flag_line(82) + [f's_add_u32 s7, s99, {0x4000 - (0 if RH else (L>>1)*0x1000)}', 's_waitcnt vmcnt(0)', f'buffer_store_dwordx4 v[82:85], v86, {WS}, s7 offen sc1']
            if L == 1 and n == 7: s = s + touch2(80)
            if L == 1 and n == opt.get('c0', 5): s = s + code_pf(2, 83)
            if L == 1 and n == 6 and opt.get('pfa', 0): s = s + wo_pf(WOA, 82, opt.get('pfa', 0) == 2)
            if L == 3 and 6 <= n < 6 + opt.get('dirty', 0): s = s + [f's_add_u32 s7, {sKVB}, {0x20000 + 0x20000*((n-6)>>2)}', f'buffer_store_dwordx4 v[20:23], {vL16}, {WS}, s7 offen offset:{((n-6)&3)*1024} {opt.get("dm", "")}']
            a.extend(s)
            if n == 14 and opt.get('eu', 1):
                o = OA[0]
                a(f's_add_u32 s4, {sGb}, {XO(L)}\nv_maximum3_f32 v84, abs(v{o}), abs(v{o+1}), v{o+8}\nv_rcp_f32 v{o+8}, v{o+8}')
                for i in range(2, 8, 2): a(f'v_maximum3_f32 v84, abs(v{o+i}), abs(v{o+i+1}), v84')
                a.extend([f'v_mul_f32 v{o+i}, v{o+i}, v{o+8}' for i in range(8)] + [f's_cmp_eq_u32 {sFast}, 0'] + [cvt(o+10+i, o+2*i) for i in range(4)])
                fast_stores([o_store(0)], wt=not reuse)
            fstamp(L, f'op{n}')
        a(f's_add_u32 s4, {sGb}, {XO(L)}\ns_add_u32 s5, s4, 32768\ns_mov_b32 {sL}, {L}')
        o = OA[0]
        if not opt.get('eu', 1):
            a(f'v_maximum3_f32 v84, abs(v{o}), abs(v{o+1}), v{o+8}')
            for i in range(2, 8, 2): a(f'v_maximum3_f32 v84, abs(v{o+i}), abs(v{o+i+1}), v84')
        o = OA[1]
        a(f'v_maximum3_f32 v76, abs(v{o}), abs(v{o+1}), v84\nv_maximum3_f32 v77, abs(v{o+2}), abs(v{o+3}), v{o+8}')
        a(f'v_maximum3_f32 v76, abs(v{o+4}), abs(v{o+5}), v76\nv_maximum3_f32 v77, abs(v{o+6}), abs(v{o+7}), v77\nv_maximum3_f32 v76, v76, v77, v77')
        a(f'v_cmp_nlt_f32 vcc, v76, abs(v{NEG})\ns_cbranch_vccnz L_fallback\nL_fbdone{L}:')

    def common(L):
        stamp(L, 7)
        us = [1] if L & 1 and opt.get('eu', 1) else [0, 1]
        for u in us: a(f'v_rcp_f32 v{OA[u]+8}, v{OA[u]+8}')
        a(f's_cmp_eq_u32 {sFast}, 0')
        held = []
        for u in us:
            a.extend(o_norm(u))
            if opt.get('raceo') and u == 1: held = ['v_mov_b32 v13, v13', o_store(1).text.replace('s5', 's7')]
            else: fast_stores([o_store(u)], wt=(L == 0 or not reuse) and not HP, drain=HP and u == 1)
        a(f'v_mov_b32 v19, {sTag}\nv_min_u32 v15, 1, v0\nv_lshlrev_b32 v15, 26, v15')
        def b3():
            if L == 0:
                a(f'v_mov_b32 v13, v122\nv_mov_b32 v253, v123\nv_mov_b32 v254, v{WE}\nv_mov_b32 v255, v{WOd}')
                for i, p, kq in B2[W2:]: a.extend(w_dma('b', p, kq, T + i*16384, 254, 255, 'b3'))
        ri = lines(f's_lshl_b32 s6, {sW}, 11\ns_add_u32 s6, s6, {RES}\nv_add_u32 v14, s6, {vL16}\nds_read_b128 v[60:63], v14\nds_read_b128 v[64:67], v14 offset:1024')
        ri += [f'v_xor_b32 v{124+i}, {32*(i+1)}, {vWoR}' for i in range(3)] + [f's_add_u32 s5, {sXoLd}, {XO(L)}'] + ones()[:1]
        ru = [sw16(60, 62), sw16(61, 63), sw16(64, 66), sw16(65, 67)]
        for i in range(8): ru += [f'v_lshlrev_b32 v{20+2*i}, 16, v{60+i}', f'v_and_b32 v{21+2*i}, 0xffff0000, v{60+i}']
        if HP:
            a('.waitfor tok:wo tok:poo tok:b2\ns_barrier')
            fast_stores([f'buffer_store_dword v19, v15, {WS}, {sFlOwn} offen offset:{64*L}'])
            b3(); a.extend(ri)
        else:
            b3(); a.extend(ri + ru); ru = []
            a(f's_cmp_eq_u32 {sFast}, 0\n.waitfor tok:ost\ns_barrier')
            fast_stores([f'buffer_store_dword v19, v15, {WS}, {sFlOwn} offen offset:{64*L}'])
        stamp(L, 8)
        NO = opt.get('no', 8); NW = 22 - NO; Or = 36; Wr = Or + 4*NO
        SK = 0 if HP else opt.get('sk', 4)
        seq = [(s, t) for s in range(16 - SK) for t in range(4)] + [(s, t) for h in (0, 2) for s in range(16 - SK, 16) for t in (h, h + 1)]
        def rdw(n):
            s, t = seq[n]
            ad = vWoR if t == 0 else f'v{123+t}'
            return [f'ds_read_b64_tr_b16 {vr(Wr + 4*(n % NW) + 2*hi, 2)}, {ad} offset:{WO + s*4096 + hi*256}' for hi in range(2)]
        def ldo(s):
            o = [f's_add_u32 s5, s5, 4096'] if s % 4 == 0 and s else []
            return o + [f'buffer_load_dwordx4 {vr(Or + 4*(s % NO), 4)}, {vL16}, {WS}, s5 offen offset:{(s%4)*1024} sc1']
        pre = [x for n in range(NW) for x in rdw(n)] + ru
        if L == 0:
            pre += w_read('b', 'k', 0, 253, 0)
            for i, p, kq in B2[:W2]: pre += w_read('b', p, kq, 13, i*16384)
        MP = opt.get('mp', 2)
        if MP > 1: poll_multi(vPG, sFl, [127, 17, 18][:MP], 64*L, pre)
        else:
            a.extend(pre[:2*NW]); a(poll_start(vPG, sFl, 127, 64*L)); a.extend(pre[2*NW:])
            poll_finish(vPG, sFl, 127, 64*L)
        stamp(L, 9)
        NU = opt.get('nu', 8)
        if held:
            a(f's_add_u32 s7, s4, 32768')
            for i in range(40): a('s_nop 15')
            a.extend(held)
            a('s_nop 1')
        for s in range(NU):
            a.extend(ldo(s))
            if opt.get('fair', 1) and s % 2 == 1 and s < NU - 1: a('s_barrier')
        fstamp(L, 'oissue')
        pxs = ['v_mov_b32 v17, -1'] + st_addr(18, 127) + (po_x(17) if L else []) + po_s(17, 18) if HP and L < 3 else st_addr(18, 127) if L < 3 else []
        if L == 0:
            assert opt.get('fair', 1)
            for i, p, kq in B2[W2:]: a.extend(w_read('b', p, kq, 13, i*16384))
        if L == 0: st0 = w_dma('b', 'v', 1, T, 254, 255, 'b4') + w_dma('b', 'v', 2, T + 16384, 254, 255, 'b4')
        fin3 = [f'v_and_b32 v16, 15, v0\nv_lshrrev_b32 v17, 8, {vXs}', 'v_and_b32 v18, 7, v0\nv_xor_b32 v17, v17, v18', f'v_lshlrev_b32 v17, 4, v17\nv_lshl_add_u32 v16, v16, 7, v17',
                f'v_sub_u32 v17, v14, {vL16}\nv_add_u32 v16, v16, v17', 'v_xor_b32 v17, 64, v16\nv_lshrrev_b32 v19, 3, v0', 'v_xor_b32 v18, v18, v19\nv_lshlrev_b32 v18, 4, v18',
                f'v_lshl_add_u32 v18, v19, 10, v18\ns_add_u32 s3, {sRow}, 8192']
        xs = [f'buffer_store_dwordx4 {vr(36+4*i,4)}, {vXs}, {WS}, s4 offen offset:{i*1024}' for i in range(2)]
        g0 = [cvt(36+i, 20+2*i) for i in range(4)] + [f's_cmp_eq_u32 {sFast}, 0', sw16(36, 38), sw16(37, 39)]
        g1 = [cvt(36+i, 20+2*i) for i in range(4, 8)] + [f's_cmp_eq_u32 {sFast}, 0', sw16(40, 42), sw16(41, 43)]
        def out_g(i):
            if L == 3: a(f'ds_write_b128 v{16+i}, {vr(36+4*i,4)}')
            elif not (opt.get('racex') and i == 1): fast_stores([xs[i]], wt=(L == 0 or not reuse) and not HP)
        done0 = False
        for n in range(64):
            s, t = seq[n]
            if n % 4 == 0: a(f'.waitfor {vr(Or + 4*(seq[n+3][0] % NO), 4)} {vr(Wr + 4*((n+3) % NW), 4)}')
            d = vr(20+4*t, 4)
            a(M16(d, vr(Wr + 4*(n % NW), 4), vr(Or + 4*(s % NO), 4), d))
            s, t = n >> 2, n & 3
            if SK and n >= 64 - 2*SK + 2 and not done0:
                a.extend(g0[:2]); g0 = g0[2:]
                if not g0: out_g(0); done0 = True
            if n + NW < 64: a.extend(rdw(n + NW))
            if t == 3 and s + NU < 16: a.extend(ldo(s + NU))
            if L == 0 and n == 19: a('s_barrier')
            if L == 0 and s >= 14 - NU and t == 1:
                while st0:
                    y = st0.pop(0); a.extend([y])
                    if isinstance(y, Ins): break
            if n >= 26 and pxs:
                a.extend([pxs.pop(0)])
            if t == 3 and s in (0, 3, 7, 11, 15): fstamp(L, f'wo{s}')
            if n == 50 and L < 3: a(f's_add_u32 s4, {sXxSt}, {XX(L)}\ns_add_u32 s3, {sSt}, {ST(L)}')
            if L == 3 and 50 <= n < 50 + len(fin3): a(fin3[n - 50])
        assert L or not st0
        assert not pxs
        if HP: a(f'v_cmp_u_f32 vcc, v20, v20\ns_cbranch_vccnz L_ore{L}\nL_ook{L}:')
        dots = []
        for r in range(8):
            c0, c1 = ('0', '0') if r == 0 else ('v44', 'v46')
            dots += [f'v_dot2_f32_bf16 v44, v{36+r}, v{ONES}, {c0}', f'v_dot2_f32_bf16 v46, v{36+r}, v{36+r}, {c1}']
        if not done0: a.extend(g0); out_g(0)
        elif L < 3: a.extend(dots[:8]); dots = dots[8:]
        a.extend(g1); out_g(1)
        if L == 3:
            om = opt.get('om', 'sc1')
            a('ds_read_b128 v[44:47], v14\nds_read_b128 v[48:51], v14 offset:1024')
            a(f'buffer_store_dwordx4 v[44:47], v18, {OUT}, {sRow} offen {om}\nbuffer_store_dwordx4 v[48:51], v18, {OUT}, s3 offen {om}')
            stamp(L, 10)
            return
        heldx = [xs[1].replace('s4', sXxSt)] if opt.get('racex') else []
        xflag = f'buffer_store_dword v19, v15, {WS}, {sFlOwn} offen offset:{64*L+32}'
        if HP:
            a(f's_add_u32 s7, {sFlOwn}, {sPo}\n.waitfor tok:pox tok:b4\ns_barrier\n' + xflag.replace(sFlOwn, 's7') + f'\ns_cmp_eq_u32 {sFast}, 0')
        ep = entry_prep(L + 1)
        a.extend(dots + [ep[-1], f'v_lshlrev_b32 v119, 6, {sW}', f'v_add_u32 v119, v119, {vRSb}'])
        a(f'{sw32(44, 46)}\nv_add_f32 v44, v44, v46\nv_mov_b32 v45, v44\n{sw16(44, 45)}\nv_add_f32 v44, v44, v45')
        sst = f'buffer_store_dword v44, v18, {WS}, s3 offen'
        if HP:
            sl, bk = lab('slow'), lab('back')
            a(f's_cbranch_scc1 {sl}\n{sst}\n{bk}:')
            ool(f'{sl}:\n{sst} sc1\ns_waitcnt vmcnt(0)\ns_barrier\n{xflag} sc1\ns_branch {bk}')
        else: fast_stores([tok(sst, 'xst')])
        stamp(L, 10)
        if L == 0:
            a.extend(w_dma('b', 'v', 3, S, 254, 255, 'b5'))
        late = ['ds_write_b128 v14, v[36:39]', 'ds_write_b128 v14, v[40:43] offset:1024'] + ep[:6] + ep[8:-1]
        if not HP or L == 0: a.extend(late); late = []
        if not HP:
            a(f's_cmp_eq_u32 {sFast}, 0\n.waitfor tok:xst\ns_barrier')
            fast_stores([xflag])
        stamp(L, 11)
        px = (vPG, sFl, 127, 64*L+32)
        if L == 0:
            a.extend(w_read('b', 'v', 1, 13, 0) + w_read('b', 'v', 2, 13, 16384) + ones(76))
            c1, _ = place(cs_mfma('b', 'k', 88, one=76) + cs_mfma('b', 'v', 92, 0, 12, one=76), [poll_start(*px)], 10, 4)
            a.extend(weave(c1, w_addr(WE, WOd, WR, 100) + [f'v_add_u32 v123, {S}, v{WR}'] + B_prep(1)))
            a(cs_write('b', 'k', 88))
        else:
            pre = consts() if L == 1 else B_prep(3)
            pre = late + pre
            if MP > 1: poll_multi(vPG, sFl, [127, 126, 125][:MP], 64*L+32, pre)
            else: a.extend(pre[:opt.get('pd', 24)]); a(poll_start(*px)); a.extend(pre[opt.get('pd', 24):])
        if L == 0 or MP == 1: poll_finish(*px)
        if heldx:
            a(f's_and_b32 s7, {sJ}, 1\ns_cbranch_scc0 L_hx{L}')
            for i in range(40): a('s_nop 15')
            a(f'L_hx{L}:'); a.extend(heldx); a('s_nop 1')
        if L == 0: a('s_barrier')
        stamp(L, 12)

    A_tail(0); common(0)
    B_layer(1); common(1)
    A_passes(2); A_tail(2); common(2)
    B_layer(3); common(3)
    a(f's_or_b32 s3, s2, {sW}\ns_cmp_eq_u32 s3, 0\ns_cselect_b32 s3, 0, {OOB}\nv_mov_b32 v52, {sEp}\nbuffer_store_dword v52, v15, {WS}, s3 offen')
    if profile:
        a('s_waitcnt vmcnt(0)')
        stamp(3, 11)
        a(f's_lshl_b32 s3, s2, 2\ns_add_u32 s3, s3, {sW}\ns_lshl_b32 s3, s3, 8\ns_add_u32 s3, s3, {STAMP0}\nv_lshlrev_b32 v45, 2, v0')
        a(f'buffer_store_dword {vStamp}, v45, {WS}, s3 offen')
        if opt.get('amp'):
            i0, i1, wg = opt['amp']
            a(f's_cmp_lg_u32 s2, {wg}\ns_cbranch_scc1 L_end\ns_cmp_lg_u32 {sW}, 0\ns_cbranch_scc1 L_end')
            a(f'v_readlane_b32 s4, {vStamp}, {i0}\nv_readlane_b32 s5, {vStamp}, {i1}\nv_readlane_b32 s6, {vStamp}, {59 if focus is None else len(names)-1}\ns_nop 3\ns_sub_u32 s5, s5, s4\ns_lshl_b32 s5, s5, 3\ns_min_u32 s5, s5, 100000')
            a('L_amp:\ns_memrealtime s[96:97]\ns_waitcnt lgkmcnt(0)\ns_sub_u32 s7, s96, s6\ns_cmp_lt_u32 s7, s5\ns_cbranch_scc1 L_amp')
    a('L_end:\ns_endpgm\nL_codeend:')
    a('.resetwait')
    a.extend(ool.ins)

    a('L_fallback:\n.resetwait\ns_nop 15')
    a('s_add_u32 s3, s6, 0x4000' if RH else f's_lshr_b32 s3, {sL}, 1\ns_lshl_b32 s3, s3, 12\ns_sub_u32 s3, s6, s3\ns_add_u32 s3, s3, 0x4000')
    a(poll_start(f'v{TMP}', 's3', 79))
    poll_finish(f'v{TMP}', 's3', 79)
    for e in range(2):
        for i in range(4):
            a(f's_add_u32 m0, {sKVN}, {(6-2*i+e)*TS - e*2048}')
            for h in range(2): a(f'buffer_load_dwordx4 {vL16}, {WS}, {sNb[i]} offen offset:{e*2048 + h*1024} sc1 lds')
    for u in range(2):
        a(f's_add_u32 m0, {sOwn}, {(8+u)*TS - u*2048}\ns_nop 0\nbuffer_load_dwordx4 {vL16}, {WS}, {sKVB} offen offset:{u*2048} sc1 lds')
    a('s_waitcnt vmcnt(0)')
    a(f's_lshl_b32 s3, {sG}, 1\ns_sub_i32 s96, 8, s3\ns_max_i32 s96, s96, 0\ns_sub_u32 s97, {sOwn}, {sKVN}')
    for u in range(2):
        sb = SB[0]
        def tile_addr():
            a(f's_mul_i32 s3, s98, {TS}\ns_cmp_ge_u32 s98, 8\ns_cselect_b32 s7, s97, 0\ns_add_u32 s3, s3, s7')
            a(f'v_add_u32 v112, s3, v{vK}\nv_add_u32 v113, s3, v{vVa}\nv_add_u32 v114, s3, v{vVb}')
        def scores():
            l1, l2 = lab('m'), lab('m')
            a(f'ds_read_b128 {vr(KB,4)}, v112\ns_waitcnt lgkmcnt(0)')
            a(qk(u, sb, '0'))
            a('s_nop 15')
            a(f's_cmp_lg_u32 s98, {8+u}\ns_cbranch_scc1 {l1}')
            for i in range(16): a(f'v_cndmask_b32 v{sb+i}, v{NEG}, v{sb+i}, {mk(i)}')
            a(f'{l1}:\ns_cmp_lg_u32 s98, {u}\ns_cbranch_scc1 {l2}')
            for i in range(16): a(f'v_cndmask_b32 v{sb+i}, v{sb+i}, v{NEG}, {mk(i)}')
            a(f'{l2}:')
        lp = lab('fb1')
        a(f's_max_i32 s98, s96, {u}\nv_mov_b32 v{NM[u]}, v{NEG}')
        a(f'{lp}:')
        tile_addr(); scores()
        for i in range(8): a(f'v_max3_f32 v{NM[u]}, v{NM[u]}, v{sb+2*i}, v{sb+1+2*i}')
        a(f's_add_u32 s98, s98, 1\ns_cmp_le_u32 s98, {8+u}\ns_cbranch_scc1 {lp}')
        a(f'v_mov_b32 v115, v{NM[u]}\n{sw32(NM[u], 115)}\nv_max_f32 v{NM[u]}, v{NM[u]}, v115')
        for i in range(16): a(f'v_mov_b32 v{OA[u]+i}, 0')
        lp = lab('fb2')
        a(f's_max_i32 s98, s96, {u}')
        a(f'{lp}:')
        tile_addr(); scores()
        a(f'ds_read_b128 {vr(VB,4)}, v113\nds_read_b128 {vr(VB+4,4)}, v114')
        for i in range(16): a(f'v_sub_f32 v{sb+i}, v{sb+i}, v{NM[u]}')
        a('s_waitcnt lgkmcnt(0)')
        for h in range(2):
            for i in range(8): a(f'v_exp_f32 v{sb+8*h+i}, v{sb+8*h+i}')
            for i in range(4): a(f'v_cvt_pk_bf16_f32 v{sb+8*h+i}, v{sb+8*h+2*i}, v{sb+8*h+2*i+1}')
            a(pv(u, sb, h))
        a('s_nop 15')
        a(f's_add_u32 s98, s98, 1\ns_cmp_le_u32 s98, {8+u}\ns_cbranch_scc1 {lp}')
    if opt.get('eu', 1):
        a(f'v_rcp_f32 v{OA[0]+8}, v{OA[0]+8}'); a.extend(o_norm(0)); a(o_store(0).text + ' sc1')
    a(f's_cmp_eq_u32 {sL}, 1\ns_cbranch_scc1 L_fbdone1\ns_branch L_fbdone3')

    if HP:
        for L in range(4): a(f'L_ore{L}:\ns_mov_b32 {sL}, {L}\ns_branch L_ore')
        a('L_ore:\n.resetwait\ns_nop 7')
        a(f's_mov_b32 s7, {sXoLd}')
        for s_ in range(16):
            if s_ % 4 == 0 and s_: a('s_add_u32 s7, s7, 4096')
            a(f'buffer_load_dwordx4 {vr(36+4*s_,4)}, {vL16}, {WS}, s7 offen offset:{(s_%4)*1024} sc1')
        a(f's_add_u32 {sCnt}, {sCnt}, 1\ns_cmp_ge_u32 {sCnt}, 0x20000\ns_cbranch_scc1 L_end\ns_waitcnt vmcnt(0)\nv_max_u32 v100, v36, v40')
        for s_ in range(2, 16, 2): a(f'v_max3_u32 v100, v100, v{36+4*s_}, v{40+4*s_}')
        a('v_cmp_eq_u32 vcc, -1, v100\ns_cbranch_vccnz L_ore')
        a('ds_read_b128 v[100:103], v14\nds_read_b128 v[104:107], v14 offset:1024')
        a.extend([sw16(100, 102), sw16(101, 103), sw16(104, 106), sw16(105, 107)])
        for i in range(8): a(f'v_lshlrev_b32 v{20+2*i}, 16, v{100+i}\nv_and_b32 v{21+2*i}, 0xffff0000, v{100+i}')
        for s_ in range(16):
            for t in range(4):
                for hi in range(2): a(f'ds_read_b64_tr_b16 {vr(100+4*t+2*hi,2)}, {vWoR if t == 0 else "v%d" % (123+t)} offset:{WO + s_*4096 + hi*256}')
            a('s_waitcnt lgkmcnt(0)')
            for t in range(4): a(M16(vr(20+4*t,4), vr(100+4*t,4), vr(36+4*s_,4), vr(20+4*t,4)))
        a('s_nop 7\nv_mov_b32 v44, 0\nv_mov_b32 v45, 0\nv_mov_b32 v46, 0\nv_mov_b32 v47, 0')
        for L in range(4):
            nx = lab('nx')
            if L < 3: a(f's_cmp_lg_u32 {sL}, {L}\ns_cbranch_scc1 {nx}')
            a(f's_cmp_eq_u32 {sFast}, 0\ns_branch L_ook{L}')
            if L < 3: a(f'{nx}:')
        for L in range(1, 4):
            lp = lab('xv')
            a(f'L_xre{L}:\n.resetwait\ns_cmp_eq_u32 {sVer}, {L}\ns_cbranch_scc1 L_xok{L}')
            a(f'v_lshlrev_b32 v37, 2, v0\nv_add_u32 v37, {STAT + 256}, v37\nds_read_b32 v37, v37\nv_mov_b32 v36, 0')
            for q in range(4):
                for i in range(16): a(f'ds_read_b32 v{40+i}, {vT} offset:{(16*q+i)*1024}')
                a('s_waitcnt lgkmcnt(0)')
                for i in range(0, 16, 2): a(f'v_max3_u32 v36, v36, v{40+i}, v{41+i}')
            a(f'v_cmp_eq_u32 s[96:97], -1, v36\nv_cmp_u_f32 vcc, v37, v37\ns_or_b64 vcc, vcc, s[96:97]\ns_cbranch_scc0 L_xok{L}')
            a.extend(entry_prep(L))
            a(f'{lp}:\ns_add_u32 s7, {sXoLd}, {oXX}')
            for i in range(16):
                if i % 4 == 0 and i: a('s_add_u32 s7, s7, 4096')
                a(f'buffer_load_dword v{40+i}, {vL16}, {WS}, s7 offen offset:{(i%4)*1024} sc1')
            a(f'buffer_load_dwordx4 v[56:59], {vL16}, {WS}, s6 offen sc1')
            a(f's_add_u32 {sCnt}, {sCnt}, 1\ns_cmp_ge_u32 {sCnt}, 0x20000\ns_cbranch_scc1 L_end\ns_waitcnt vmcnt(0)\nv_mov_b32 v36, 0')
            for i in range(0, 20, 2): a(f'v_max3_u32 v36, v36, v{40+i}, v{41+i}')
            a(f'v_cmp_eq_u32 vcc, -1, v36\ns_cbranch_vccnz {lp}\ns_mov_b32 {sVer}, {L}\ns_barrier\ns_branch L_entry{L}')
    a.auto_wait()
    nn = a.fix_hazards()
    for b in a.check_branch_hazards(): print('BRANCH HAZARD', b, file=sys.stderr)
    hdr = f'; fused persistent kernel: 256 workgroups (one per CU), generated by a script\n; @launch grid=(256,1,1) block=(256,1,1) lds={LDS_BYTES}\n'
    tail = f'''.section .rodata,"a"
.p2align 6
.amdhsa_kernel {KNAME}
  .amdhsa_next_free_vgpr 512
  .amdhsa_next_free_sgpr 102
  .amdhsa_accum_offset 256
  .amdhsa_group_segment_fixed_size 0
  .amdhsa_kernarg_size 72
  .amdhsa_user_sgpr_count 2
  .amdhsa_user_sgpr_kernarg_segment_ptr 1
  .amdhsa_system_sgpr_workgroup_id_x 1
.end_amdhsa_kernel
'''
    print('instructions', sum(1 for I in a.ins if I.kind not in ('label', 'dir')), 'nop states added', nn, file=sys.stderr)
    if focus is not None: hdr += '; names ' + ' '.join(names) + '\n'
    return hdr + a.text() + tail

if __name__ == '__main__':
    opt = {}
    for x in sys.argv[2:]:
        k, _, v = x.partition('=')
        opt[k] = eval(v) if v else 1
    open(sys.argv[1], 'w').write(gen(opt))
```
